```python
import torch

def _softmax(x, axis=-1):
    return torch.softmax(x, dim=axis)

def _gelu(x):
    return torch.nn.functional.gelu(x, approximate='tanh')

def _silu(x):
    return torch.nn.functional.silu(x)

def _sigmoid(x):
    return torch.sigmoid(x)

def _layernorm(x, axis=-1, eps=1e-05):
    m = x.mean(dim=axis, keepdim=True)
    v = x.var(dim=axis, keepdim=True, unbiased=False)
    return (x - m) / torch.sqrt(v + eps)

def _scatter_add(tgt, idx, src, axis=0):
    return tgt.clone().index_add_(axis, idx, src)

def _segment_sum(src, seg, n):
    out = torch.zeros((n,) + src.shape[1:], dtype=src.dtype)
    return out.index_add_(0, seg, src)

def _pad(x, pw):
    flat = tuple((v for pair in reversed(pw) for v in pair))
    return torch.nn.functional.pad(x, flat)
kernel_name = 'interleave_layers__memory_aug_recurrent_mem_tr__softmax_full_mha__prompt'

def setup_inputs():

    _w = lambda a: (lambda t: t.to(torch.bfloat16) if t.is_floating_point() else t)(torch.as_tensor(a))

    def _A_setup():
        B, S, Dm = (1, 2048, 576)
        H, Dh = (32, 128)
        M, seg = (8, 32)
        seg = min(seg, S)
        S = S // seg * seg
        return {'x': _w((lambda *s: torch.randn(*s, dtype=torch.bfloat16) * 0.05)(B, S, Dm)), 'mem0': _w((lambda *s: torch.randn(*s, dtype=torch.bfloat16) * 0.2)(B, M, Dm)), 'Wq': _w((lambda *s: torch.randn(*s, dtype=torch.bfloat16) * 1.6)(Dm, H, Dh) * Dm ** (-0.5)), 'Wk': _w((lambda *s: torch.randn(*s, dtype=torch.bfloat16) * 1.6)(Dm, H, Dh) * Dm ** (-0.5)), 'Wv': _w((lambda *s: torch.randn(*s, dtype=torch.bfloat16) * 0.2)(Dm, H, Dh) * Dm ** (-0.5)), 'Wo': _w((lambda *s: torch.randn(*s, dtype=torch.bfloat16) * 0.2)(H, Dh, Dm) * (H * Dh) ** (-0.5)), 'seg_len': seg}
    _A_in = _A_setup()

    def _B_setup():
        B, S, D = (1, 2048, 576)
        return {'x': _w((lambda *s: torch.randn(*s, dtype=torch.bfloat16) * 0.05)(B, S, D)), 'wqkv': _w((lambda *s: torch.randn(*s, dtype=torch.bfloat16) * 0.05)(D, 3 * D)), 'wo': _w((lambda *s: torch.randn(*s, dtype=torch.bfloat16) * 0.05)(D, D))}
    _B_in = _B_setup()
    return {'A_x': _A_in['x'], 'A_mem0': _A_in['mem0'], 'A_Wq': _A_in['Wq'], 'A_Wk': _A_in['Wk'], 'A_Wv': _A_in['Wv'], 'A_Wo': _A_in['Wo'], 'A_seg_len': _A_in['seg_len'], 'B_x': _B_in['x'], 'B_wqkv': _B_in['wqkv'], 'B_wo': _B_in['wo']}

def reference(A_x, A_mem0, A_Wq, A_Wk, A_Wv, A_Wo, A_seg_len, B_x, B_wqkv, B_wo):

    def _A_ref(x, mem0, Wq, Wk, Wv, Wo, seg_len):
        B, S, Dm = x.shape
        H, Dh = (Wq.shape[1], Wq.shape[2])
        M = mem0.shape[1]
        scale = Dh ** (-0.5)
        n_seg = S // seg_len
        L = M + seg_len
        idx = torch.arange(L)
        mask = (idx[:, None] < M) | (idx[:, None] >= idx[None, :])
        mem = mem0
        outs = []
        for s in range(n_seg):
            xs = x[:, s * seg_len:(s + 1) * seg_len, :].clone()
            h = torch.concatenate([mem, xs], axis=1)
            q = torch.einsum('btd,dhe->bhte', h, Wq)
            k = torch.einsum('btd,dhe->bhte', h, Wk)
            v = torch.einsum('btd,dhe->bhte', h, Wv)
            scores = torch.einsum('bhqe,bhke->bhqk', q, k) * scale
            scores = torch.where(mask[None, None], scores, -1000000000.0)
            p = _softmax(scores, axis=-1)
            o = torch.einsum('bhqk,bhke->bhqe', p, v)
            o = torch.einsum('bhte,hed->btd', o, Wo)
            mem = o[:, :M, :].clone()
            outs.append(o[:, M:, :])
        return torch.concatenate(outs, axis=1)

    def _B_ref(x, wqkv, wo):
        B, S, D = x.shape
        H = 32
        Dh = D // H
        qkv = (lambda x, *d: x.permute(*d))((x @ wqkv).reshape(B, S, 3, H, Dh), 2, 0, 3, 1, 4)
        q, k, v = (qkv[0], qkv[1], qkv[2])
        scale = Dh ** (-0.5)
        scores = torch.einsum('bhqd,bhkd->bhqk', q, k) * scale
        p = _softmax(scores, axis=-1)
        o = torch.einsum('bhqk,bhkd->bhqd', p, v)
        return (lambda x, *d: x.permute(*d))(o, 0, 2, 1, 3).reshape(B, S, D) @ wo
    x = A_x
    x = x + _A_ref(_layernorm(x, axis=-1), A_mem0, A_Wq, A_Wk, A_Wv, A_Wo, A_seg_len)
    x = x + _B_ref(_layernorm(x, axis=-1), B_wqkv, B_wo)
    x = x + _A_ref(_layernorm(x, axis=-1), A_mem0, A_Wq, A_Wk, A_Wv, A_Wo, A_seg_len)
    x = x + _B_ref(_layernorm(x, axis=-1), B_wqkv, B_wo)
    return x
```

```python
import re

REG_RE = re.compile(r'\b([vas])(\d+)\b|\b([vas])\[(\d+):(\d+)\]')
TRANS = ("v_exp_", "v_log_", "v_rcp_", "v_rsq_", "v_sqrt_", "v_sin_", "v_cos_")

def regs_of(op):
    out = []
    for m in REG_RE.finditer(op):
        if m.group(1):
            out.append((m.group(1), int(m.group(2))))
        else:
            out += [(m.group(3), i) for i in range(int(m.group(4)), int(m.group(5)) + 1)]
    if re.search(r'\bvcc\b', op): out += [('s', 106), ('s', 107)]
    if re.search(r'\bvcc_lo\b', op): out += [('s', 106)]
    if re.search(r'\bvcc_hi\b', op): out += [('s', 107)]
    if re.search(r'\bexec\b', op): out += [('s', 126), ('s', 127)]
    if re.search(r'\bm0\b', op): out += [('s', 124)]
    return out

def split_ops(rest):
    ops, depth, cur = [], 0, ''
    for ch in rest:
        if ch in '[(': depth += 1
        if ch in '])': depth -= 1
        if ch == ',' and depth == 0:
            ops.append(cur.strip()); cur = ''
        else:
            cur += ch
    if cur.strip(): ops.append(cur.strip())
    return ops

class Ins:
    __slots__ = ("text", "mn", "kind", "rd", "wr", "srcc", "srcab", "passes", "dpp", "lds_dma", "wide_store", "data")
    def __init__(self, text):
        self.text = text
        t = text.split(';')[0].strip()
        parts = t.split(None, 1)
        mn = self.mn = parts[0]
        ops = split_ops(parts[1]) if len(parts) > 1 else []
        self.rd, self.wr, self.srcc, self.srcab, self.data = set(), set(), set(), set(), set()
        self.passes = 0; self.dpp = False; self.lds_dma = False; self.wide_store = False
        R = lambda i: set(regs_of(ops[i])) if i < len(ops) else set()
        allr = lambda a=0: set(r for o in ops[a:] for r in regs_of(o))
        if mn.startswith("v_mfma") or mn.startswith("v_smfmac"):
            self.kind = "mfma"
            self.wr = R(0); self.srcab = R(1) | R(2)
            if mn.startswith("v_smfmac"):
                self.srcc = R(0); self.srcab |= R(3)
            else:
                self.srcc = R(3)
            self.rd = self.srcab | self.srcc
            self.passes = 8 if "32x32" in mn else 4
            assert "f64" not in mn and not mn.endswith("_f32") and "f8f6f4" not in mn and "4x4" not in mn, mn
        elif mn.startswith("v_"):
            self.kind = "valu"
            self.dpp = ("dpp" in mn) or ("quad_perm" in t) or ("row_" in t)
            if mn.startswith("v_nop"):
                pass
            elif mn.startswith("v_permlane") and "swap" in mn:
                self.wr = R(0) | R(1); self.rd = R(0) | R(1)
            elif mn.startswith("v_swap"):
                self.wr = R(0) | R(1); self.rd = R(0) | R(1)
            elif mn.startswith("v_cmpx"):
                self.wr = R(0) | {('s', 126), ('s', 127)}; self.rd = allr(1)
            elif re.match(r'v_(add|sub|subrev|addc|subb|subbrev)_co_', mn) or mn.startswith("v_div_scale") or mn.startswith("v_mad_u64"):
                self.wr = R(0) | R(1); self.rd = allr(2)
            else:
                self.wr = R(0); self.rd = allr(1)
                if mn.startswith("v_dot"): self.srcab = R(1) | R(2)
                if mn.startswith(("v_fmac", "v_pk_fmac", "v_dot2c", "v_writelane")) or self.dpp or ("op_sel" in t and not mn.startswith("v_pk")) or "sdwa" in mn:
                    self.rd |= R(0)
        elif mn.startswith("ds_"):
            self.kind = "ds"
            if mn.startswith(("ds_read", "ds_bpermute", "ds_permute", "ds_swizzle")) or "_rtn" in mn:
                self.wr = R(0); self.rd = allr(1)
            else:
                self.rd = allr(0)
        elif mn.startswith(("buffer_", "global_")):
            self.kind = "vmem"
            lds = bool(re.search(r'\blds\b', t)) or "_lds_" in mn
            if mn.startswith(("buffer_wbl2", "buffer_inv")):
                pass
            elif lds:
                self.lds_dma = True; self.rd = allr(0) | {('s', 124)}
            elif "_load" in mn:
                self.wr = R(0); self.rd = allr(1)
            elif "atomic" in mn:
                if re.search(r'\bsc0\b', t):
                    self.wr = R(0); self.rd = allr(0) if mn.startswith("buffer") else allr(1)
                else:
                    self.rd = allr(0)
            else:
                self.rd = allr(0)
                self.data = R(0) if mn.startswith("buffer") else R(1)
                self.wide_store = mn.endswith(("x3", "x4"))
        elif mn.startswith(("s_load", "s_buffer_load", "s_memtime", "s_memrealtime", "s_atomic")):
            self.kind = "smem"
            self.wr = R(0); self.rd = allr(1)
        elif mn.startswith("s_"):
            self.kind = "salu"
            if mn.startswith(("s_cmp", "s_cbranch", "s_branch", "s_nop", "s_waitcnt", "s_barrier", "s_endpgm", "s_setprio", "s_sleep", "s_bitcmp", "s_setpc")):
                self.rd = allr(0) if not mn.startswith(("s_cbranch", "s_branch", "s_waitcnt")) else set()
                if "vcc" in mn: self.rd = {('s', 106), ('s', 107)}
            elif "saveexec" in mn:
                self.wr = R(0) | {('s', 126), ('s', 127)}; self.rd = allr(1)
            else:
                self.wr = R(0); self.rd = allr(1)
        else:
            raise ValueError("unknown instruction: " + text)

def isv(r): return r[0] in 'va'

def need(p, c):
    n = 0
    if p.kind == "valu":
        vw = {r for r in p.wr if isv(r)}; sw = {r for r in p.wr if r[0] == 's'}
        if c.kind == "mfma" and vw & c.rd: n = max(n, 2)
        if c.kind == "mfma" and ('s', 126) in sw: n = max(n, 4)
        if c.kind == "valu":
            if c.dpp and vw & c.rd: n = max(n, 2)
            if c.dpp and ('s', 126) in sw: n = max(n, 5)
            if c.mn.startswith("v_permlane") and vw & c.rd: n = max(n, 2)
            if c.mn.startswith("v_permlane") and ('s', 126) in sw: n = max(n, 4)
            if c.mn.startswith(("v_readlane", "v_readfirstlane")) and vw & c.rd: n = max(n, 1)
            if c.mn.startswith(("v_readlane", "v_readfirstlane", "v_writelane")) and (sw & c.rd or ('s', 126) in sw): n = max(n, 4)
            if sw & c.rd: n = max(n, 2)
            if c.mn.startswith("v_div_fmas") and ('s', 106) in sw: n = max(n, 4)
            if p.mn.startswith(TRANS) and vw & c.rd: n = max(n, 1)
            if ("op_sel" in p.text or "sdwa" in p.mn) and not p.mn.startswith("v_pk") and vw & (c.rd | c.wr): n = max(n, 1)
        if p.mn.startswith("v_dot") and vw & (c.rd | c.wr):
            if not (c.mn == p.mn and not (vw & c.srcab)): n = max(n, 3)
        if c.kind == "vmem" and sw & c.rd: n = max(n, 5)
        if c.kind in ("salu", "smem") and sw & c.rd: n = max(n, 1)
    elif p.kind == "mfma":
        big = {4: 8, 8: 12}[p.passes]
        if c.kind == "mfma":
            if p.wr & c.srcab: n = max(n, big)
            if p.wr & c.srcc:
                if not (p.wr == c.srcc and p.mn == c.mn): n = max(n, {4: 6, 8: 10}[p.passes])
            elif p.wr & c.wr: n = max(n, {4: 6, 8: 10}[p.passes])
        elif c.kind in ("valu", "ds", "vmem"):
            if p.wr & (c.rd | c.wr): n = max(n, big)
            if c.kind == "valu" and p.srcc & c.wr: n = max(n, {4: 3, 8: 7}[p.passes])
    elif p.kind == "vmem":
        if p.wide_store and p.data & c.wr: n = max(n, 2)
    elif p.kind == "salu":
        if ('s', 124) in p.wr and (c.lds_dma or "addtid" in c.mn): n = max(n, 1)
    return n

def states(i):
    if i.mn == "s_nop": return int(i.text.split()[1], 0) + 1
    return 1

class Asm:
    def __init__(self, auto_wait=True, timed=True):
        self.timed = timed
        self.out = []
        self.hist = []
        self.vm = []
        self.lg = []
        self.auto_wait = auto_wait
        self.nops = 0
    def raw(self, line):
        self.out.append(line)
    def label(self, name):
        self.out.append(name + ":")
    def comment(self, s):
        self.out.append("    ; " + s)
    def _emit(self, ins):
        self.out.append("    " + ins.text)
        self.hist.append(ins)
        if len(self.hist) > 24: self.hist.pop(0)
    def _apply_wait(self, text):
        m = re.search(r'vmcnt\((\d+)\)', text)
        if m:
            n = int(m.group(1)); self.vm = self.vm[len(self.vm) - n:] if n < len(self.vm) and n > 0 else ([] if n == 0 else self.vm)
        m = re.search(r'lgkmcnt\((\d+)\)', text)
        if m:
            n = int(m.group(1))
            if n == 0: self.lg = []
            elif not any(x.kind == "smem" for x in self.lg) and n < len(self.lg): self.lg = self.lg[len(self.lg) - n:]
    def __call__(self, text):
        for line in text.strip().split("\n"):
            line = line.strip()
            if not line or line.startswith(";"): continue
            if line.endswith(":"):
                self.label(line[:-1]); continue
            if line.startswith("."):
                self.raw(line); continue
            self.ins(line)
    def ins(self, line):
        c = Ins(line)
        if c.mn == "s_waitcnt":
            self._apply_wait(line); self._emit(c); return
        nowait = 'nowait' in line
        if self.auto_wait and not nowait:
            touched = c.rd | c.wr
            w = []
            k = max([i for i, p in enumerate(self.vm) if p.wr & touched], default=-1)
            if k >= 0:
                n = len(self.vm) - 1 - k
                assert n <= 63
                w.append("vmcnt(%d)" % n)
            k = max([i for i, p in enumerate(self.lg) if p.wr & touched], default=-1)
            if k >= 0:
                n = len(self.lg) - 1 - k
                if any(x.kind == "smem" for x in self.lg): n = 0
                n = min(n, 15)
                w.append("lgkmcnt(%d)" % n)
            if w:
                t = "s_waitcnt " + " ".join(w)
                self._apply_wait(t); self._emit(Ins(t))
        pad = 0
        H = self.hist
        for k in range(len(H)):
            nd = need(H[k], c)
            if nd == 0: continue
            t, lastm = 0, None
            if H[k].kind == "mfma": lastm = (0, H[k].passes)
            prev = H[k]
            for x in H[k+1:] + [c]:
                t += states(prev) + (1 if self.timed and prev.mn.startswith(TRANS) and prev is not H[k] else 0); t_plain = t
                if x.kind == "mfma" and self.timed:
                    if lastm is not None: t = max(t, lastm[0] + lastm[1])
                    lastm = (t, x.passes)
                prev = x
            if t < nd + 1: pad = max(pad, nd + 1 - t_plain)
        while pad > 0:
            n = min(pad, 16)
            self._emit(Ins("s_nop %d" % (n - 1))); self.nops += n; pad -= n
        self._emit(c)
        if c.kind == "vmem": self.vm.append(c)
        if c.kind in ("ds", "smem"): self.lg.append(c)
    def nop(self, n):
        while n > 0:
            k = min(n, 16); self._emit(Ins("s_nop %d" % (k - 1))); n -= k
    def wait_vm_for(self, regs_text):
        t = set(regs_of(regs_text))
        k = max([i for i, p in enumerate(self.vm) if p.wr & t], default=-1)
        if k >= 0: self.ins("s_waitcnt vmcnt(%d)" % (len(self.vm) - 1 - k))
    def lg_after(self, prefix):
        k = max([i for i, p in enumerate(self.lg) if p.mn.startswith(prefix)], default=-1)
        return min(15, len(self.lg) - 1 - k)
    def join(self):
        self.ins("s_waitcnt vmcnt(0) lgkmcnt(0)")
        self.nop(12)
    def reset(self):
        self.vm, self.lg, self.hist = [], [], []
    def snapshot(self):
        return (list(self.hist), list(self.vm), list(self.lg))
    def restore(self, s):
        self.hist, self.vm, self.lg = list(s[0]), list(s[1]), list(s[2])
    def finish(self):
        return "\n".join(self.out) + "\n"
```

```python
from common import *
import ow
S_H, S_PAR, S_PA, S_PW, S_NU, S_NN, S_OWN, S_QO, S_SG, S_CG, S_RET, S_LO, S_HI = 40, 41, 42, 43, 44, 45, 46, 47, 48, 49, 50, 52, 53
A1, K2B, VB, VS, KA, K2A, VA = 0, 1, 2, 3, 4, 5, 6
SS, P, K1, K2, VFA, VFB, TN, QN1, QN2 = (8, 24), 40, 48, 52, 56, 60, 64, 80, 84
T, OBX, EL, EG, DM, DX, VS4 = 86, 92, 94, 98, 102, 103, 104
L_EX, L_ONE = 147456, 156672
L_XT, L_ET = 0, 40960
def wfrag(kk, i):
    r = 4*(kk*3 + i)
    return a(176 + r, 4) if r < 80 else v(120 + r - 80, 4)
S1 = lambda d, q: f"v_mfma_f32_32x32x16_bf16 {v(d,16)}, {v(K1,4)}, {q}, 0"
S2 = lambda d, q: f"v_mfma_f32_32x32x8_bf16 {v(d,16)}, {v(K2,2)}, {q}, {v(d,16)}"
PV = lambda o, h: f"v_mfma_f32_32x32x16_bf16 {o}, {v((VFA, VFB)[h],4)}, {v(P+4*h,4)}, {o}"
def exps(b, cur, g):
    for r in range(4): b(f"v_exp_f32 v{cur+4*g+r}, v{cur+4*g+r}")
    b(cvt(P + 2*g, cur + 4*g)); b(cvt(P + 2*g + 1, cur + 4*g + 2))
def kv_addr(b, sreg):
    b(f"""
    s_mul_i32 s{S_T0}, s{sreg}, 2304
    v_add_u32 v{KA}, s{S_T0}, v{A1}
    v_add_u32 v{K2A}, s{S_T0}, v{K2B}
    v_mad_u32_u24 v{VA}, s{sreg}, v{VS}, v{VB}
    """)
rK1 = lambda off=0: f"ds_read_b128 {v(K1,4)}, v{KA} offset:{off}"
rK2 = lambda off=0: f"ds_read_b32 v{K2}, v{K2A} offset:{off}"
rV = lambda h: f"ds_read_b128 {v((VFA, VFB)[h],4)}, v{VA} offset:{576*h}"

def segment(b):
    b(f"""
    s_lshl_b32 s{S_NEED}, s{S_LAY}, 6
    s_add_u32 s{S_NEED}, s{S_NEED}, s{S_SEG}
    s_lshl_b32 s{S_QO}, s{S_NEED}, 5
    s_add_u32 s{S_QO}, s{S_QO}, s{S_H}
    s_mul_i32 s{S_QO}, s{S_QO}, 3584
    s_add_u32 s{S_QO}, s{S_QO}, {W.QB}
    s_add_u32 s{S_NEED}, s{S_NEED}, 1
    s_and_b32 s{S_T0}, s{S_SEG}, 1
    s_lshl_b32 s{S_T0}, s{S_T0}, 7
    s_and_b32 s{S_T1}, s{S_H}, 28
    s_add_u32 s{S_T0}, s{S_T0}, s{S_T1}
    s_add_u32 s{S_T0}, s{S_T0}, {W.PROG + P_QW}
    v_mov_b32 v{T}, 0
    """)
    wait_words(b, T, S_T0, S_NEED, T+1)
    b(f"""
    s_cmp_eq_u32 s{S_WAVE}, 3
    s_cbranch_scc1 L_bw_nd
    s_lshl_b32 s{S_T0}, s{S_WAVE}, 10
    s_mul_i32 s{S_T1}, s{S_SEG}, 2304
    s_add_u32 m0, s{S_T0}, s{S_T1}
    s_add_u32 s{S_T0}, s{S_T0}, s{S_QO}
    s_cmp_eq_u32 s{S_WAVE}, 2
    s_cselect_b64 exec, 0xffff, -1
    buffer_load_dwordx4 v{A1}, s[{S_WS}:{S_WS+3}], s{S_T0} offen sc1 lds
    s_mov_b64 exec, -1
    L_bw_nd:
    v_lshrrev_b32 v{T}, 2, v{A1}
    buffer_load_dwordx4 {v(QN1,4)}, v{A1}, s[{S_WS}:{S_WS+3}], s{S_QO} offen offset:2304 sc1
    buffer_load_dword v{QN2}, v{T}, s[{S_WS}:{S_WS+3}], s{S_QO} offen offset:3328 sc1
    s_lshl_b32 s{S_T0}, s{S_WAVE}, 1
    s_add_u32 s{S_T0}, s{S_T0}, s{S_PAR}
    s_add_u32 s{S_NU}, s{S_SEG}, 7
    s_sub_u32 s{S_NU}, s{S_NU}, s{S_T0}
    s_lshr_b32 s{S_NU}, s{S_NU}, 3
    """)
    kv_addr(b, S_SEG)
    b("s_waitcnt vmcnt(0)\ns_barrier")
    b(rK1()); b(rK2()); b(rV(0)); b(rV(1))
    b(f"s_waitcnt lgkmcnt(0)\ns_cmp_eq_u32 s{S_NU}, 0\ns_cbranch_scc1 L_bw_n")
    q1 = lambda k: a(128 + 4*k, 4); q2 = lambda k: a(160 + 2*k, 2); st = lambda k: a(16*k, 16)
    b(S1(SS[0], q1(0))); b(S2(SS[0], q2(0)))
    for k in range(8):
        cur, nxt = SS[k % 2], SS[(k + 1) % 2]
        if k < 7: b(S1(nxt, q1(k+1)))
        exps(b, cur, 0)
        if k > 0: b(PV(st(k-1), 1))
        exps(b, cur, 1)
        if k < 7: b(S2(nxt, q2(k+1)))
        exps(b, cur, 2)
        b(PV(st(k), 0))
        if k < 7: b(f"s_cmp_eq_u32 s{S_NU}, {k+1}")
        exps(b, cur, 3)
        if k < 7: b(f"s_cbranch_scc1 L_bw_u{k}")
    b(PV(st(7), 1))
    b.label("L_bw_n")
    b(f"""
    s_and_b32 s{S_T0}, s{S_SEG}, 1
    s_cmp_lg_u32 s{S_T0}, s{S_PAR}
    s_cbranch_scc1 L_bw_next
    s_add_u32 s{S_NN}, s{S_SEG}, 4
    s_sub_u32 s{S_NN}, s{S_NN}, s{S_WAVE}
    s_lshr_b32 s{S_NN}, s{S_NN}, 2
    s_bfe_u32 s{S_OWN}, s{S_SEG}, 0x20001
    """)
    kv_addr(b, S_WAVE)
    b(rK1()); b(rK2()); b(rV(0))
    for i in range(8): b(f"v_mov_b64 {v(TN+2*i,2)}, 0")
    b(f"v_mov_b64 {v(P+4,2)}, 0\nv_mov_b64 {v(P+6,2)}, 0")
    b(f"s_cmp_eq_u32 s{S_NN}, 0\ns_waitcnt lgkmcnt(0)\ns_cbranch_scc1 L_bw_x")
    qa, qb, tn = v(QN1, 4), v(QN2, 2), v(TN, 16)
    b(S1(SS[0], qa)); b(rK1(9216)); b(S2(SS[0], qb)); b(rK2(9216))
    b("s_waitcnt lgkmcnt(0)"); b.nop(10)
    b.label("L_bw_nl")
    b.auto_wait = False
    for u in range(2):
        cur, nxt = SS[u], SS[1 - u]
        b("s_waitcnt lgkmcnt(3)"); b(S1(nxt, qa)); b(rK1(18432))
        exps(b, cur, 0)
        b("s_waitcnt lgkmcnt(3)"); b(PV(tn, 1)); b(rV(1)); b(f"v_add_u32 v{VA}, v{VA}, v{VS4}")
        exps(b, cur, 1)
        b("s_waitcnt lgkmcnt(3)"); b(S2(nxt, qb)); b(rK2(18432)); b(f"v_add_u32 v{KA}, 9216, v{KA}")
        exps(b, cur, 2)
        b("s_waitcnt lgkmcnt(3)"); b(PV(tn, 0)); b(rV(0)); b(f"v_add_u32 v{K2A}, 9216, v{K2A}")
        b(f"s_sub_u32 s{S_NN}, s{S_NN}, 1\ns_cmp_eq_u32 s{S_NN}, 0")
        exps(b, cur, 3)
        b("s_cbranch_scc1 L_bw_ne" if u == 0 else "s_cbranch_scc0 L_bw_nl")
    b.auto_wait = True
    b.label("L_bw_ne")
    b("s_waitcnt lgkmcnt(0)\ns_nop 0"); b(PV(tn, 1)); b.nop(12)
    b.label("L_bw_x")
    b(f"""
    s_cmp_eq_u32 s{S_WAVE}, s{S_OWN}
    s_cbranch_scc1 L_bw_own
    s_sub_u32 s{S_T0}, s{S_WAVE}, s{S_OWN}
    s_add_u32 s{S_T0}, s{S_T0}, 3
    s_and_b32 s{S_T0}, s{S_T0}, 3
    s_mul_i32 s{S_T0}, s{S_T0}, 3072
    s_add_u32 s{S_T0}, s{S_T0}, {L_EX}
    v_add_u32 v{T}, s{S_T0}, v{A1}
    """)
    for i in range(3): b(f"ds_write_b128 v{T}, {v(TN+4*i,4)} offset:{i*1024}")
    b("s_waitcnt lgkmcnt(0)\ns_barrier\ns_branch L_bw_next")
    b.label("L_bw_own")
    b(f"v_add_u32 v{T}, {L_EX}, v{A1}\ns_barrier")
    for i in range(9): b(f"ds_read_b128 {v(8+4*i,4)}, v{T} offset:{i*1024}")
    for j in range(3):
        for r in range(11): b(f"v_add_f32 v{TN+r}, v{TN+r}, v{8+12*j+r}")
    b(f"s_waitcnt lgkmcnt(0)\ns_lshr_b32 s{S_T0}, s{S_SEG}, 3")
    for k in range(7): b(f"s_cmp_eq_u32 s{S_T0}, {k}\ns_cbranch_scc1 L_bw_o{k}")
    for k in [7] + list(range(7)):
        if k < 7: b.label(f"L_bw_o{k}")
        for r in range(11): b(f"v_accvgpr_write_b32 a{16*k+r}, v{TN+r}")
        for r in range(4): b(f"v_accvgpr_write_b32 a{128+4*k+r}, v{QN1+r}")
        b(f"v_accvgpr_write_b32 a{160+2*k}, v{QN2}\ns_branch L_bw_next")
    for k in range(7):
        b.reset(); b.label(f"L_bw_u{k}")
        b("s_nop 1"); b(PV(st(k), 1)); b("s_branch L_bw_n")

def truemax(b):
    b.reset()
    b.label("L_bw_tm")
    qa, qb, tn, S0, M = v(QN1, 4), v(QN2, 2), v(TN, 16), SS[0], T+2
    b(f"v_mov_b32 v{M}, 0xff800000\ns_mov_b32 s{S_NN}, 0")
    b.label("L_bw_tm1")
    kv_addr(b, S_NN)
    b(rK1()); b(rK2()); b(S1(S0, qa)); b(S2(S0, qb))
    for r in range(0, 16, 2): b(f"v_max3_f32 v{M}, v{M}, v{S0+r}, v{S0+r+1}")
    b(f"s_add_u32 s{S_NN}, s{S_NN}, 1\ns_cmp_lt_u32 s{S_NN}, 64\ns_cbranch_scc1 L_bw_tm1")
    b(f"v_mov_b32 v{M+1}, v{M}\nv_permlane32_swap_b32 v{M}, v{M+1}\nv_max_f32 v{M}, v{M}, v{M+1}\ns_mov_b32 s{S_NN}, 0")
    for i in range(8): b(f"v_mov_b64 {v(TN+2*i,2)}, 0")
    b.label("L_bw_tm2")
    kv_addr(b, S_NN)
    b(rK1()); b(rK2()); b(rV(0)); b(rV(1)); b(S1(S0, qa)); b(S2(S0, qb))
    for r in range(16): b(f"v_sub_f32 v{S0+r}, v{S0+r}, v{M}")
    for g in range(4): exps(b, S0, g)
    b(PV(tn, 0)); b(PV(tn, 1))
    b(f"s_add_u32 s{S_NN}, s{S_NN}, 1\ns_cmp_lt_u32 s{S_NN}, 64\ns_cbranch_scc1 L_bw_tm2")
    b.nop(12)
    b(f"v_mov_b32 v{T}, v{TN+10}\nv_permlane32_swap_b32 v{TN+10}, v{T}\ns_setpc_b64 s[{S_RET}:{S_RET+1}]")

def finish(b):
    b.nop(12)
    b(f"""
    s_lshl_b32 s{S_T1}, s{S_LAY}, 6
    s_lshl_b32 s{S_T0}, s{S_WAVE}, 1
    s_add_u32 s{S_T0}, s{S_T0}, s{S_PAR}
    s_add_u32 s{S_T0}, s{S_T0}, s{S_T1}
    s_lshl_b32 s{S_T0}, s{S_T0}, 5
    s_add_u32 s{S_T0}, s{S_T0}, s{S_H}
    s_mul_i32 s{S_QO}, s{S_T0}, 1152
    s_add_u32 s{S_QO}, s{S_QO}, {W.OB}
    """)
    for k in range(8):
        for r in range(11): b(f"v_accvgpr_read_b32 v{TN+r}, a{16*k+r}")
        b(f"""
        v_mov_b32 v{T}, v{TN+10}
        v_permlane32_swap_b32 v{TN+10}, v{T}
        v_cmp_nlt_f32 vcc, s{S_LO}, v{TN+10}
        v_cmp_ngt_f32 s[{S_T0}:{S_T0+1}], s{S_HI}, v{TN+10}
        s_or_b64 vcc, vcc, s[{S_T0}:{S_T0+1}]
        s_cbranch_scc0 L_bw_f{k}
        """)
        for r in range(4): b(f"v_accvgpr_read_b32 v{QN1+r}, a{128+4*k+r}")
        b(f"v_accvgpr_read_b32 v{QN2}, a{160+2*k}")
        b(f"s_call_b64 s[{S_RET}:{S_RET+1}], L_bw_tm")
        b.label(f"L_bw_f{k}")
        b(f"v_rcp_f32 v{T}, v{TN+10}")
        for r in range(10): b(f"v_mul_f32 v{TN+r}, v{TN+r}, v{T}")
        d = 8 + 8*(k % 2)
        for i in range(5): b(cvt(d + i, TN + 2*i))
        b(f"buffer_store_dwordx4 {v(d,4)}, v{A1}, s[{S_WS}:{S_WS+3}], s{S_QO} offen sc1")
        b(f"buffer_store_dword v{d+4}, v{OBX}, s[{S_WS}:{S_WS+3}], s{S_QO} offen offset:1024 sc1")
        b(f"s_add_u32 s{S_QO}, s{S_QO}, {8*32*1152}")
        if k in (0, 2, 7):
            b(f"s_lshl_b32 s{S_T1}, s{S_LAY}, 6\ns_add_u32 s{S_T1}, s{S_T1}, {8*(k+1)}")
            signal(b, S_PA, S_T1, T, T+1)

def project(b):
    b(f"s_cmp_ge_u32 s{S_SG}, 21\ns_cbranch_scc1 L_bw_pe\ns_mov_b32 s{S_SEG}, s{S_SG}")
    b.label("L_bw_pl")
    b(f"""
    s_lshl_b32 s{S_NEED}, s{S_LAY}, 6
    s_add_u32 s{S_NEED}, s{S_NEED}, s{S_SEG}
    s_mul_i32 s{S_QO}, s{S_NEED}, 36864
    s_add_u32 s{S_QO}, s{S_QO}, {W.OB}
    s_add_u32 s{S_NEED}, s{S_NEED}, 1
    s_and_b32 s{S_T0}, s{S_SEG}, 1
    s_lshl_b32 s{S_T0}, s{S_T0}, 7
    s_add_u32 s{S_T0}, s{S_T0}, {W.PROG + P_BW}
    v_lshrrev_b32 v{T}, 2, v{A1}
    v_and_b32 v{T}, 127, v{T}
    """)
    wait_words(b, T, S_T0, S_NEED, T+1, 1)
    b(f"s_mul_i32 s{S_T0}, s{S_WAVE}, 9216\ns_add_u32 s{S_T0}, s{S_T0}, s{S_QO}\ns_lshl_b32 s{S_T2}, s{S_WAVE}, 12")
    for kk in range(4):
        for tt in range(2):
            b(f"s_add_u32 m0, s{S_T2}, {L_XT + tt*18432 + kk*1024}\ns_add_u32 s{S_T1}, s{S_T0}, {kk*2304 + tt*256}")
            b(f"buffer_load_dwordx4 v{DM}, s[{S_WS}:{S_WS+3}], s{S_T1} offen sc1 lds")
    b(f"s_mul_i32 s{S_T0}, s{S_WAVE}, 4608\ns_add_u32 s{S_T0}, s{S_T0}, s{S_QO}\ns_lshl_b32 s{S_T2}, s{S_WAVE}, 8")
    for e in range(2):
        for tt in range(2):
            b(f"s_add_u32 m0, s{S_T2}, {L_XT + tt*18432 + (16+e)*1024}\ns_add_u32 s{S_T1}, s{S_T0}, {e*16*1152 + tt*64}")
            b(f"buffer_load_dword v{DX}, s[{S_WS}:{S_WS+3}], s{S_T1} offen sc1 lds")
    RES, ACC, FB = 64, 8, 32
    b(f"s_mul_i32 s{S_T1}, s{S_SEG}, 36864")
    for n in range(3): b(f"buffer_load_dwordx4 {v(RES+4*n,4)}, v{EG+n}, s[{S_XI}:{S_XI+3}], s{S_T1} offen sc1")
    b("s_waitcnt vmcnt(3)\ns_barrier")
    rd = lambda kk, tt: f"ds_read_b128 {v(FB + 8*(kk%2) + 4*tt,4)}, v{A1} offset:{L_XT + tt*18432 + kk*1024}"
    b(rd(0, 0)); b(rd(0, 1))
    for kk in range(18):
        for tt in range(2):
            for i in range(3):
                d = ACC + 12*tt + 4*i
                b(f"v_mfma_f32_16x16x32_bf16 {v(d,4)}, {wfrag(kk,i)}, {v(FB + 8*(kk%2) + 4*tt,4)}, {'0' if kk == 0 else v(d,4)}")
                if kk < 17 and tt == 0 and i < 2: b(rd(kk + 1, i))
    b(f"s_mul_i32 s{S_T0}, s{S_WAVE}, 6144\nv_add_u32 v{T}, s{S_T0}, v{A1}")
    for n in range(6): b(f"ds_write_b128 v{T}, {v(ACC+4*n,4)} offset:{L_ET + n*1024}")
    b("s_waitcnt lgkmcnt(0)\ns_barrier")
    for n in range(3):
        for hf in range(2): b(f"ds_read_b128 {v(8 + 8*n + 4*hf,4)}, v{EL+n} offset:{hf*256}")
    for n in range(3):
        for k in range(4):
            b(f"v_lshlrev_b32 v{T}, 16, v{RES+4*n+k}\nv_and_b32 v{T+1}, 0xffff0000, v{RES+4*n+k}")
            b(f"v_add_f32 v{T}, v{T}, v{8+8*n+2*k}\nv_add_f32 v{T+1}, v{T+1}, v{8+8*n+2*k+1}")
            b(cvt(RES + 4*n + k, T))
        b(f"buffer_store_dwordx4 {v(RES+4*n,4)}, v{EG+n}, s[{S_XO}:{S_XO+3}], s{S_T1} offen sc1")
    signal(b, S_PW, S_NEED, T, T+1)
    b(f"s_add_u32 s{S_SEG}, s{S_SEG}, 21\ns_cmp_lt_u32 s{S_SEG}, 64\ns_cbranch_scc1 L_bw_pl")
    b.label("L_bw_pe")

def emit(b, nlayers, lo=2.0**-80, hi=2.0**80):
    b.reset()
    b.label("L_bw")
    b(f"""
    s_and_b32 s{S_H}, s{S_ID}, 31
    s_lshr_b32 s{S_PAR}, s{S_ID}, 5
    s_lshl_b32 s{S_PA}, s{S_ID}, 2
    s_add_u32 s{S_PW}, s{S_PA}, {W.PROG + P_WW}
    s_add_u32 s{S_PA}, s{S_PA}, {W.PROG + P_BW}
    s_mul_i32 s{S_SG}, s{S_ID}, 21846
    s_lshr_b32 s{S_SG}, s{S_SG}, 16
    s_mul_i32 s{S_T0}, s{S_SG}, 3
    s_sub_u32 s{S_CG}, s{S_ID}, s{S_T0}
    s_mul_i32 s{S_T1}, s{S_CG}, 384
    s_mul_i32 s{S_T0}, s{S_WAVE}, 96
    s_add_u32 s{S_T1}, s{S_T1}, s{S_T0}
    s_mov_b32 s{S_LO}, {fhex(lo)}
    s_mov_b32 s{S_HI}, {fhex(hi)}
    """)
    srd(b, S_WG, PT['WO'], 576*1152)
    def main_row(r):
        b(f"v_bfe_u32 v6, v{r}, 3, 1\nv_mul_u32_u24 v6, 18, v6\nv_lshrrev_b32 v7, 4, v{r}\nv_lshl_add_u32 v6, v7, 3, v6\nv_and_b32 v{r}, 7, v{r}\nv_add_u32 v{r}, v{r}, v6")
    def extra_row(r):
        b(f"v_and_b32 v6, 12, v{r}\nv_lshrrev_b32 v7, 4, v{r}\nv_lshl_add_u32 v6, v7, 1, v6\nv_bfe_u32 v7, v{r}, 1, 1\nv_add_u32 v6, v6, v7\nv_mul_u32_u24 v6, 18, v6\nv_and_b32 v{r}, 1, v{r}\nv_add3_u32 v{r}, v{r}, v6, 16")
    ow.row96_addr(b, 8, main_row, S_T1)
    ow.row96_addr(b, 12, extra_row, S_T1)
    ow.load96(b, [(8, kk*36*1152) for kk in range(16)] + [(12, e*16*18*1152) for e in range(2)], wfrag, 16)
    for n in range(3):
        b(f"""
        v_add_u32 v8, {256*n}, v0
        v_mul_u32_u24 v9, 2731, v8
        v_lshrrev_b32 v9, 16, v9
        v_mul_u32_u24 v10, 24, v9
        v_sub_u32 v8, v8, v10
        v_mul_u32_u24 v10, 1152, v9
        v_lshl_add_u32 v10, v8, 4, v10
        s_mul_i32 s{S_T0}, s{S_CG}, 384
        v_add_u32 v{EG+n}, s{S_T0}, v10
        v_mul_u32_u24 v10, 10923, v8
        v_lshrrev_b32 v10, 16, v10
        v_mul_u32_u24 v11, 6, v10
        v_sub_u32 v8, v8, v11
        v_mul_u32_u24 v10, 6144, v10
        v_lshl_add_u32 v10, v8, 9, v10
        v_lshrrev_b32 v11, 4, v9
        v_mul_u32_u24 v11, 3072, v11
        v_and_b32 v9, 15, v9
        v_lshl_add_u32 v10, v9, 4, v10
        v_add_u32 v10, v10, v11
        v_add_u32 v{EL+n}, {L_ET}, v10
        """)
    b(f"""
    v_and_b32 v8, 63, v0
    v_lshlrev_b32 v{A1}, 4, v8
    v_and_b32 v9, 31, v8
    v_lshrrev_b32 v10, 5, v8
    v_lshlrev_b32 v11, 2, v9
    v_add_u32 v{K2B}, 1024, v11
    v_mov_b32 v12, {OOB}
    v_cmp_gt_u32 vcc, 32, v8
    v_cndmask_b32 v{OBX}, v12, v11, vcc
    v_mul_u32_u24 v11, 18, v10
    v_add_u32 v11, v11, v9
    v_lshlrev_b32 v11, 4, v11
    v_add_u32 v11, 1152, v11
    v_mov_b32 v12, {L_ONE}
    v_mov_b32 v13, 2304
    v_cmp_gt_u32 vcc, 18, v9
    v_cndmask_b32 v{VB}, v12, v11, vcc
    v_cndmask_b32 v{VS}, 0, v13, vcc
    v_lshlrev_b32 v{VS4}, 2, v{VS}
    v_mul_u32_u24 v11, 1152, v10
    v_bfe_u32 v13, v8, 4, 1
    v_lshl_add_u32 v11, v13, 9, v11
    v_and_b32 v13, 15, v8
    v_lshl_add_u32 v{DM}, v13, 4, v11
    v_and_b32 v11, 3, v8
    v_mul_u32_u24 v11, 1152, v11
    v_and_b32 v13, 60, v8
    v_add_u32 v11, v11, v13
    v_add_u32 v{DX}, 1024, v11
    v_mov_b32 v16, s{S_ONE}
    v_mov_b32 v17, s{S_ONE}
    v_mov_b32 v18, s{S_ONE}
    v_mov_b32 v19, s{S_ONE}
    ds_write_b128 v12, v[16:19]
    ds_write_b128 v12, v[16:19] offset:576
    v_mov_b32 v{K2+1}, 0
    v_mov_b32 v{QN2+1}, 0
    s_mov_b32 s{S_LAY}, 0
    """)
    for r in range(176): b(f"v_accvgpr_write_b32 a{r}, 0")
    b("s_waitcnt lgkmcnt(0)")
    srd(b, S_XI, PT['WS'], XB, W.X1); srd(b, S_XO, PT['WS'], XB, W.X2)
    wait_init(b, T, T+1)
    b.label("L_bw_layer")
    b(f"s_mov_b32 s{S_SEG}, 0")
    b.label("L_bw_loop")
    segment(b)
    truemax(b)
    b.reset()
    b.label("L_bw_next")
    b(f"s_add_u32 s{S_SEG}, s{S_SEG}, 1\ns_cmp_lt_u32 s{S_SEG}, 64\ns_cbranch_scc1 L_bw_loop")
    finish(b)
    project(b)
    b(f"s_add_u32 s{S_LAY}, s{S_LAY}, 1\ns_cmp_ge_u32 s{S_LAY}, {nlayers}\ns_cbranch_scc1 L_end")
    srd(b, S_XI, PT['WS'], XB, W.X3); srd(b, S_XO, PT['OUT'], XB)
    b("s_branch L_bw_layer")
```

```python
import struct, math
def v(b, n=1): return "v%d" % b if n == 1 else "v[%d:%d]" % (b, b+n-1)
def a(b, n=1): return "a%d" % b if n == 1 else "a[%d:%d]" % (b, b+n-1)
def s(b, n=1): return "s%d" % b if n == 1 else "s[%d:%d]" % (b, b+n-1)
def fhex(x): return hex(struct.unpack('<I', struct.pack('<f', x))[0])
def cvt(d, x): return f"v_cvt_pk_bf16_f32 v{d}, v{x}, v{x+1}"

PT = dict(X=64, MEM0=66, Q=68, K=70, V=72, O=74, WQKV=80, WO=82, OUT=84, DBG=86, WS=88)

XB = 2048*576*2
class W:
    TEAM = 0
    PROG = 0x60000
    ARCH = 0x61000
    X1 = ARCH + 2*64*9216
    X2 = X1 + XB
    X3 = X2 + XB
    OB = X3 + XB
    QB = OB + 2*XB
    QB_L = 64*32*3584
    O = QB + 2*QB_L
    O_L = 64*2*32*4096
    KV = O + 2*O_L
    KV_L = 64*32*16384
    END = KV + 2*KV_L
P_TEAM, P_HWP, P_HWF, P_OW, P_QW, P_BW, P_WW = 0, 128, 512, 896, 1152, 1408, 1664
D_T0, D_TW, D_INIT, D_SLOW, D_TB = 0, 4, 8, 12, 16

N_HW, N_OW, N_QW, N_BW = 96, 48, 16, 64
OOB = 0x40000000
TIMEOUT = 400000
LDS_BYTES = 163840

S_WAVE, S_ID = 20, 21
S_WS = 12
S_XI = 16
S_XO = 24
S_WG = 28
S_LAY, S_SEG, S_NEED = 32, 33, 38
S_T0, S_T1, S_T2, S_TO = 34, 35, 36, 37
S_ONE = 39

def srd(b, r, ptr, nbytes, off=None):
    if off is None:
        b(f"s_mov_b32 s{r}, s{ptr}\ns_mov_b32 s{r+1}, s{ptr+1}")
    else:
        b(f"s_add_u32 s{r}, s{ptr}, {off}\ns_addc_u32 s{r+1}, s{ptr+1}, 0")
    b(f"s_mov_b32 s{r+2}, {nbytes}\ns_mov_b32 s{r+3}, 0x20000")

_uid = [0]
def uid(p):
    _uid[0] += 1
    return f"L_{p}{_uid[0]}"

def wait_words(b, va, so, need, tmp, sleep=2):
    L = uid("w")
    b.label(L)
    b(f"""
    buffer_load_dword v{tmp}, v{va}, s[{S_WS}:{S_WS+3}], s{so} offen sc1
    s_add_u32 s{S_TO}, s{S_TO}, 1
    s_waitcnt vmcnt(0)
    v_cmp_gt_u32 vcc, s{need}, v{tmp}
    s_cbranch_vccz {L}_d
    s_sleep {sleep}
    s_cmp_lt_u32 s{S_TO}, {TIMEOUT}
    s_cbranch_scc1 {L}
    {L}_d:
    """)

def signal(b, so, val, t0, t1, barrier=True):
    L = uid("s")
    b("s_waitcnt vmcnt(0) lgkmcnt(0)")
    if barrier: b("s_barrier")
    b(f"""
    s_cmp_lg_u32 s{S_WAVE}, 0
    s_cbranch_scc1 {L}
    v_mov_b32 v{t0}, s{val}
    v_mov_b32 v{t1}, 0
    s_mov_b64 exec, 1
    buffer_store_dword v{t0}, v{t1}, s[{S_WS}:{S_WS+3}], s{so} offen sc1
    s_mov_b64 exec, -1
    {L}:
    """)
    b.vm = []

def wait_init(b, t0, t1):
    L = uid("i")
    b(f"v_mov_b32 v{t0}, {D_INIT}")
    b.label(L)
    b(f"""
    global_load_dword v{t1}, v{t0}, s[{PT['DBG']}:{PT['DBG']+1}] sc1
    s_add_u32 s{S_TO}, s{S_TO}, 1
    s_waitcnt vmcnt(0)
    v_cmp_gt_u32 vcc, 256, v{t1}
    s_cbranch_vccz {L}_d
    s_sleep 4
    s_cmp_lt_u32 s{S_TO}, {TIMEOUT}
    s_cbranch_scc1 {L}
    {L}_d:
    """)

def layernorm(b, raw, nfrag, T, cross16, partners, st_wr, st_rd, perm, lds_addr, lds_off):
    S, Q = T, T+1
    for i in range(4*nfrag):
        b(f"v_dot2_f32_bf16 v{S}, v{raw+i}, s{S_ONE}, {'0' if i == 0 else v(S)}")
        b(f"v_dot2_f32_bf16 v{Q}, v{raw+i}, v{raw+i}, {'0' if i == 0 else v(Q)}")
    for sw in (["16"] if cross16 else []) + ["32"]:
        b(f"v_mov_b32 v{T+2}, v{S}\nv_mov_b32 v{T+3}, v{Q}")
        b(f"v_permlane{sw}_swap_b32 v{S}, v{T+2}\nv_permlane{sw}_swap_b32 v{Q}, v{T+3}")
        b(f"v_add_f32 v{S}, v{S}, v{T+2}\nv_add_f32 v{Q}, v{Q}, v{T+3}")
    b(f"ds_write_b64 v{st_wr}, {v(S,2)}")
    b("s_waitcnt lgkmcnt(0)\ns_barrier")
    for k, off in enumerate(partners): b(f"ds_read_b64 {v(T+2*k,2)}, v{st_rd} offset:{off}")
    for k in range(1, len(partners)):
        b(f"v_add_f32 v{S}, v{S}, v{T+2*k}\nv_add_f32 v{Q}, v{Q}, v{T+2*k+1}")
    b(f"""
    v_mul_f32 v{S}, {fhex(1/576)}, v{S}
    v_mul_f32 v{T+2}, v{S}, v{S}
    v_mul_f32 v{Q}, {fhex(1/576)}, v{Q}
    v_sub_f32 v{Q}, v{Q}, v{T+2}
    v_max_f32 v{Q}, 0, v{Q}
    v_add_f32 v{Q}, {fhex(1e-5)}, v{Q}
    v_rsq_f32 v{T+2}, v{Q}
    v_mul_f32 v{S}, v{S}, v{T+2}
    v_sub_f32 v{S}, 0, v{S}
    """)
    for f in range(nfrag):
        for hlf in range(2):
            d0, d1 = raw + 4*f + 2*hlf, raw + 4*f + 2*hlf + 1
            if perm:
                b(f"v_lshlrev_b32 v{T+4}, 16, v{d0}\nv_lshlrev_b32 v{T+5}, 16, v{d1}\nv_and_b32 v{T+6}, 0xffff0000, v{d0}\nv_and_b32 v{T+7}, 0xffff0000, v{d1}")
            else:
                b(f"v_lshlrev_b32 v{T+4}, 16, v{d0}\nv_and_b32 v{T+5}, 0xffff0000, v{d0}\nv_lshlrev_b32 v{T+6}, 16, v{d1}\nv_and_b32 v{T+7}, 0xffff0000, v{d1}")
            b(f"v_pk_fma_f32 {v(T+4,2)}, {v(T+4,2)}, {v(T+2,2)}, {v(T,2)} op_sel_hi:[1,0,0]")
            b(f"v_pk_fma_f32 {v(T+6,2)}, {v(T+6,2)}, {v(T+2,2)}, {v(T,2)} op_sel_hi:[1,0,0]")
            b(cvt(d0, T+4)); b(cvt(d1, T+6))
        b(f"ds_write_b128 v{lds_addr}, {v(raw+4*f,4)} offset:{lds_off + f*1024}")
```

```python
from common import *
R = 3
L_XT, L_MT, L_KM, L_VM, L_ST, L_RING, SLOT = 0, 36864, 46080, 50176, 54272, 57344, 24576
L_W, PIECE = 16384, 36864
S_H, S_R, S_PS, S_FS, S_PSL, S_FSL, S_C = 40, 41, 42, 43, 44, 45, 46
S_PA, S_PB = 47, 48
A1, XA, MA, MD = 0, 1, 2, 3
FB, ACC, T = 8, 24, 72
def wfrag(X, i, kk):
    n = ("QKV".index(X)*9 + kk//2)*2 + i
    r = 8*n + 4*(kk % 2)
    return a(r, 4) if r < 256 else v(80 + r - 256, 4)

def load_weights(b):
    b(f"""
    v_and_b32 v24, 63, v0
    v_lshrrev_b32 v25, 4, v24
    s_lshl_b32 s{S_T0}, s{S_WAVE}, 4
    v_add_u32 v26, s{S_T0}, v25
    v_lshlrev_b32 v26, 13, v26
    s_lshl_b32 s{S_T0}, s{S_H}, 8
    v_add_u32 v26, s{S_T0}, v26
    v_lshlrev_b32 v27, 1, v25
    v_and_b32 v40, 15, v24
    v_xor_b32 v27, v27, v40
    """)
    for q in range(4):
        b(f"v_xor_b32 v41, {8*(q>>1)}, v27\nv_lshl_add_u32 v41, v41, 4, v26\nv_add_u32 v{28+q}, {4*q*8192}, v41")
    b(f"""
    v_bfe_u32 v40, v24, 2, 1       ; rp&1
    v_bfe_u32 v41, v24, 3, 1       ; rp>>1
    v_bfe_u32 v42, v24, 4, 1       ; gb&1
    v_bfe_u32 v43, v24, 5, 1       ; gb>>1
    v_and_b32 v44, 3, v24
    v_lshlrev_b32 v44, 3, v44
    v_add_u32 v44, {L_W}, v44
    v_lshl_add_u32 v46, v40, 1, v41
    v_lshl_add_u32 v45, v42, 3, v46
    v_lshl_add_u32 v45, v45, 8, v44
    v_mul_u32_u24 v47, {PIECE}, v43
    v_add_u32 v45, v45, v47
    v_lshl_add_u32 v46, v42, 2, v46      ; swizzle
    s_lshl_b32 s{S_T0}, s{S_WAVE}, 1
    v_xor_b32 v46, s{S_T0}, v46
    v_lshl_add_u32 v48, v46, 5, v45
    v_xor_b32 v46, 1, v46
    v_lshl_add_u32 v50, v46, 5, v45
    v_add_u32 v49, {2*PIECE}, v48
    v_add_u32 v51, {2*PIECE}, v50
    s_mul_i32 s{S_T2}, s{S_WAVE}, {PIECE}
    s_add_u32 s{S_T2}, s{S_T2}, {L_W}
    s_mov_b32 s{S_WG+2}, {576*8192}
    s_mov_b32 s{S_WG+3}, 0x20000
    """)
    seq = [(X, j) for X in "KVQ" for j in range(9)]
    def dma(t):
        X, j = seq[t]
        if j == 0: b(f"s_mov_b32 s{S_WG}, s{PT[X]}\ns_mov_b32 s{S_WG+1}, s{PT[X]+1}")
        b(f"s_mov_b32 s{S_T0}, {j*64*8192}")
        for q in range(4):
            b(f"s_add_u32 m0, s{S_T2}, {(t % 9)*4096 + q*1024}")
            b(f"buffer_load_dwordx4 v{28+q}, s[{S_WG}:{S_WG+3}], s{S_T0} offen lds")
    for t in range(9): dma(t)
    for t in range(27):
        X, j = seq[t]
        issued = min(27, max(9, t + 8))
        b(f"s_waitcnt vmcnt({4*(issued - t - 1)}) lgkmcnt(0)\ns_barrier")
        if t >= 1 and t + 8 < 27: dma(t + 8)
        for i in range(2):
            for hb in range(2):
                f = wfrag(X, i, 2*j + hb); k, r = f[0], int(f[2:f.index(':')])
                for aa in range(2):
                    b(f"ds_read_b64_tr_b16 {k}[{r+2*aa}:{r+2*aa+1}], v{48 + 2*i + hb} offset:{(t % 9)*4096 + aa*1024}")
    b("s_waitcnt lgkmcnt(0)\ns_barrier")

def stage_p(b):
    L = uid("hp")
    b(f"s_cmp_eq_u32 s{S_LAY}, 0\ns_cbranch_scc1 {L}")
    b(f"""
    s_mul_i32 s{S_T0}, s{S_PS}, 3121
    s_lshr_b32 s{S_T0}, s{S_T0}, 16
    s_mul_i32 s{S_T0}, s{S_T0}, 21
    s_sub_u32 s{S_T0}, s{S_PS}, s{S_T0}
    s_mul_i32 s{S_T0}, s{S_T0}, 12
    s_add_u32 s{S_T0}, s{S_T0}, {W.PROG + P_WW}
    s_add_u32 s{S_NEED}, s{S_PS}, 1
    v_lshrrev_b32 v4, 2, v{A1}
    v_min_u32 v4, 8, v4
    """)
    wait_words(b, 4, S_T0, S_NEED, 5)
    b.label(L)
    b(f"s_mul_i32 s{S_T0}, s{S_PS}, 36864")
    for i in range(9): b(f"buffer_load_dwordx4 {v(ACC+4*i,4)}, v{XA}, s[{S_XI}:{S_XI+3}], s{S_T0} offen offset:{64*i} sc1")
    b(f"""
    v_and_b32 v4, 0xf0, v{A1}
    v_lshrrev_b32 v4, 1, v4
    s_and_b32 s{S_T0}, s{S_WAVE}, 1
    s_lshl_b32 s{S_T1}, s{S_T0}, 7
    s_add_u32 s{S_T1}, s{S_T1}, {L_ST}
    v_add_u32 v5, s{S_T1}, v4
    s_lshr_b32 s{S_T1}, s{S_WAVE}, 1
    s_mul_i32 s{S_T0}, s{S_T0}, 18432
    s_mul_i32 s{S_T2}, s{S_T1}, 9216
    s_add_u32 s{S_T0}, s{S_T0}, s{S_T2}
    v_add_u32 v6, s{S_T0}, v{A1}
    s_lshl_b32 s{S_T1}, s{S_T1}, 8
    v_add_u32 v4, s{S_T1}, v5
    """)
    layernorm(b, ACC, 9, T, True, [0, 256], 4, 5, True, 6, L_XT)
    b("s_waitcnt lgkmcnt(0)\ns_barrier")
    rd = lambda kk, tt: f"ds_read_b128 {v(FB + 8*(kk%2) + 4*tt,4)}, v{A1} offset:{L_XT + tt*18432 + kk*1024}"
    b(rd(0, 0)); b(rd(0, 1))
    for kk in range(18):
        n = 0
        for X in "KVQ":
            for tt in range(2):
                for i in range(2):
                    x = v(FB + 8*(kk%2) + 4*tt, 4); wf = wfrag(X, i, kk)
                    if X == 'V': d, A, B = ACC + 32 + 8*i + 4*tt, x, wf
                    else: d, A, B = ACC + (16 if X == 'K' else 0) + 8*tt + 4*i, wf, x
                    b(f"v_mfma_f32_16x16x32_bf16 {v(d,4)}, {A}, {B}, {'0' if kk == 0 else v(d,4)}")
                    if kk < 17 and n in (0, 2): b(rd(kk + 1, n // 2))
                    n += 1
    b(f"""
    s_lshl_b32 s{S_T0}, s{S_PS}, 19
    s_lshl_b32 s{S_T1}, s{S_H}, 14
    s_add_u32 s{S_T0}, s{S_T0}, s{S_T1}
    s_lshl_b32 s{S_T1}, s{S_WAVE}, 12
    s_add_u32 s{S_T0}, s{S_T0}, s{S_T1}
    s_mul_i32 s{S_T1}, s{S_LAY}, {W.KV_L}
    s_add_u32 s{S_T0}, s{S_T0}, s{S_T1}
    s_add_u32 s{S_T0}, s{S_T0}, {W.KV}
    s_lshl_b32 s{S_T1}, s{S_WAVE}, 11
    s_add_u32 s{S_T1}, s{S_T1}, s{S_PSL}
    v_add_u32 v4, s{S_T1}, v{A1}
    """)
    for r in range(16): b(f"v_mul_f32 v{ACC+16+r}, s{S_C}, v{ACC+16+r}")
    for f in (2, 3, 4, 5, 0, 1):
        d = ACC + 8*f
        for k in range(4): b(cvt(d + k, d + 2*k))
        if f >= 2: b(f"buffer_store_dwordx4 {v(d,4)}, v{A1}, s[{S_WS}:{S_WS+3}], s{S_T0} offen offset:{(f-2)*1024} sc1")
        b(f"ds_write_b128 v4, {v(d,4)} offset:{(f//2)*8192 + (f%2)*1024}")
    b(f"s_lshl_b32 s{S_T1}, s{S_LAY}, 6\ns_add_u32 s{S_T1}, s{S_T1}, s{S_PS}\ns_add_u32 s{S_T1}, s{S_T1}, 1")
    signal(b, S_PA, S_T1, 4, 5)
    b(f"""
    s_add_u32 s{S_PS}, s{S_PS}, {R}
    s_add_u32 s{S_PSL}, s{S_PSL}, {SLOT}
    s_cmp_eq_u32 s{S_PSL}, {L_RING + 3*SLOT}
    s_cselect_b32 s{S_PSL}, {L_RING}, s{S_PSL}
    """)

def stage_f(b):
    L = uid("hf")
    b(f"""
    s_lshl_b32 s{S_NEED}, s{S_LAY}, 6
    s_add_u32 s{S_NEED}, s{S_NEED}, s{S_FS}
    s_mul_i32 s{S_T1}, s{S_NEED}, 9216
    s_add_u32 s{S_NEED}, s{S_NEED}, 1
    s_mov_b32 s{S_T0}, {W.PROG + P_TEAM}
    v_lshrrev_b32 v4, 2, v{A1}
    v_and_b32 v4, 127, v4
    """)
    wait_words(b, 4, S_T0, S_NEED, 5)
    b(f"""
    s_lshl_b32 s{S_T0}, s{S_WAVE}, 10
    s_add_u32 s{S_T1}, s{S_T1}, s{S_T0}
    s_add_u32 s{S_T1}, s{S_T1}, {W.ARCH}
    s_add_u32 m0, s{S_T0}, {L_MT}
    buffer_load_dwordx4 v{A1}, s[{S_WS}:{S_WS+3}], s{S_T1} offen sc1 lds
    s_add_u32 s{S_T1}, s{S_T1}, 4096
    s_add_u32 m0, s{S_T0}, {L_MT + 4096}
    buffer_load_dwordx4 v{A1}, s[{S_WS}:{S_WS+3}], s{S_T1} offen sc1 lds
    s_cmp_lg_u32 s{S_WAVE}, 0
    s_cbranch_scc1 {L}
    s_add_u32 s{S_T1}, s{S_T1}, 4096
    s_mov_b32 m0, {L_MT + 8192}
    buffer_load_dwordx4 v{A1}, s[{S_WS}:{S_WS+3}], s{S_T1} offen sc1 lds
    {L}:
    s_waitcnt vmcnt(0)
    s_barrier
    """)
    rd = lambda kk: f"ds_read_b128 {v(FB + 4*(kk%4),4)}, v{MA} offset:{kk*512}"
    for kk in range(3): b(rd(kk))
    for kk in range(18):
        x = v(FB + 4*(kk%4), 4)
        for n, (X, i) in enumerate([('K',0),('K',1),('V',0),('V',1)]):
            d = ACC + 4*n; wf = wfrag(X, i, kk)
            A, B = (wf, x) if X == 'K' else (x, wf)
            b(f"v_mfma_f32_16x16x32_bf16 {v(d,4)}, {A}, {B}, {'0' if kk == 0 else v(d,4)}")
            if n == 0 and kk + 3 < 18: b(rd(kk + 3))
    QF, S0, KF = 40, 56, 8
    b(f"""
    s_and_b32 s{S_T0}, s{S_WAVE}, 1
    s_lshl_b32 s{S_T0}, s{S_T0}, 10
    s_add_u32 s{S_T0}, s{S_T0}, s{S_FSL}
    v_add_u32 v4, s{S_T0}, v{A1}
    v_add_u32 v5, s{S_FSL}, v{A1}
    s_lshl_b32 s{S_T0}, s{S_WAVE}, 10
    v_add_u32 v6, s{S_T0}, v{A1}
    """)
    for wq in range(4): b(f"ds_read_b128 {v(QF+4*wq,4)}, v4 offset:{wq*2048}")
    for r in range(8): b(f"v_mul_f32 v{ACC+r}, s{S_C}, v{ACC+r}")
    for k in range(4): b(cvt(ACC + k, ACC + 2*k))
    for k in range(4): b(cvt(ACC + 8 + k, ACC + 8 + 2*k))
    b(f"ds_write_b128 v6, {v(ACC,4)} offset:{L_KM}\nds_write_b128 v6, {v(ACC+8,4)} offset:{L_VM}")
    for n in range(2):
        for wq in range(4): b(f"ds_read_b128 {v((KF if n == 0 else ACC)+4*wq,4)}, v5 offset:{8192 + wq*2048 + n*1024}")
    for n in range(2):
        for wq in range(4):
            d = S0 + 4*n
            b(f"v_mfma_f32_16x16x32_bf16 {v(d,4)}, {v((KF if n == 0 else ACC)+4*wq,4)}, {v(QF+4*wq,4)}, {'0' if wq == 0 else v(d,4)}")
    b("s_waitcnt lgkmcnt(0)\ns_barrier")
    for wq in range(4): b(f"ds_read_b128 {v(KF+4*wq,4)}, v{A1} offset:{L_KM + wq*1024}")
    b(f"""
    s_lshr_b32 s{S_T0}, s{S_WAVE}, 1
    s_lshl_b32 s{S_T1}, s{S_T0}, 12
    v_add_u32 v5, s{S_T1}, v5
    s_lshl_b32 s{S_T1}, s{S_T0}, 11
    v_add_u32 v6, s{S_T1}, v{A1}
    """)
    for k in range(4): b(f"ds_read_b128 {v(ACC+4*k,4)}, v5 offset:{16384 + k*1024}")
    for wq in range(4):
        d = S0 + 8
        b(f"v_mfma_f32_16x16x32_bf16 {v(d,4)}, {v(KF+4*wq,4)}, {v(QF+4*wq,4)}, {'0' if wq == 0 else v(d,4)}")
    for k in range(2): b(f"ds_read_b128 {v(KF+4*k,4)}, v6 offset:{L_VM + k*1024}")
    b(f"v_mov_b32 v7, 0xff800000")
    for n in range(2):
        for r in range(4):
            b(f"v_cmp_le_i32 vcc, {16*n + r}, v{MD}\nv_cndmask_b32 v{S0+4*n+r}, v7, v{S0+4*n+r}, vcc")
    b(f"v_cmp_gt_u32 vcc, 512, v{A1}")
    for r in range(4): b(f"v_cndmask_b32 v{S0+8+r}, v7, v{S0+8+r}, vcc")
    M = T
    b(f"v_max3_f32 v{M}, v{S0}, v{S0+1}, v{S0+2}")
    for r in range(3, 11, 2): b(f"v_max3_f32 v{M}, v{M}, v{S0+r}, v{S0+r+1}")
    b(f"v_max_f32 v{M}, v{M}, v{S0+11}")
    for sw in ("16", "32"):
        b(f"v_mov_b32 v{M+1}, v{M}\nv_permlane{sw}_swap_b32 v{M}, v{M+1}\nv_max_f32 v{M}, v{M}, v{M+1}")
    for r in range(12): b(f"v_sub_f32 v{S0+r}, v{S0+r}, v{M}")
    for r in range(12): b(f"v_exp_f32 v{S0+r}, v{S0+r}")
    b(f"v_add_f32 v{M}, v{S0}, v{S0+1}")
    for r in range(2, 12): b(f"v_add_f32 v{M}, v{M}, v{S0+r}")
    for sw in ("16", "32"):
        b(f"v_mov_b32 v{M+1}, v{M}\nv_permlane{sw}_swap_b32 v{M}, v{M+1}\nv_add_f32 v{M}, v{M}, v{M+1}")
    b(f"v_rcp_f32 v{M}, v{M}")
    for r in range(12): b(f"v_mul_f32 v{S0+r}, v{S0+r}, v{M}")
    for k in range(6): b(cvt(S0 + k, S0 + 2*k))
    OD = QF
    for k in range(4): b(f"v_mfma_f32_16x16x32_bf16 {v(OD+4*k,4)}, {v(ACC+4*k,4)}, {v(S0,4)}, 0")
    for k in range(4): b(f"v_mfma_f32_16x16x16_bf16 {v(OD+4*k,4)}, {v(KF+2*k,2)}, {v(S0+4,2)}, {v(OD+4*k,4)}")
    b(f"""
    s_lshl_b32 s{S_T0}, s{S_FS}, 1
    s_and_b32 s{S_T1}, s{S_WAVE}, 1
    s_add_u32 s{S_T0}, s{S_T0}, s{S_T1}
    s_lshl_b32 s{S_T0}, s{S_T0}, 5
    s_add_u32 s{S_T0}, s{S_T0}, s{S_H}
    s_lshl_b32 s{S_T0}, s{S_T0}, 12
    s_lshr_b32 s{S_T1}, s{S_WAVE}, 1
    s_lshl_b32 s{S_T1}, s{S_T1}, 11
    s_add_u32 s{S_T0}, s{S_T0}, s{S_T1}
    s_mul_i32 s{S_T1}, s{S_LAY}, {W.O_L}
    s_add_u32 s{S_T0}, s{S_T0}, s{S_T1}
    s_add_u32 s{S_T0}, s{S_T0}, {W.O}
    """)
    for f in range(2):
        d = OD + 8*f
        for k in range(4): b(cvt(d + k, d + 2*k))
        b(f"buffer_store_dwordx4 {v(d,4)}, v{A1}, s[{S_WS}:{S_WS+3}], s{S_T0} offen offset:{f*1024} sc1")
    signal(b, S_PB, S_NEED, 4, 5)
    b(f"""
    s_add_u32 s{S_FS}, s{S_FS}, {R}
    s_add_u32 s{S_FSL}, s{S_FSL}, {SLOT}
    s_cmp_eq_u32 s{S_FSL}, {L_RING + 3*SLOT}
    s_cselect_b32 s{S_FSL}, {L_RING}, s{S_FSL}
    """)

def emit(b, nlayers):
    b.reset()
    b.label("L_hw")
    b(f"""
    s_and_b32 s{S_H}, s{S_ID}, 31
    s_lshr_b32 s{S_R}, s{S_ID}, 5
    s_lshl_b32 s{S_PA}, s{S_ID}, 2
    s_add_u32 s{S_PB}, s{S_PA}, {W.PROG + P_HWF}
    s_add_u32 s{S_PA}, s{S_PA}, {W.PROG + P_HWP}
    s_mov_b32 s{S_C}, {fhex(128**-0.5 * math.log2(math.e))}
    """)
    load_weights(b)
    b(f"""
    v_and_b32 v24, 63, v0
    v_lshlrev_b32 v{A1}, 4, v24
    v_and_b32 v25, 15, v24
    v_lshrrev_b32 v26, 4, v24
    s_and_b32 s{S_T0}, s{S_WAVE}, 1
    s_lshl_b32 s{S_T0}, s{S_T0}, 4
    v_add_u32 v27, s{S_T0}, v25
    v_lshlrev_b32 v28, 2, v26
    v_sub_u32 v{MD}, v27, v28
    v_mul_u32_u24 v27, 1152, v27
    v_lshl_add_u32 v27, v26, 4, v27
    s_lshr_b32 s{S_T0}, s{S_WAVE}, 1
    s_mul_i32 s{S_T0}, s{S_T0}, 576
    v_add_u32 v{XA}, s{S_T0}, v27
    v_and_b32 v27, 7, v25
    v_lshlrev_b32 v27, 5, v27
    v_lshrrev_b32 v28, 1, v26
    v_lshl_add_u32 v27, v28, 8, v27
    v_and_b32 v28, 1, v26
    v_lshl_add_u32 v27, v28, 4, v27
    v_add_u32 v{MA}, {L_MT}, v27
    s_mov_b32 s{S_LAY}, 0
    """)
    srd(b, S_XI, PT['X'], XB)
    wait_init(b, 4, 5)
    b.label("L_hw_layer")
    b(f"s_mov_b32 s{S_PS}, s{S_R}\ns_mov_b32 s{S_FS}, s{S_R}\ns_mov_b32 s{S_PSL}, {L_RING}\ns_mov_b32 s{S_FSL}, {L_RING}")
    b.label("L_hw_loop")
    b(f"s_cmp_ge_u32 s{S_PS}, 64\ns_cbranch_scc1 L_hw_f")
    stage_p(b)
    b(f"s_sub_u32 s{S_T0}, s{S_PS}, s{S_FS}\ns_cmp_lt_u32 s{S_T0}, {2*R}\ns_cbranch_scc1 L_hw_loop")
    b.label("L_hw_f")
    stage_f(b)
    b(f"s_cmp_lt_u32 s{S_FS}, 64\ns_cbranch_scc1 L_hw_loop")
    b(f"s_add_u32 s{S_LAY}, s{S_LAY}, 1\ns_cmp_ge_u32 s{S_LAY}, {nlayers}\ns_cbranch_scc1 L_end")
    srd(b, S_XI, PT['WS'], XB, W.X2)
    b("s_branch L_hw_layer")
```

```python
from common import *
S_GRP, S_TT, S_CG, S_PA, S_OO = 40, 41, 42, 43, 44
A1, XA, RA = 0, 1, 2
ACC, FB = 8, 24
NF = 24
def wfrag(kk, i):
    r = 4*(kk*3 + i)
    return a(r, 4) if r < 256 else v(128 + r - 256, 4)

def row96_addr(b, dst, rowf, col_s):
    for q in range(3):
        b(f"""
        v_and_b32 v4, 63, v0
        v_add_u32 v4, {64*q}, v4
        v_mul_u32_u24 v5, 10923, v4
        v_lshrrev_b32 v5, 16, v5
        v_mul_u32_u24 v6, 6, v5
        v_sub_u32 v4, v4, v6
        """)
        rowf(5)
        b(f"v_mul_u32_u24 v5, 1152, v5\nv_lshl_add_u32 v5, v4, 4, v5\nv_add_u32 v{dst+q}, s{col_s}, v5")

def load96(b, steps, frag, rd):
    b(f"""
    s_mul_i32 s{S_T2}, s{S_WAVE}, 36864
    v_and_b32 v4, 63, v0
    v_lshrrev_b32 v5, 2, v4
    v_mul_u32_u24 v5, 96, v5
    v_and_b32 v4, 3, v4
    v_lshl_add_u32 v5, v4, 3, v5
    v_add_u32 v{rd}, s{S_T2}, v5
    """)
    n = len(steps)
    def dma(t):
        ad, so = steps[t]
        b(f"s_mov_b32 s{S_T0}, {so}")
        for q in range(3):
            b(f"s_add_u32 m0, s{S_T2}, {(t % 12)*3072 + q*1024}")
            b(f"buffer_load_dwordx4 v{ad+q}, s[{S_WG}:{S_WG+3}], s{S_T0} offen lds")
    for t in range(min(12, n)): dma(t)
    for t in range(n):
        issued = min(n, max(12, t + 11))
        b(f"s_waitcnt vmcnt({3*(issued - t - 1)}) lgkmcnt(0)")
        if t >= 1 and t + 11 < n: dma(t + 11)
        for i in range(3):
            f = frag(t, i); k, r = f[0], int(f[2:f.index(':')])
            for aa in range(2):
                b(f"ds_read_b64_tr_b16 {k}[{r+2*aa}:{r+2*aa+1}], v{rd} offset:{(t % 12)*3072 + aa*1536 + i*32}")
    b("s_waitcnt lgkmcnt(0)\ns_barrier")

def emit(b, nlayers):
    b.reset()
    b.label("L_ow")
    b(f"""
    s_cmp_ge_u32 s{S_ID}, 24
    s_cselect_b32 s{S_GRP}, 1, 0
    s_mul_i32 s{S_T0}, s{S_GRP}, 24
    s_sub_u32 s{S_T0}, s{S_ID}, s{S_T0}
    s_lshl_b32 s{S_PA}, s{S_GRP}, 5
    s_add_u32 s{S_PA}, s{S_PA}, s{S_T0}
    s_lshl_b32 s{S_PA}, s{S_PA}, 2
    s_add_u32 s{S_PA}, s{S_PA}, {W.PROG + P_OW}
    s_cmp_ge_u32 s{S_T0}, 12
    s_cselect_b32 s{S_TT}, 1, 0
    s_mul_i32 s{S_T1}, s{S_TT}, 12
    s_sub_u32 s{S_CG}, s{S_T0}, s{S_T1}
    s_mul_i32 s{S_T1}, s{S_CG}, 96
    s_mul_i32 s{S_T0}, s{S_WAVE}, {1024*1152}
    s_add_u32 s{S_T1}, s{S_T1}, s{S_T0}
    """)
    srd(b, S_WG, PT['O'], 4096*1152)
    row96_addr(b, 8, lambda r: None, S_T1)
    load96(b, [(8, kk*32*1152) for kk in range(32)], wfrag, 12)
    b(f"""
    v_mul_u32_u24 v5, 10923, v0
    v_lshrrev_b32 v5, 16, v5
    v_mul_u32_u24 v6, 6, v5
    v_sub_u32 v4, v0, v6
    v_lshrrev_b32 v6, 1, v4
    v_lshlrev_b32 v6, 10, v6
    v_and_b32 v7, 1, v4
    v_lshl_add_u32 v6, v7, 9, v6
    v_lshl_add_u32 v{RA}, v5, 4, v6
    s_lshl_b32 s{S_T0}, s{S_TT}, 4
    v_add_u32 v5, s{S_T0}, v5
    v_mul_u32_u24 v5, 1152, v5
    v_lshl_add_u32 v5, v4, 4, v5
    s_mul_i32 s{S_T0}, s{S_CG}, 96
    v_add_u32 v5, s{S_T0}, v5
    v_mov_b32 v6, {OOB}
    v_cmp_gt_u32 vcc, 96, v0
    v_cndmask_b32 v{XA}, v6, v5, vcc
    v_and_b32 v4, 63, v0
    v_lshlrev_b32 v{A1}, 4, v4
    s_mov_b32 s{S_LAY}, 0
    """)
    srd(b, S_XI, PT['X'], XB); srd(b, S_XO, PT['WS'], XB, W.X1)
    wait_init(b, 4, 5)
    b.label("L_ow_layer")
    b(f"s_mov_b32 s{S_SEG}, s{S_GRP}")
    b.label("L_ow_loop")
    b(f"""
    s_lshl_b32 s{S_NEED}, s{S_LAY}, 6
    s_add_u32 s{S_NEED}, s{S_NEED}, s{S_SEG}
    s_lshl_b32 s{S_OO}, s{S_NEED}, 1
    s_add_u32 s{S_OO}, s{S_OO}, s{S_TT}
    s_lshl_b32 s{S_OO}, s{S_OO}, 2
    s_add_u32 s{S_OO}, s{S_OO}, s{S_WAVE}
    s_lshl_b32 s{S_OO}, s{S_OO}, 15
    s_add_u32 s{S_OO}, s{S_OO}, {W.O}
    s_add_u32 s{S_NEED}, s{S_NEED}, 1
    s_mul_i32 s{S_T0}, s{S_SEG}, 21846
    s_lshr_b32 s{S_T0}, s{S_T0}, 16
    s_mul_i32 s{S_T0}, s{S_T0}, 3
    s_sub_u32 s{S_T0}, s{S_SEG}, s{S_T0}
    s_lshl_b32 s{S_T0}, s{S_T0}, 7
    s_lshl_b32 s{S_T1}, s{S_WAVE}, 5
    s_add_u32 s{S_T0}, s{S_T0}, s{S_T1}
    s_add_u32 s{S_T0}, s{S_T0}, {W.PROG + P_HWF}
    v_lshrrev_b32 v4, 2, v{A1}
    v_and_b32 v4, 31, v4
    """)
    wait_words(b, 4, S_T0, S_NEED, 5)
    def ld(kk):
        if kk and kk % 4 == 0: b(f"s_add_u32 s{S_OO}, s{S_OO}, 4096")
        b(f"buffer_load_dwordx4 {v(FB + 4*(kk % NF),4)}, v{A1}, s[{S_WS}:{S_WS+3}], s{S_OO} offen offset:{(kk % 4)*1024} sc1")
    for kk in range(NF): ld(kk)
    for kk in range(32):
        for i in range(3):
            d = ACC + 4*i
            b(f"v_mfma_f32_16x16x32_bf16 {v(d,4)}, {wfrag(kk,i)}, {v(FB + 4*(kk % NF),4)}, {'0' if kk == 0 else v(d,4)}")
        if kk + NF < 32: ld(kk + NF)
        if kk == 8:
            b(f"s_mul_i32 s{S_T1}, s{S_SEG}, 36864")
            b(f"buffer_load_dwordx4 v[20:23], v{XA}, s[{S_XI}:{S_XI+3}], s{S_T1} offen sc1")
    b(f"s_mul_i32 s{S_T0}, s{S_WAVE}, 3072\nv_add_u32 v4, s{S_T0}, v{A1}")
    for i in range(3): b(f"ds_write_b128 v4, {v(ACC+4*i,4)} offset:{i*1024}")
    b("s_waitcnt lgkmcnt(0)\ns_barrier")
    b(f"s_cmp_ge_u32 s{S_WAVE}, 2\ns_cbranch_scc1 L_ow_sig")
    for w in range(4):
        for hf in range(2): b(f"ds_read_b128 {v(FB + 8*w + 4*hf,4)}, v{RA} offset:{w*3072 + hf*256}")
    for k in range(4):
        b(f"v_lshlrev_b32 v{ACC+2*k}, 16, v{20+k}\nv_and_b32 v{ACC+2*k+1}, 0xffff0000, v{20+k}")
    for w in range(1, 4):
        for r in range(8): b(f"v_add_f32 v{FB+r}, v{FB+r}, v{FB+8*w+r}")
    for r in range(8): b(f"v_add_f32 v{FB+r}, v{FB+r}, v{ACC+r}")
    for k in range(4): b(cvt(FB + k, FB + 2*k))
    b(f"buffer_store_dwordx4 {v(FB,4)}, v{XA}, s[{S_XO}:{S_XO+3}], s{S_T1} offen sc1")
    b.label("L_ow_sig")
    signal(b, S_PA, S_NEED, 4, 5)
    b(f"s_add_u32 s{S_SEG}, s{S_SEG}, 2\ns_cmp_lt_u32 s{S_SEG}, 64\ns_cbranch_scc1 L_ow_loop")
    b(f"s_add_u32 s{S_LAY}, s{S_LAY}, 1\ns_cmp_ge_u32 s{S_LAY}, {nlayers}\ns_cbranch_scc1 L_end")
    srd(b, S_XI, PT['WS'], XB, W.X2); srd(b, S_XO, PT['WS'], XB, W.X3)
    b("s_branch L_ow_layer")
```

```python
from common import *
S_GRP, S_HH, S_PA, S_C = 40, 41, 42, 43
A1, XA, VA, K2A = 0, 1, 2, 3
FB, ACC, T = 8, 24, 72
L_XT, L_ST = 0, 36864
def wfrag(m, kk):
    r = 4*(m*36 + kk)
    return a(r, 4) if r < 256 else v(80 + r - 256, 4)

def emit(b, nlayers):
    b.reset()
    b.label("L_qw")
    b(f"""
    s_lshr_b32 s{S_GRP}, s{S_ID}, 3
    s_and_b32 s{S_T0}, s{S_ID}, 7
    s_lshl_b32 s{S_PA}, s{S_GRP}, 5
    s_add_u32 s{S_PA}, s{S_PA}, s{S_T0}
    s_lshl_b32 s{S_PA}, s{S_PA}, 2
    s_add_u32 s{S_PA}, s{S_PA}, {W.PROG + P_QW}
    s_lshl_b32 s{S_HH}, s{S_T0}, 2
    s_add_u32 s{S_HH}, s{S_HH}, s{S_WAVE}
    s_mov_b32 s{S_C}, {fhex(18**-0.5 * math.log2(math.e))}
    v_and_b32 v24, 63, v0
    v_lshrrev_b32 v25, 4, v24
    v_mul_u32_u24 v25, 3456, v25
    v_and_b32 v26, 15, v24
    v_lshl_add_u32 v25, v26, 2, v25
    s_mul_i32 s{S_T0}, s{S_HH}, 36
    v_add_u32 v25, s{S_T0}, v25
    v_mov_b32 v27, {OOB}
    v_cmp_gt_u32 vcc, 9, v26
    v_cndmask_b32 v8, v27, v25, vcc
    v_bfe_u32 v25, v24, 2, 2
    v_lshrrev_b32 v26, 5, v24
    v_lshl_add_u32 v25, v26, 3, v25
    v_lshlrev_b32 v25, 6, v25
    v_bfe_u32 v26, v24, 4, 1
    v_lshl_add_u32 v25, v26, 5, v25
    v_and_b32 v26, 3, v24
    v_lshl_add_u32 v25, v26, 3, v25
    s_lshl_b32 s{S_T2}, s{S_WAVE}, 14
    v_add_u32 v9, s{S_T2}, v25
    """)
    srd(b, S_WG, PT['WQKV'], 576*3456)
    seq = [(m, kk) for m in range(3) for kk in range(36)]
    n, D = len(seq), 15
    def dma(t):
        m, kk = seq[t]
        for q in range(4):
            b(f"s_mov_b32 s{S_T0}, {(16*kk + 4*q)*3456 + m*1152}")
            b(f"s_add_u32 m0, s{S_T2}, {(t % 16)*1024 + q*256}")
            b(f"buffer_load_dword v8, s[{S_WG}:{S_WG+3}], s{S_T0} offen lds")
    for t in range(D): dma(t)
    for t in range(n):
        issued = min(n, t + D)
        b(f"s_waitcnt vmcnt({4*(issued - t - 1)}) lgkmcnt(0)")
        if t + D < n: dma(t + D)
        f = wfrag(*seq[t]); k, r = f[0], int(f[2:f.index(':')])
        for aa in range(2): b(f"ds_read_b64_tr_b16 {k}[{r+2*aa}:{r+2*aa+1}], v9 offset:{(t % 16)*1024 + aa*256}")
    b("s_waitcnt lgkmcnt(0)\ns_barrier")
    b(f"""
    v_lshlrev_b32 v{A1}, 4, v24
    v_and_b32 v25, 31, v24
    v_lshrrev_b32 v26, 5, v24
    v_mul_u32_u24 v27, 1152, v25
    v_lshl_add_u32 v27, v26, 4, v27
    s_mul_i32 s{S_T0}, s{S_WAVE}, 288
    v_add_u32 v{XA}, s{S_T0}, v27
    v_mul_u32_u24 v27, 18, v26
    v_add_u32 v27, v27, v25
    v_lshlrev_b32 v27, 4, v27
    v_mov_b32 v28, {OOB}
    v_cmp_gt_u32 vcc, 18, v25
    v_cndmask_b32 v{VA}, v28, v27, vcc
    v_lshlrev_b32 v27, 2, v24
    v_cmp_gt_u32 vcc, 32, v24
    v_cndmask_b32 v{K2A}, v28, v27, vcc
    s_mov_b32 s{S_LAY}, 0
    """)
    srd(b, S_XI, PT['WS'], XB, W.X1)
    wait_init(b, 4, 5)
    b.label("L_qw_layer")
    b(f"s_mov_b32 s{S_SEG}, s{S_GRP}")
    b.label("L_qw_loop")
    b(f"""
    s_lshl_b32 s{S_NEED}, s{S_LAY}, 6
    s_add_u32 s{S_NEED}, s{S_NEED}, s{S_SEG}
    s_add_u32 s{S_NEED}, s{S_NEED}, 1
    s_lshl_b32 s{S_T0}, s{S_GRP}, 7
    s_add_u32 s{S_T0}, s{S_T0}, {W.PROG + P_OW}
    v_lshrrev_b32 v4, 2, v{A1}
    v_min_u32 v4, 92, v4
    """)
    wait_words(b, 4, S_T0, S_NEED, 5)
    b(f"s_mul_i32 s{S_T0}, s{S_SEG}, 36864")
    for i in range(9): b(f"buffer_load_dwordx4 {v(ACC+4*i,4)}, v{XA}, s[{S_XI}:{S_XI+3}], s{S_T0} offen offset:{32*i} sc1")
    b(f"""
    v_and_b32 v5, 0x1f0, v{A1}
    v_lshrrev_b32 v5, 1, v5
    v_add_u32 v5, {L_ST}, v5
    s_lshl_b32 s{S_T0}, s{S_WAVE}, 8
    v_add_u32 v4, s{S_T0}, v5
    s_mul_i32 s{S_T0}, s{S_WAVE}, 9216
    v_add_u32 v6, s{S_T0}, v{A1}
    """)
    layernorm(b, ACC, 9, T, False, [0, 256, 512, 768], 4, 5, False, 6, L_XT)
    b("s_waitcnt lgkmcnt(0)\ns_barrier")
    rd = lambda kk: f"ds_read_b128 {v(FB + 4*(kk%4),4)}, v{A1} offset:{L_XT + kk*1024}"
    for kk in range(3): b(rd(kk))
    for kk in range(36):
        x = v(FB + 4*(kk%4), 4)
        for m in range(3):
            d = ACC + 16*m
            A, B = (wfrag(m, kk), x) if m < 2 else (x, wfrag(m, kk))
            b(f"v_mfma_f32_32x32x16_bf16 {v(d,16)}, {A}, {B}, {'0' if kk == 0 else v(d,16)}")
            if m == 0 and kk + 3 < 36: b(rd(kk + 3))
    b(f"""
    s_sub_u32 s{S_T0}, s{S_NEED}, 1
    s_lshl_b32 s{S_T0}, s{S_T0}, 5
    s_add_u32 s{S_T0}, s{S_T0}, s{S_HH}
    s_mul_i32 s{S_T0}, s{S_T0}, 3584
    s_add_u32 s{S_T0}, s{S_T0}, {W.QB}
    v_lshrrev_b32 v4, 2, v{A1}
    """)
    st = lambda n, r, ad, off: f"buffer_store_dword{'x4' if n == 4 else ''} {v(r,n)}, v{ad}, s[{S_WS}:{S_WS+3}], s{S_T0} offen offset:{off} sc1"
    for r in range(10): b(f"v_mul_f32 v{ACC+r}, s{S_C}, v{ACC+r}")
    for k in range(5): b(cvt(ACC + k, ACC + 2*k))
    b(st(4, ACC, A1, 2304)); b(st(1, ACC+4, 4, 3328))
    for k in range(5): b(cvt(ACC + 16 + k, ACC + 16 + 2*k))
    b(st(4, ACC+16, A1, 0)); b(st(1, ACC+20, K2A, 1024))
    for k in range(8): b(cvt(ACC + 32 + k, ACC + 32 + 2*k))
    b(st(4, ACC+32, VA, 1152)); b(st(4, ACC+36, VA, 1728))
    signal(b, S_PA, S_NEED, 4, 5)
    b(f"s_add_u32 s{S_SEG}, s{S_SEG}, 2\ns_cmp_lt_u32 s{S_SEG}, 64\ns_cbranch_scc1 L_qw_loop")
    b(f"s_add_u32 s{S_LAY}, s{S_LAY}, 1\ns_cmp_ge_u32 s{S_LAY}, {nlayers}\ns_cbranch_scc1 L_end")
    srd(b, S_XI, PT['WS'], XB, W.X3)
    b("s_branch L_qw_layer")
```

```python
from asmb import Asm
import common as C

PART_BYTES = 5*4*32*512
MEMX_SLOT = 9216
class Lay:
    PART = 0
    MEMX = PART_BYTES
    FLAG = MEMX + 3*MEMX_SLOT
    END = FLAG + 4096
assert Lay.END <= C.W.PROG
KV_BYTES = 64*32*16384

L_MEM = 0
L_SX = 9216
L_SM = 13312
L_O = 14336
L_DUMMY = 163840
L_W = 16384
PIECE = 36864
LDS_BYTES = 163840

CH = (0,1,2,3,8,4,5,6,7)
POS = {c: k for k, c in enumerate(CH)}
ORDER = ["Q0","K0","Q1","K1","Q2","K2","Q3","K3","Q8","K8","Q4","Q5","Q6","Q7","K4","K5","K6","K7",
         "V4","V5","V6","V7","V0","V1","V2","V3","V8"] + ["O%d" % i for i in (0,1,2,3,8,4,5,6,7)]
LDS_STAGES = ["Q0","Q2","K3","Q6","K6","V8","O0","O8","O7"]
REG_STAGES = [s for s in ORDER if s not in LDS_STAGES]
def wreg(n):
    if n < 32: return "a[%d:%d]" % (8*n, 8*n+7), ('a', 8*n)
    b = 80 + 8*(n-32)
    return "v[%d:%d]" % (b, b+7), ('v', b)
WOP = {}
for i, s in enumerate(REG_STAGES):
    WOP[(s,0)] = wreg(2*i); WOP[(s,1)] = wreg(2*i+1)
for s in LDS_STAGES:
    WOP[(s,0)] = ("v[8:15]", ('v', 8)); WOP[(s,1)] = ("v[16:23]", ('v', 16))

A1, A2, IDX, TMP, SEL, AD0, AD1 = 0, 1, 2, 3, 4, 6, 7
RING, VX, QA, KA, KX, T1, T2 = 24, 40, 48, 56, 64, 72, 76
PR, FA = T1, T1+2
def v(b, n=1): return "v%d" % b if n == 1 else "v[%d:%d]" % (b, b+n-1)

S_WS, S_KV = 12, 16
S_WAVE, S_HEAD = 20, 21
S_STEP, S_TAG = 22, 23
S_PST = 24
S_NEED = 25
S_PS2 = 26
S_RLD = 27
S_RST = 28
S_MNEXT, S_MCUR = 29, 30
S_KVO = 31
S_C = 32
S_H288 = 33
S_XM = 58
S_FB = 52
S_QM = 56
S_PG = 8
S_PT = 48
S_LAY, S_BARN = 9, 10
S_GF = 11
S_AR = 44
S_T0, S_T1, S_T2 = 34, 35, 36
S_TO = 37
S_BND = 38
S_ONE = 39
S_FL = 40
NREP = 1
S_W = 40
TIMEOUT = 400000
import struct, math
SCALE_HEX = hex(struct.unpack('<I', struct.pack('<f', 128**-0.5 * math.log2(math.e)))[0])

def prologue_weights(b, ptr_regs):
    LANE = 24
    b(f"v_and_b32 v{LANE}, 63, v0")
    b(f"""
    v_lshrrev_b32 v25, 4, v{LANE}
    s_lshl_b32 s{S_T0}, s{S_WAVE}, 4
    v_add_u32 v26, s{S_T0}, v25
    v_lshlrev_b32 v26, 13, v26
    s_lshl_b32 s{S_T0}, s{S_HEAD}, 8
    v_add_u32 v26, s{S_T0}, v26
    v_and_b32 v27, 2, v25
    v_and_b32 v40, 15, v{LANE}
    v_xor_b32 v27, v27, v40
    """)
    for q in range(4):
        b(f"""
        v_xor_b32 v41, {4*q}, v27
        v_lshlrev_b32 v41, 4, v41
        v_add_u32 v41, v41, v26
        v_add_u32 v{28+q}, {4*q*8192}, v41
        """)
    b(f"""
    v_lshrrev_b32 v25, 3, v{LANE}
    s_lshl_b32 s{S_T0}, s{S_WAVE}, 5
    v_add_u32 v26, s{S_T0}, v25
    v_mul_u32_u24 v26, 1152, v26
    s_mul_i32 s{S_T0}, s{S_HEAD}, 147456
    v_add_u32 v26, s{S_T0}, v26
    v_lshrrev_b32 v27, 5, v{LANE}
    v_lshlrev_b32 v27, 1, v27
    v_and_b32 v40, 7, v{LANE}
    v_xor_b32 v27, v27, v40
    """)
    for q in range(4):
        b(f"""
        v_xor_b32 v41, {4*(q>>1)}, v27
        v_lshlrev_b32 v41, 4, v41
        v_add_u32 v41, v41, v26
        v_add_u32 v{32+q}, {8*q*1152}, v41
        """)
    b(f"""
    v_bfe_u32 v40, v{LANE}, 2, 1       ; rp&1
    v_bfe_u32 v41, v{LANE}, 3, 1       ; rp>>1
    v_bfe_u32 v42, v{LANE}, 4, 1       ; gb&1
    v_bfe_u32 v43, v{LANE}, 5, 1       ; gb>>1
    v_and_b32 v44, 3, v{LANE}          ; cc
    v_lshlrev_b32 v44, 3, v44
    v_add_u32 v44, {L_W}, v44
    v_lshl_add_u32 v46, v42, 1, v40
    v_lshl_add_u32 v46, v41, 2, v46
    v_lshl_add_u32 v45, v46, 9, v44
    v_mul_u32_u24 v47, {PIECE}, v43
    v_add_u32 v45, v45, v47
    s_lshl_b32 s{S_T0}, s{S_WAVE}, 1
    v_xor_b32 v46, s{S_T0}, v46
    v_lshl_add_u32 v48, v46, 5, v45    ; (i=0,hb=0)
    v_xor_b32 v46, 1, v46
    v_lshl_add_u32 v50, v46, 5, v45    ; (i=1,hb=0)
    v_add_u32 v49, {2*PIECE}, v48
    v_add_u32 v51, {2*PIECE}, v50
    v_lshlrev_b32 v45, 4, v42
    v_lshl_add_u32 v45, v43, 3, v45
    v_lshl_add_u32 v45, v41, 2, v45
    v_add_u32 v45, v45, v40
    v_lshl_add_u32 v45, v45, 7, v44
    v_lshl_add_u32 v46, v42, 1, v41
    v_xor_b32 v46, s{S_WAVE}, v46
    v_lshl_add_u32 v52, v46, 5, v45    ; (kappa=0,hb=0)
    v_add_u32 v53, {PIECE}, v52
    v_add_u32 v54, {2*PIECE}, v52
    v_add_u32 v55, {3*PIECE}, v52
    s_mul_i32 s{S_T2}, s{S_WAVE}, {PIECE}
    s_add_u32 s{S_T2}, s{S_T2}, {L_W}
    v_lshlrev_b32 v{A2}, 4, v{LANE}
    v_add_u32 v{A2}, s{S_T2}, v{A2}
    s_mov_b32 s{S_W+2}, {576*8192}
    s_mov_b32 s{S_W+3}, 0x20000
    """)
    seq = REG_STAGES + LDS_STAGES
    cur = [None]
    def dma(t):
        s = seq[t]; X, j = s[0], int(s[1]); reg = t % 9
        if cur[0] != X:
            b(f"s_mov_b32 s{S_W}, s{ptr_regs[X]}\ns_mov_b32 s{S_W+1}, s{ptr_regs[X]+1}"); cur[0] = X
        b(f"s_mov_b32 s{S_T0}, {j*64*8192 if X != 'O' else j*128}")
        for q in range(4):
            b(f"s_add_u32 m0, s{S_T2}, {reg*4096 + q*1024}")
            b(f"buffer_load_dwordx4 v{(28 if X != 'O' else 32)+q}, s[{S_W}:{S_W+3}], s{S_T0} offen lds")
    def wb(t):
        reg = t % 9; base = 56 if t % 2 == 0 else 8
        for k in range(4):
            b(f"ds_write_b128 v{A2}, v[{base+4*k}:{base+4*k+3}] offset:{reg*4096 + k*1024}")
    for t in range(9): dma(t)
    for t in range(36):
        s = seq[t]; X = s[0]; reg = t % 9
        issued = min(36, max(9, t + 8))
        b(f"s_waitcnt vmcnt({4*(issued - t - 1)}) lgkmcnt(0)")
        b("s_barrier")
        if t >= 1 and t + 8 < 36: dma(t + 8)
        if t - 1 >= 27: wb(t - 1)
        for op in range(2):
            if t < 27: kind, base = WOP[(s, op)][1]
            else: kind, base = 'v', (56 if t % 2 == 0 else 8) + 8*op
            for hb in range(2):
                for a in range(2):
                    r = base + 4*hb + 2*a
                    if X != 'O': ad, off = 48 + 2*op + hb, reg*4096 + a*256
                    else: ad, off = 52 + 2*op + hb, reg*4096 + a*256
                    b(f"ds_read_b64_tr_b16 {kind}[{r}:{r+1}], v{ad} offset:{off}")
    b("s_waitcnt lgkmcnt(0)\ns_barrier")
    wb(35)
    b("s_waitcnt lgkmcnt(0)")

def consts(b):
    b(f"""
    v_and_b32 v24, 63, v0
    v_lshlrev_b32 v{A1}, 4, v24
    v_and_b32 v25, 1, v24
    v_mov_b32 v{IDX}, 0x4444
    v_mov_b32 v26, 0xeeee
    v_cmp_eq_u32 vcc, 1, v25
    v_cndmask_b32 v{IDX}, v{IDX}, v26, vcc
    ; Sel16
    v_bfe_u32 v26, v24, 2, 2
    v_lshrrev_b32 v27, 4, v24
    v_cmp_eq_u32 vcc, v26, v27
    v_mov_b32 v28, 0x3f803f80
    v_cndmask_b32 v28, 0, v28, vcc
    v_cmp_eq_u32 vcc, 1, v25
    v_cndmask_b32 v{SEL}, v28, 0, vcc
    v_cndmask_b32 v{SEL+1}, 0, v28, vcc
    v_and_b32 v{AD0}, 0xffffffdf, v{A1}
    v_lshlrev_b32 v28, 6, v26
    v_lshl_add_u32 v28, v25, 5, v28
    v_bfe_u32 v29, v24, 4, 1
    v_lshl_add_u32 v28, v29, 4, v28
    v_bfe_u32 v29, v24, 5, 1
    v_lshl_add_u32 v28, v29, 8, v28
    s_lshl_b32 s{S_T0}, s{S_WAVE}, 9
    s_add_u32 s{S_T0}, s{S_T0}, {L_O}
    v_add_u32 v29, s{S_T0}, v28
    v_add_u32 v28, {L_DUMMY}, v28
    v_bfe_u32 v30, v24, 1, 1
    v_cmp_eq_u32 vcc, 1, v30
    v_cndmask_b32 v{AD1}, v29, v28, vcc
    """)

def set_lds_stages(lst):
    global LDS_STAGES, REG_STAGES
    LDS_STAGES = list(lst)
    assert [x for x in ORDER if x in LDS_STAGES] == LDS_STAGES and len(LDS_STAGES) == 9
    REG_STAGES = [x for x in ORDER if x not in LDS_STAGES]
    WOP.clear()
    for i, x in enumerate(REG_STAGES):
        WOP[(x,0)] = wreg(2*i); WOP[(x,1)] = wreg(2*i+1)
    for x in LDS_STAGES:
        WOP[(x,0)] = ("v[8:15]", ('v', 8)); WOP[(x,1)] = ("v[16:23]", ('v', 16))

class Loop:
    def __init__(self, b, w, st, P):
        self.b, self.w, self.st, self.P = b, w, st, P
        self.slow = []
        self.bg = []
        self.sfx = f"_{P['name']}_w{w}"
    def slot(self, shadow):
        if self.bg and not any(x.startswith("ds_") for x in shadow):
            self.b(self.bg.pop(0))
        for x in shadow: self.b(x)
    def smf(self, stage, op, acc, mem, *shadow):
        if stage in LDS_STAGES:
            assert not any(f"v[{8+8*op}:" in x or f"v[{12+8*op}:" in x for x in self.bg), (stage, self.bg)
        assert not any(x.startswith(f"ds_read_b128 v[{mem}:") for x in self.bg), (stage, self.bg)
        self.b(f"v_smfmac_f32_16x16x64_bf16 {v(acc,4)}, {v(mem,4)}, {WOP[(stage,op)][0]}, v{IDX}")
        if stage in LDS_STAGES:
            nx = (LDS_STAGES.index(stage) + 1) % 9
            self.bg += [self.wread(nx, op, hf) for hf in range(2)]
        self.slot(shadow)
    def mf(self, text, *shadow):
        self.b(text); self.slot(shadow)
    def wread(self, st, op, hf):
        off = st*4096 + op*2048 + hf*1024
        if self.w == 0: return f"ds_read_b128 {v(8+8*op+4*hf,4)}, v{A1} offset:{L_W + off}"
        return f"ds_read_b128 {v(8+8*op+4*hf,4)}, v{A2} offset:{off}"
    def memreg(self, j, vphase=False):
        j = POS[j]
        if vphase and j < 5: return RING + 4*((j + 1) % 4)
        return RING + 4*(j % 4)
    def rdmem(self, j, vphase=False):
        return f"ds_read_b128 {v(self.memreg(j, vphase),4)}, v{A1} offset:{L_MEM + j*1024}"
    def dma_group(self, b, g):
        b(f"s_mov_b32 m0, {L_MEM + g*4096}")
        b(f"s_add_u32 s{S_T0}, s{S_MNEXT}, {g*4096}")
        for n in range(4 if g < 2 else 1):
            b(f"buffer_load_dwordx4 v{A1}, s[{S_WS}:{S_WS+3}], s{S_T0} offen offset:{n*1024} sc1 lds")
    def stamp(self, i):
        if self.P.get("dump") == i:
            b = self.b
            b.join()
            b(f"s_lshl_b32 s{S_T0}, s{S_HEAD}, 2\ns_add_u32 s{S_T0}, s{S_T0}, s{S_WAVE}\ns_mul_i32 s{S_T0}, s{S_T0}, 20480")
            b(f"s_add_u32 s{S_T0}, s{S_T0}, {32*16384*8}")
            for r in range(20):
                b(f"buffer_store_dwordx4 {v(4*r,4)}, v{A1}, s[{S_KV}:{S_KV+3}], s{S_T0} offen")
                b(f"s_add_u32 s{S_T0}, s{S_T0}, 1024")
            b(f"s_branch {self.P['exit']}")
        if self.P.get("stamp"):
            sl = self.P.get("stamps", [0,1,2,3,4,5,6,7,8])
            if i in sl:
                k = sl.index(i)
                self.b.raw(f"    {'s_memrealtime' if self.P.get('rt') else 's_memtime'} s[{64+2*k}:{65+2*k}]")
    def kvstep(self):
        b, P = self.b, self.P
        b(f"s_add_u32 s{S_KVO}, s{S_KVO}, {32*16384}")
        if P.get("kvfix"): b(f"s_and_b32 s{S_KVO}, s{S_KVO}, {32*16384-1}")
    def kvload(self, i):
        return f"buffer_load_dwordx4 {v((KX, KX+4, VX, VX+4)[i],4)}, v{A1}, s[{S_KV}:{S_KV+3}], s{S_KVO} offen offset:{1024*i} sc1"
    def probe(self, b, g):
        if not self.P.get("nocomm") and not self.P.get("noprobe"):
            b(f"buffer_load_dword v{PR+g}, v{FA+g}, s[{S_WS}:{S_WS+3}], s{S_MNEXT} offen sc1")
    def round(self, b, g):
        self.probe(b, g)
        self.dma_group(b, g)
        if g == 0: self.dma_group(b, 2)
    def probe_check(self, g):
        if self.P.get("nocomm") or self.P.get("noprobe") or self.w != 3: return [], []
        lab = f"L_pr{g}{self.sfx}"
        def slow(sb):
            sb.label(lab + "_slow")
            self.round(sb, g)
            sb(f"""
            s_add_u32 s63, s63, {1 << (16*g)}
            s_add_u32 s{S_TO}, s{S_TO}, 1
            s_cmp_gt_u32 s{S_TO}, {TIMEOUT}
            s_cbranch_scc1 {lab}_ok
            v_cmp_eq_u32 vcc, -1, v{PR+g}
            s_cbranch_vccnz {lab}_slow
            """)
            if g: sb("s_waitcnt vmcnt(0)")
            sb(f"s_branch {lab}_ok")
        self.slow.append(slow)
        return [f"v_cmp_eq_u32 vcc, -1, v{PR+g}"], [f"s_cbranch_vccnz {lab}_slow", lab + "_ok:"]
    def head(self):
        b, w, P = self.b, self.w, self.P
        self.kvstep()
        z = [f"v_mov_b64 {v(QA+2*i,2)}, 0" for i in range(8)]
        nc = P.get("nocomm")
        if w == 3:
            for x in z: b(x)
            if not nc:
                NP = P.get("npoll", 4)
                lab = f"L_pl{self.sfx}"
                GA = RING + 8
                b(f"v_mov_b32 v{GA+1}, s{S_TAG}")
                b.nop(P["d2"][0] // 4)
                b(f"buffer_store_dword v{GA+1}, v{A1}, s[{S_FL}:{S_FL+3}], 0 offen {self.st}")
                b(f"""
                v_lshrrev_b32 v{GA}, 2, v{A1}
                v_and_b32 v{GA}, 127, v{GA}
                v_and_b32 v{FA}, 0xf0, v{A1}
                v_lshlrev_b32 v{FA}, 2, v{FA}
                v_add_u32 v{GA+3}, {8192 + 60}, v{FA}
                v_bfe_u32 v{GA+2}, v{A1}, 8, 1
                v_lshl_add_u32 v{FA}, v{GA+2}, 11, v{FA}
                v_cmp_gt_u32 vcc, 512, v{A1}
                v_add_u32 v{FA+1}, {4096 + 1024 + 60}, v{FA}
                v_add_u32 v{FA}, {1024 + 60}, v{FA}
                v_cndmask_b32 v{FA}, v{GA+3}, v{FA}, vcc
                """)
                b.nop(P.get("lead", 0) // 4)
                ld = lambda i: f"    buffer_load_dword v{RING+i}, v{GA}, s[{S_WS}:{S_WS+3}], s{S_GF} offen sc1"
                for i in range(NP):
                    b.raw(ld(i))
                    if i < NP - 1: b.nop(P.get("pgap", 8))
                b.label(lab)
                for i in range(NP):
                    b.raw(f"    s_waitcnt vmcnt({NP-1})")
                    b.raw(f"    v_cmp_gt_u32 vcc, s{S_TAG}, v{RING+i}")
                    b.raw(ld(i))
                    b.raw(f"    s_cbranch_vccz {lab}_o")
                b(f"s_add_u32 s60, s60, 1\ns_add_u32 s{S_TO}, s{S_TO}, 1\ns_cmp_lt_u32 s{S_TO}, {TIMEOUT}\ns_cbranch_scc1 {lab}")
                b.raw(".p2align 3")
                b.label(lab + "_o")
                b.vm = []
            self.stamp(9)
            self.round(b, 0)
            c, br = self.probe_check(0)
            for x in c + br: b(x)
            b(f"s_mov_b32 m0, {L_MEM + (4+w)*1024}\ns_add_u32 s{S_T0}, s{S_MNEXT}, {(4+w)*1024}")
            b(f"s_waitcnt vmcnt({3 if P.get('split') else 0})")
        else:
            b("s_waitcnt vmcnt(0)")
            if w == 0 and P.get("mega"): b(f"v_cmp_gt_u32 vcc, s{S_NEED}, v{A2}")
            for x in z: b(x)
            if w == 0 and P.get("mega"):
                lab = f"L_kw{self.sfx}"
                b(f"s_cbranch_vccnz {lab}")
                b.label(lab + "_ok")
                b(f"s_add_u32 s{S_PG}, s{S_PG}, 128\ns_sub_u32 s{S_T0}, s{S_PG}, 384\ns_cmp_ge_u32 s{S_T0}, {C.W.PROG + C.P_HWP}\ns_cselect_b32 s{S_PG}, s{S_T0}, s{S_PG}")
                def slow(sb):
                    sb.label(lab)
                    sb(f"""
                    buffer_load_dword v{A2}, off, s[{S_WS}:{S_WS+3}], s{S_PG} sc1
                    s_add_u32 s{S_TO}, s{S_TO}, 1
                    s_cmp_gt_u32 s{S_TO}, {TIMEOUT}
                    s_waitcnt vmcnt(0)
                    s_cbranch_scc1 {lab}_ok
                    v_cmp_gt_u32 vcc, s{S_NEED}, v{A2}
                    s_cbranch_vccnz {lab}
                    s_branch {lab}_ok
                    """)
                self.slow.append(slow)
            b(f"s_mov_b32 m0, {L_MEM + (4+w)*1024}\ns_add_u32 s{S_T0}, s{S_MNEXT}, {(4+w)*1024}")
        self.stamp(8)
        b("s_waitcnt lgkmcnt(0)\ns_barrier")
    def body(self):
        b, w, P = self.b, self.w, self.P
        smf, mr, rd = self.smf, self.memreg, self.rdmem
        sfx = self.sfx
        b.label(f"L_pa{sfx}")
        self.stamp(0)
        mf = self.mf
        b(rd(0))
        if w == 3: self.probe(b, 1)
        b(rd(1))
        b(f"buffer_load_dwordx4 v{A1}, s[{S_WS}:{S_WS+3}], s{S_T0} offen sc1 lds")
        kv = self.kvload
        nc = 1 if P.get("nocomm") else 0
        cvt = lambda d, a: f"v_cvt_pk_bf16_f32 v{d}, v{a}, v{a+1}"
        seq = [(X, j, op) for X, j in [(x[0], int(x[1])) for x in ORDER[:14]] for op in range(2)]
        sh = [[] for _ in seq]
        pb1 = P.get("pb1", 15)
        kvs = [P.get("kv0", 1) + 4*i + w for i in range(4)]
        for i in range(4): sh[kvs[i]].append(kv(i))
        c, br = self.probe_check(1)
        sh[pb1-2] += c; sh[pb1-1] += br
        sh[pb1] += [f"s_waitcnt vmcnt({sum(k <= pb1 for k in kvs)})", "s_barrier"]
        if P.get("split"):
            p0 = P["split"]
            if w == 3: sh[p0] += [f"s_waitcnt vmcnt({(1 if nc or P.get('noprobe') else 2) + sum(k <= p0 for k in kvs)})"]
            sh[p0] += ["s_barrier"]
            sh[p0+1].insert(0, rd(2)); sh[p0+3].insert(0, rd(3)); sh[p0+4].insert(0, rd(8))
        else:
            sh[2].insert(0, rd(2)); sh[5].insert(0, rd(3)); sh[7].insert(0, rd(8))
        sh[pb1+1].insert(0, rd(4)); sh[pb1+3].insert(0, rd(5)); sh[pb1+5].insert(0, rd(6)); sh[pb1+7].insert(0, rd(7))
        if w == 0 and P.get("touch", 1):
            t = kvs[3] + 4
            sh[t] += [f"s_add_u32 s{S_T1}, s{S_KVO}, {32*16384*P.get('touch',1)}", f"v_lshlrev_b32 v{A2}, 3, v{A1}"]
            sh[t+1] += [f"buffer_load_dword v{A2}, v{A2}, s[{S_KV}:{S_KV+3}], s{S_T1} offen ; nowait"]
            sh[t+2] += [f"s_add_u32 s{S_T1}, s{S_T1}, 8192"]
            sh[t+3] += [f"buffer_load_dword v{A2}, v{A2}, s[{S_KV}:{S_KV+3}], s{S_T1} offen ; nowait"]
            if P.get("mega"): sh[t+5] += [f"buffer_load_dword v{A2}, off, s[{S_WS}:{S_WS+3}], s{S_PG} sc1 ; nowait"]
        if w == 3 and P.get("mega"):
            sh[22] += [f"s_sub_u32 s{S_T1}, s{S_NEED}, 1"]
            sh[23] += [f"v_mov_b32 v{T2}, s{S_T1}"]
            sh[24] += [f"buffer_store_dword v{T2}, v{A1}, s[{S_PT}:{S_PT+3}], 0 offen sc1"]
        for (X, j, op), shd in zip(seq, sh):
            smf(f"{X}{j}", op, (QA if X == 'Q' else KA) + 4*op, mr(j), *shd)
        self.stamp(14)
        K = [(f"K{j}", op, KA + 4*op, mr(j)) for j in CH[5:] for op in range(2)]
        def k1(*sh): smf(*K.pop(0), *sh)
        k1(cvt(T1, QA))
        k1(cvt(T1+1, QA+2))
        mf(f"v_mfma_f32_16x16x16_bf16 {v(QA,4)}, {v(T1,2)}, {v(SEL,2)}, 0", cvt(T1+2, QA+4), cvt(T1+3, QA+6))
        k1()
        mf(f"v_mfma_f32_16x16x16_bf16 {v(QA+4,4)}, {v(T1+2,2)}, {v(SEL,2)}, 0",
           *([f"ds_read_b128 {v(T1,4)}, v{TMP} offset:{L_MEM}"] if w == 3 else []), cvt(T2, QA), cvt(T2+1, QA+2))
        k1(f"v_cmp_u_f32 vcc, v{QA}, v{QA}")
        k1(cvt(T2+2, QA+4))
        k1(*([] if nc else [f"s_cbranch_vccnz L_redo{sfx}"]), f"L_noredo{sfx}:", cvt(T2+3, QA+6))
        k1(f"s_cmp_eq_u32 s{S_STEP}, {P['nstep']}", f"v_mov_b64 {v(QA,2)}, 0")
        k1(*([f"buffer_store_dwordx4 {v(T1,4)}, v{A1}, s[{S_AR}:{S_AR+3}], 0 offen sc1"] if w == 3 else []), f"s_cbranch_scc1 {P['exit']}", f"v_mov_b64 {v(QA+2,2)}, 0")
        assert not K
        mf(f"v_mfma_f32_16x16x32_bf16 {v(KX,4)}, {v(KX,4)}, {v(T2,4)}, 0", cvt(T1, KA), cvt(T1+1, KA+2))
        mf(f"v_mfma_f32_16x16x32_bf16 {v(KX+4,4)}, {v(KX+4,4)}, {v(T2,4)}, 0", cvt(T1+2, KA+4), cvt(T1+3, KA+6))
        def redo(sb):
            sb.label(f"L_redo{sfx}")
            sb(f"""
            s_add_u32 s61, s61, 1
            s_add_u32 s{S_TO}, s{S_TO}, 64
            s_cmp_gt_u32 s{S_TO}, {TIMEOUT}
            s_cbranch_scc1 L_noredo{sfx}
            s_waitcnt vmcnt(0) lgkmcnt(0)
            s_barrier
            """)
            if w < 3: self.dma_group(sb, w)
            if w == 3: sb(f"v_mov_b32 v{FA+1}, 4096")
            sb(f"s_mov_b32 m0, {L_MEM + (4+w)*1024}\ns_add_u32 s{S_T0}, s{S_MNEXT}, {(4+w)*1024}")
            sb.nop(8)
            for i in range(8): sb(f"v_mov_b64 {v(QA+2*i,2)}, 0")
            for op in range(2):
                for hf in range(2):
                    sb(self.wread(0, op, hf))
            sb(f"s_waitcnt vmcnt(0) lgkmcnt(0)\ns_barrier\ns_branch L_pa{sfx}")
        self.slow.append(redo)
        self.stamp(1)
        V = [(f"V{j}", op, QA + 4*op, mr(j, True)) for j in CH[5:] + CH[:5] for op in range(2)]
        nv = [0]
        def v1(*sh):
            nv[0] += 1
            x = V.pop(0)
            b(f"v_smfmac_f32_16x16x64_bf16 {v(x[2],4)}, {v(x[3],4)}, {WOP[(x[0],x[1])][0]}, v{IDX}")
            assert not any(y.startswith(f"ds_read_b128 v[{x[3]}:") for y in self.bg), (x, self.bg)
            if x[0] in LDS_STAGES:
                self.bg += [self.wread((LDS_STAGES.index(x[0]) + 1) % 9, x[1], hf) for hf in range(2)]
            if nv[0] in (2, 4, 6, 8, 10): self.bg.insert(0 if not self.bg or "v[8" in self.bg[0] else len(self.bg), rd(CH[nv[0]//2 - 1], True))
            self.slot(sh)
        sel = lambda r: f"v_cndmask_b32 v{KX+r}, v{KX+r}, v{KX+4+r}, s[{S_XM}:{S_XM+1}]"
        mf(f"v_mfma_f32_16x16x16_bf16 {v(KA,4)}, {v(T1,2)}, {v(SEL,2)}, 0", f"v_mov_b64 {v(QA+4,2)}, 0", f"v_mov_b64 {v(QA+6,2)}, 0")
        mf(f"v_mfma_f32_16x16x16_bf16 {v(KA+4,4)}, {v(T1+2,2)}, {v(SEL,2)}, 0", sel(0), sel(1))
        b(sel(2)); b(sel(3))
        v1(f"ds_write_b128 v{A1}, {v(KX,4)} offset:{L_SX + w*1024}", cvt(T1, KA), cvt(T1+1, KA+2), cvt(T1+2, KA+4), cvt(T1+3, KA+6))
        v1(f"s_mov_b32 s{S_MCUR}, s{S_MNEXT}", f"s_add_u32 s{S_MNEXT}, s{S_MNEXT}, {MEMX_SLOT}")
        mf(f"v_mfma_f32_16x16x32_bf16 {v(KA,4)}, {v(T1,4)}, {v(T2,4)}, 0", f"s_add_u32 s{S_STEP}, s{S_STEP}, 1", f"s_add_u32 s{S_TAG}, s{S_TAG}, 1", f"s_add_u32 s{S_NEED}, s{S_NEED}, 1")
        v1(f"s_cmp_eq_u32 s{S_MNEXT}, {Lay.MEMX + 3*MEMX_SLOT}", f"s_cselect_b32 s{S_MNEXT}, {Lay.MEMX}, s{S_MNEXT}")
        v1(f"ds_write_b64 v{AD0}, {v(KA,2)} offset:{L_SM + (w>>1)*32 + (w&1)*8}")
        b(f"s_waitcnt lgkmcnt(2)\ns_barrier")
        others = [KA+4, T1, T2]
        X = [KX if i == w else others.pop(0) for i in range(4)]
        xr = [f"ds_read_b128 {v(X[i],4)}, v{A1} offset:{L_SX + i*1024}" for i in range(4)]
        own = xr.pop(w)
        MR = [KX+4, KA]
        mrd = [f"ds_read_b128 {v(MR[i],4)}, v{AD0} offset:{L_SM + i*32}" for i in range(2)]
        SX, SM = X[0], MR[0]
        addx = [f"v_add_f32 v{X[0]+r}, v{X[0]+r}, v{X[1]+r}" for r in range(4)] + \
               [f"v_add_f32 v{X[2]+r}, v{X[2]+r}, v{X[3]+r}" for r in range(4)] + \
               [f"v_add_f32 v{X[0]+r}, v{X[0]+r}, v{X[2]+r}" for r in range(4)]
        addm = [f"v_add_f32 v{SM+r}, v{SM+r}, v{MR[1]+r}" for r in range(4)] + \
               [f"v_add_f32 v{SM+r}, v{SM+r}, v{SM+2+r}" for r in range(2)] + \
               [f"v_mul_f32 v{SM+r}, s{S_C}, v{SM+r}" for r in range(2)]
        v1(xr[0]); v1(xr[1]); v1(xr[2])
        for _ in range(P.get("vb", 1)): v1()
        b(f"s_waitcnt lgkmcnt({b.lg_after('ds_write')})\ns_barrier")
        self.stamp(2)
        b(mrd[0])
        MX = X[1]
        val = addx + [f"v_max3_f32 v{MX}, abs(v{SX}), abs(v{SX+1}), abs(v{SX+2})"] + addm + \
              [f"v_max3_f32 v{MX}, v{MX}, abs(v{SX+3}), abs(v{SM})", f"v_max_f32 v{MX}, v{MX}, abs(v{SM+1})",
               f"v_cmp_lt_f32 vcc, s{S_BND}, v{MX}"]
        per = P.get("per", 2)
        first = [[mrd[1]]] + ([[f"s_add_u32 s{S_AR}, s{S_AR}, 9216"], [f"s_addc_u32 s{S_AR+1}, s{S_AR+1}, 0"]] if w == 3 else [])
        while V:
            v1(*(first.pop(0) if first else []), *val[:per]); val = val[per:]
        for x in val: b(x)
        ex = [SX, SX+1, SX+2, SX+3, SM, SM+1]
        for r in ex:
            b(f"v_exp_f32 v{r}, v{r}")
            if self.bg: b(self.bg.pop(0))
        b(f"s_cbranch_vccnz L_max{sfx}")
        b.label(f"L_maxback{sfx}")
        def truemax(sb):
            sb.label(f"L_max{sfx}")
            for x in xr + [own] + mrd + addx + addm: sb(x)
            M, M2 = MX, MX+1
            sb(f"""
            v_max3_f32 v{M}, v{SX}, v{SX+1}, v{SX+2}
            v_max3_f32 v{M2}, v{SX+3}, v{SM}, v{SM+1}
            v_max_f32 v{M}, v{M}, v{M2}
            v_max_f32_dpp v{M}, v{M}, v{M} quad_perm:[2,3,0,1] row_mask:0xf bank_mask:0xf
            v_mov_b32 v{M2}, v{M}
            v_permlane16_swap_b32 v{M}, v{M2}
            v_max_f32 v{M}, v{M}, v{M2}
            v_mov_b32 v{M2}, v{M}
            v_permlane32_swap_b32 v{M}, v{M2}
            v_max_f32 v{M}, v{M}, v{M2}
            """)
            for r in ex: sb(f"v_sub_f32 v{r}, v{r}, v{M}")
            for r in ex: sb(f"v_exp_f32 v{r}, v{r}")
            sb(f"s_add_u32 s62, s62, 1\ns_waitcnt lgkmcnt(0)\ns_branch L_maxback{sfx}")
        self.slow.append(truemax)
        b(cvt(T1, SX)); b(cvt(T1+1, SX+2))
        b(f"v_cvt_pk_bf16_f32 v{T2}, v{SM}, v{SM}")
        b(f"v_mov_b32_dpp v{T1+2}, v{T1} quad_perm:[2,3,0,1] row_mask:0xf bank_mask:0xf")
        b(f"v_mov_b32_dpp v{T1+3}, v{T1+1} quad_perm:[2,3,0,1] row_mask:0xf bank_mask:0xf")
        b(f"v_cvt_pk_bf16_f32 v{T2+1}, v{SM+1}, v{SM+1}")
        assert not self.bg
        VM, ONE, ONEM, LS = RING, RING+4, RING+8, 60
        b(cvt(VM, QA))
        self.stamp(3)
        b(f"v_mfma_f32_16x16x32_bf16 {v(KA,4)}, {v(VX,4)}, {v(T1,4)}, 0")
        b(cvt(VM+1, QA+2)); b(cvt(VM+2, QA+4))
        b(f"v_mfma_f32_16x16x32_bf16 {v(KA+4,4)}, {v(VX+4,4)}, {v(T1,4)}, 0")
        b(cvt(VM+3, QA+6)); b(f"v_mov_b32 v{ONE}, s{S_ONE}")
        b(f"v_mfma_f32_16x16x16_bf16 {v(KA,4)}, {v(VM,2)}, {v(T2,2)}, {v(KA,4)}")
        b(f"v_mov_b32 v{ONE+1}, s{S_ONE}\nv_mov_b32 v{ONE+2}, s{S_ONE}")
        b(f"v_mfma_f32_16x16x16_bf16 {v(KA+4,4)}, {v(VM+2,2)}, {v(T2,2)}, {v(KA+4,4)}")
        b(f"v_mov_b32 v{ONE+3}, s{S_ONE}\nv_mov_b32 v{ONEM}, 0x3f80\nv_mov_b32 v{ONEM+1}, 0x3f80")
        for i in range(4): b(cvt(QA+i, KA+2*i))
        b(f"ds_write_b128 v{AD1}, {v(QA,4)}")
        OA = 24
        b(f"v_mfma_f32_16x16x32_bf16 {v(LS,4)}, {v(T1,4)}, {v(ONE,4)}, 0")
        gb = w == 3 and not nc and P.get("gb", 1)
        zz = [f"v_mov_b64 {v(OA+2*i,2)}, 0" for i in range(5, 5 + P.get("z1", 9))]
        if gb:
            zz = [f"v_mov_b32 v{T2+2}, s{S_TAG}"] + zz + [f"v_lshrrev_b32 v{T2+3}, 2, v{A1}", f"v_and_b32 v{T2+3}, 127, v{T2+3}"]
        gprobe = lambda i, a=T2+3: f"buffer_load_dword v{RING+i}, v{a}, s[{S_WS}:{S_WS+3}], s{S_GF} offen offset:128 sc1"
        for x in zz: b(x)
        for _ in range(P.get("f0", 0)): b(f"v_mov_b32 v{T2+2}, 0")
        b(f"v_mfma_f32_16x16x16_bf16 {v(LS,4)}, {v(T2,2)}, {v(ONEM,2)}, {v(LS,4)}")
        b("s_waitcnt lgkmcnt(0)\ns_barrier")
        self.stamp(4)
        b(f"ds_read_b128 {v(KX,4)}, v{A1} offset:{L_O}")
        b(f"v_mov_b64 {v(OA,2)}, 0")
        b(f"ds_read_b128 {v(KX+4,4)}, v{A1} offset:{L_O+1024}")
        for i in list(range(1, 5)) + list(range(5 + P.get("z1", 9), 18)): b(f"v_mov_b64 {v(OA+2*i,2)}, 0")
        PM, PA = LS+2, LS+3
        b(f"v_cndmask_b32 v{PM}, 0, 1, s[{S_QM}:{S_QM+1}]")
        b(f"v_lshrrev_b32 v{PA}, 1, v{A1}")
        b(f"v_rcp_f32 v{LS}, v{LS}\nv_rcp_f32 v{LS+1}, v{LS+1}")
        RL, RD, SEL32, RA, RS = 24, 40, 44, TMP, 65
        TL = (0,1,2,3,8,4,5,6,7)
        def post(m):
            n = TL[m]; a = OA + 4*m; d = T1 + n % 8
            r = [f"v_add_f32 v{a}, v{a}, v{a+1}", f"v_add_f32 v{a+2}, v{a+2}, v{a+3}",
                 f"v_mul_f32 v{a}, v{a}, v{LS}", f"v_mul_f32 v{a+2}, v{a+2}, v{LS+1}"]
            if n % 2: return r + [f"v_cvt_pk_bf16_f32 v{d}, v{a}, v{a+2}"]
            return r + [f"v_cvt_pk_bf16_f32 v{a}, v{a}, v{a+2}", f"v_bfi_b32 v{d}, v{PM}, s{S_TAG}, v{a}"]
        def store(k):
            so = S_PST if k == 0 else S_PS2
            nxt = {0: 1, 1: 4, 4: 2, 2: 3}.get(k)
            return [f"buffer_store_dwordx2 {v(T1 + (2*k if k < 4 else 0), 2)}, v{PA}, s[{S_WS}:{S_WS+3}], s{so} offen {self.st}"] + \
                   ([f"s_add_u32 s{S_PS2}, s{S_PST}, {65536*nxt}"] if nxt else [])
        rload = lambda n, R=RL: f"buffer_load_dwordx4 {v(R+4*n,4)}, v{RA}, s[{S_WS}:{S_WS+3}], s{S_RLD} offen offset:{n*512} sc1"
        O = [(f"O{TL[m]}", op, OA + 4*m, KX + 4*op) for m in range(9) for op in range(2)]
        p = [post(m) for m in range(9)]
        sh = [[] for _ in range(18)]
        sp = P.get("sp", 3)
        stg = P.get("stg", [0, 0, 1, 1])[w]
        for m in range(7):
            sh[2*m+3] += p[m][:sp]; sh[2*m+4] += p[m][sp:]
        for k, pos in ((0, 7), (1, 11), (4, 13), (2, 17)):
            pos = min(17, pos + stg); sh[pos] = store(k) + sh[pos]
        if gb:
            gp = P.get("gp", [10, 13, 16])
            sh[P.get("gf", 5)].insert(0, f"buffer_store_dword v{T2+2}, v{A1}, s[{S_FB}:{S_FB+3}], 0 offen {self.st}")
            for i in range(3): sh[gp[i]].insert(0, gprobe(i))
            sh[17] += p[7] + [f"v_cmp_gt_u32 vcc, s{S_TAG}, v{RING}"] + p[8] + store(3) + [f"s_cbranch_vccnz L_gb{sfx}", f"L_gbok{sfx}:"]
            after = lambda i: sum(x.startswith("buffer_") for k in range(gp[i], 18) for x in sh[k]) - 1
            def gslow(sb):
                GA = RING + 4
                sb.label(f"L_gb{sfx}")
                sb(f"v_lshrrev_b32 v{GA}, 2, v{A1}\nv_and_b32 v{GA}, 127, v{GA}")
                sb.raw("    " + gprobe(0, GA))
                sb(f"s_add_u32 s62, s62, 65536\ns_waitcnt vmcnt({after(1) + 1})\nv_cmp_gt_u32 vcc, s{S_TAG}, v{RING+1}")
                sb.raw("    " + gprobe(1, GA))
                sb(f"s_cbranch_vccz L_gbok{sfx}")
                sb(f"s_add_u32 s62, s62, 65536\ns_waitcnt vmcnt({after(2) + 2})\nv_cmp_gt_u32 vcc, s{S_TAG}, v{RING+2}")
                sb.raw("    " + gprobe(2, GA))
                sb(f"s_cbranch_vccz L_gbok{sfx}")
                sb.label(f"L_gbl{sfx}")
                for i in range(3):
                    sb(f"s_add_u32 s62, s62, 65536\ns_waitcnt vmcnt(2)\nv_cmp_gt_u32 vcc, s{S_TAG}, v{RING+i}")
                    sb.raw("    " + gprobe(i, GA))
                    sb(f"s_cbranch_vccz L_gbok{sfx}")
                sb(f"s_add_u32 s{S_TO}, s{S_TO}, 1\ns_cmp_lt_u32 s{S_TO}, {TIMEOUT}\ns_cbranch_scc1 L_gbl{sfx}\ns_branch L_gbok{sfx}")
            self.slow.append(gslow)
        else:
            sh[17] += p[7] + p[8] + store(3)
        r0 = P.get("r0s", [18, 18, 18, 18])[w]
        if r0 < 18 and not nc:
            for n in range(4): sh[min(17, r0 + n)].insert(0, rload(n))
        for i in range(18):
            smf(*O[i], *sh[i])
            self.stamp(20 + i)
        if not nc and P.get("gb", 1): b("s_barrier")
        tailbg, self.bg = self.bg, []
        if nc or w == 3:
            for x in tailbg: b(x)
        self.stamp(5)
        if P.get("nocomm") or w == 3:
            self.stamp(7)
            return
        if w < 3:
            def setup():
                if w != 2:
                    for x in tailbg: b(x)
                b(f"""
                v_bfe_u32 v66, v{A1}, 4, 4
                v_mov_b32 v67, 0x3f80
                v_and_b32 v69, 1, v66
                v_lshlrev_b32 v70, 4, v69
                v_lshlrev_b32 v67, v70, v67
                v_lshrrev_b32 v68, 1, v66
                v_cmp_eq_u32 vcc, 0, v68
                v_cmp_eq_u32 s[{S_T0}:{S_T0+1}], 1, v68
                v_bfe_u32 v70, v66, 1, 1
                v_cndmask_b32 v{SEL32}, 0, v67, vcc
                v_cndmask_b32 v{SEL32+1}, 0, v67, s[{S_T0}:{S_T0+1}]
                v_cmp_eq_u32 vcc, 2, v68
                v_cmp_eq_u32 s[{S_T0}:{S_T0+1}], 3, v68
                v_lshlrev_b32 v70, 10, v70
                v_cndmask_b32 v{SEL32+2}, 0, v67, vcc
                v_cndmask_b32 v{SEL32+3}, 0, v67, s[{S_T0}:{S_T0+1}]
                v_lshl_add_u32 v70, v69, 5, v70
                v_and_b32 v69, {10 if w == 2 else 8}, v66
                v_cmp_eq_u32 vcc, 0, v69
                v_and_b32 v69, 4, v66
                v_add_u32 v70, v70, v69
                v_bfe_u32 v69, v{A1}, 8, 1
                v_lshl_add_u32 v68, v69, 4, v70
                v_lshrrev_b32 v69, 9, v{A1}
                v_lshl_add_u32 v68, v69, 3, v68
                v_mov_b32 v69, 0x40000000
                v_cndmask_b32 v{RS}, v69, v68, vcc
                v_mov_b32 v70, -1
                v_mov_b32 v64, s{S_TAG}
                s_add_u32 s{S_T0}, s{S_RST}, s{S_MNEXT}
                s_add_u32 s{S_T1}, s{S_RST}, s{S_MCUR}
                """)
            flag = f"buffer_store_byte v64, v71, s[{S_FL}:{S_FL+3}], 0 offen {self.st}"
            if w == 2:
                for x in tailbg: b(x)
            if w == 2: b(f"s_cmp_ge_u32 s{S_HEAD}, 16\ns_cbranch_scc1 L_redend{sfx}")
            pre = P.get("pre", [0, 1, 0])[w]
            two = P.get("two", [0, 1, 0])[w]
            if pre: setup()
            if r0 >= 18:
                b.nop(P["d1"][w] // 4)
                for n in range(4): b(rload(n))
            if not pre: setup()
            def check(b, R, nafter):
                mm = lambda n: f"v_mfma_f32_16x16x32_bf16 {v(RD,4)}, {v(R+4*n,4)}, {v(SEL32,4)}, {'0' if n == 0 else v(RD,4)}"
                for n in range(4):
                    if nafter is not None:
                        b.vm = []
                        b(f"s_waitcnt vmcnt({3 - n + nafter})")
                    b(mm(n))
                    if b is self.b and n in (0, 3): self.stamp(50 + n)
                    b(f"v_xor_b32 v66, v64, v{R}" if n == 0 else f"v_bitop3_b32 v66, v66, v64, v{R+4*n} bitop3:0xf6")
                b(f"v_and_b32 v66, 1, v66")
                b(f"v_cmp_ne_u32 vcc, 0, v66")
            if two:
                b.nop(P.get("rgap", 80) // 4)
                for n in range(4): b(rload(n, QA))
            check(b, RL, None)
            b(f"s_cbranch_vccnz L_redslow{sfx}")
            b.label(f"L_redgo{sfx}")
            def slow(sb):
                sb.label(f"L_redslow{sfx}")
                for n in range(4): sb(rload(n))
                sb(f"s_add_u32 s60, s60, 1\ns_add_u32 s{S_TO}, s{S_TO}, 1\ns_cmp_gt_u32 s{S_TO}, {TIMEOUT}\ns_cbranch_scc1 L_redgo{sfx}")
                if two:
                    check(sb, QA, 4)
                    sb(f"s_cbranch_vccz L_redgo{sfx}")
                    for n in range(4): sb(rload(n, QA))
                    sb("s_add_u32 s60, s60, 1\ns_nop 3")
                check(sb, RL, 4*two)
                sb(f"s_cbranch_vccnz L_redslow{sfx}\ns_branch L_redgo{sfx}")
            self.slow.append(slow)
            b.vm = []
            b(f"v_permlane32_swap_b32 v{RD}, v{RD+2}\nv_permlane32_swap_b32 v{RD+1}, v{RD+3}")
            b(f"v_add_f32 v{RD}, v{RD}, v{RD+2}\nv_add_f32 v{RD+1}, v{RD+1}, v{RD+3}")
            b(f"v_cvt_pk_bf16_f32 v{RD}, v{RD}, v{RD+1}")
            b(f"buffer_store_dword v{RD}, v{RS}, s[{S_WS}:{S_WS+3}], s{S_T0} offen {self.st}")
            b(f"buffer_store_dword v70, v{RS}, s[{S_WS}:{S_WS+3}], s{S_T1} offen {self.st}")
            b.label(f"L_redend{sfx}")
        self.stamp(7)
    def emit(self):
        b = self.b
        b.vm, b.lg, b.hist = [], [], []
        b.raw(".p2align 6")
        b.label(f"L_loop{self.sfx}")
        self.head()
        n0 = len(b.out)
        self.body()
        if self.P.get("at") is not None:
            idx = [k for k in range(n0, len(b.out)) if ("mfma" in b.out[k] or "s_barrier" in b.out[k] or "v_exp" in b.out[k])]
            k = idx[self.P["at"]]
            self.P["at_text"] = b.out[k]
            b.out.insert(k, "    s_memtime s[66:67]")
        if self.P.get("stamp"):
            b("s_waitcnt lgkmcnt(0)")
            if self.P.get("trace"):
                b.raw("    s_memrealtime s[80:81]\n    s_memtime s[78:79]\n    s_waitcnt lgkmcnt(0)")
                for i, r in enumerate([80, 78, 64, 66, 68, 70, 72, 74]): b(f"v_mov_b32 v{T1+i}, s{r}")
                b(f"s_lshl_b32 s{S_T2}, s{S_HEAD}, 2\ns_add_u32 s{S_T2}, s{S_T2}, {self.w}\ns_lshl_b32 s{S_T2}, s{S_T2}, 6\ns_add_u32 s{S_T2}, s{S_T2}, s{S_STEP}\ns_lshl_b32 s{S_T2}, s{S_T2}, 5\ns_add_u32 s{S_T2}, s{S_T2}, 8192")
                b(f"v_mov_b32 v{KX}, s{S_T2}\ns_mov_b64 exec, 1")
                b(f"global_store_dwordx4 v{KX}, {v(T1,4)}, s[4:5]\nglobal_store_dwordx4 v{KX}, {v(T2,4)}, s[4:5] offset:16\ns_mov_b64 exec, -1\ns_nop 1")
            elif self.P.get("rt"):
                b(f"s_cmp_eq_u32 s{S_STEP}, {self.P['rt']}")
                for i in range(0, 8): b(f"s_cselect_b32 s{84+i}, s{64+2*i}, s{84+i}")
            else:
              for i in range(1, 9):
                if i >= len(self.P.get("stamps", range(9))): break
                b(f"s_sub_u32 s{S_T2}, s{64+2*i}, s64\ns_cmp_gt_u32 s{S_STEP}, 3\ns_cselect_b32 s{S_T2}, s{S_T2}, 0\ns_add_u32 s{83+i}, s{83+i}, s{S_T2}")
        b(f"s_branch L_loop{self.sfx}")
        for f in self.slow:
            b.vm, b.lg, b.hist = [], [], []
            f(b)

def team_static(b, ptr):
    C.srd(b, S_WS, ptr['WS'], C.W.ARCH)
    b(f"""
    s_lshl_b32 s{S_T0}, s{S_WAVE}, 14
    s_lshl_b32 s{S_T1}, s{S_HEAD}, 9
    s_add_u32 s{S_PST}, s{S_T0}, s{S_T1}
    s_lshl_b32 s{S_T0}, s{S_WAVE}, 5
    s_add_u32 s{S_T0}, s{S_T0}, s{S_HEAD}
    s_lshr_b32 s{S_RLD}, s{S_T0}, 2
    s_lshl_b32 s{S_RLD}, s{S_RLD}, 14
    s_and_b32 s{S_T1}, s{S_T0}, 3
    s_lshl_b32 s{S_T1}, s{S_T1}, 7
    s_add_u32 s{S_RLD}, s{S_RLD}, s{S_T1}
    s_lshr_b32 s{S_RST}, s{S_T0}, 4
    s_lshl_b32 s{S_RST}, s{S_RST}, 11
    s_and_b32 s{S_T1}, s{S_T0}, 15
    s_lshl_b32 s{S_T1}, s{S_T1}, 6
    s_add_u32 s{S_RST}, s{S_RST}, s{S_T1}
    s_mov_b32 s{S_C}, {SCALE_HEX}
    s_mul_i32 s{S_H288}, s{S_HEAD}, 288
    s_mov_b32 s{S_LAY}, 0
    s_mov_b32 s{S_BARN}, 0
    s_lshl_b32 s{S_T0}, s{S_HEAD}, 2
    s_add_u32 s{S_T0}, s{S_T0}, {C.W.PROG + C.P_TEAM}
    s_add_u32 s{S_PT}, s{ptr['WS']}, s{S_T0}
    s_addc_u32 s{S_PT+1}, s{ptr['WS']+1}, 0
    s_mov_b32 s{S_PT+2}, 4
    s_mov_b32 s{S_PT+3}, 0x20000
    """)

def team_arrive(b, ptr):
    L = C.uid("ta")
    b(f"""
    s_waitcnt vmcnt(0)
    s_barrier
    s_add_u32 s{S_BARN}, s{S_BARN}, 32
    s_cmp_lg_u32 s{S_WAVE}, 0
    s_cbranch_scc1 {L}
    v_mov_b32 v26, {C.D_TB}
    v_mov_b32 v27, 1
    s_mov_b64 exec, 1
    global_atomic_add v26, v27, s[{ptr['DBG']}:{ptr['DBG']+1}]
    s_mov_b64 exec, -1
    s_waitcnt vmcnt(0)
    {L}:
    """)
def team_wait(b, ptr):
    L = C.uid("tw")
    b(f"v_mov_b32 v26, {C.D_TB}")
    b.label(L)
    b(f"""
    global_load_dword v27, v26, s[{ptr['DBG']}:{ptr['DBG']+1}] sc1
    s_add_u32 s{S_TO}, s{S_TO}, 1
    s_cmp_gt_u32 s{S_TO}, {TIMEOUT}
    s_waitcnt vmcnt(0)
    s_cbranch_scc1 {L}_d
    v_cmp_gt_u32 vcc, s{S_BARN}, v27
    s_cbranch_vccnz {L}
    {L}_d:
    """)

def team_layer_init(b, ptr, tid, kv_in_ws=True):
    st = "sc1"
    if kv_in_ws:
        b(f"s_mul_i32 s{S_T0}, s{S_LAY}, {C.W.KV_L}\ns_add_u32 s{S_T0}, s{S_T0}, {C.W.KV}")
        C.srd(b, S_KV, ptr['WS'], KV_BYTES, f"s{S_T0}")
    else:
        C.srd(b, S_KV, ptr['KV'], KV_BYTES)
    b(f"s_mul_i32 s{S_T0}, s{S_LAY}, {64*9216}\ns_add_u32 s{S_T0}, s{S_T0}, s{S_H288}\ns_add_u32 s{S_T0}, s{S_T0}, {C.W.ARCH}")
    C.srd(b, S_AR, ptr['WS'], 288, f"s{S_T0}")
    b(f"""
    s_mov_b32 s{S_MNEXT}, {Lay.MEMX}
    s_mov_b32 s{S_MCUR}, {Lay.MEMX}
    s_lshl_b32 s{S_KVO}, s{S_HEAD}, 14
    s_lshl_b32 s{S_T0}, s{S_WAVE}, 12
    s_add_u32 s{S_KVO}, s{S_KVO}, s{S_T0}
    s_sub_u32 s{S_KVO}, s{S_KVO}, {32*16384}
    s_mov_b32 s{S_STEP}, 0
    s_mov_b32 s{S_TAG}, 0
    s_lshl_b32 s{S_NEED}, s{S_LAY}, 6
    s_add_u32 s{S_NEED}, s{S_NEED}, 1
    s_lshl_b32 s{S_PG}, s{S_HEAD}, 2
    s_add_u32 s{S_PG}, s{S_PG}, {C.W.PROG + C.P_HWP}
    v_and_b32 v25, 63, v{tid}
    v_lshlrev_b32 v25, 3, v25
    v_mov_b32 v28, 0
    v_mov_b32 v29, 0
    s_mov_b32 s{S_PS2}, s{S_PST}
    """)
    for n in range(5):
        b(f"buffer_store_dwordx2 v[28:29], v25, s[{S_WS}:{S_WS+3}], s{S_PS2} offen {st}\ns_add_u32 s{S_PS2}, s{S_PS2}, 65536")
    b(f"""
    ; clear own gate flags
    v_lshlrev_b32 v26, 7, v{tid}
    s_lshl_b32 s{S_T0}, s{S_HEAD}, 2
    s_add_u32 s{S_T0}, s{S_T0}, {Lay.FLAG}
    v_mov_b32 v32, 0x40000000
    v_cmp_gt_u32 vcc, 2, v{tid}
    v_cndmask_b32 v26, v32, v26, vcc
    buffer_store_dword v28, v26, s[{S_WS}:{S_WS+3}], s{S_T0} offen {st}
    s_mul_i32 s{S_T0}, s{S_HEAD}, 18
    v_add_u32 v26, s{S_T0}, v{tid}
    v_bfe_u32 v27, v26, 1, 3
    v_mul_u32_u24 v27, 1152, v27
    v_lshrrev_b32 v32, 4, v26
    v_lshl_add_u32 v27, v32, 5, v27
    v_and_b32 v32, 1, v26
    v_lshl_add_u32 v27, v32, 4, v27
    v_lshlrev_b32 v26, 4, v26
    v_mov_b32 v32, 0x40000000
    v_cmp_gt_u32 vcc, 18, v{tid}
    v_cndmask_b32 v26, v32, v26, vcc
    v_cndmask_b32 v27, v32, v27, vcc
    s_mov_b32 s{S_W}, s{ptr['MEM0']}
    s_mov_b32 s{S_W+1}, s{ptr['MEM0']+1}
    s_mov_b32 s{S_W+2}, 9216
    s_mov_b32 s{S_W+3}, 0x20000
    buffer_load_dwordx4 v[36:39], v27, s[{S_W}:{S_W+3}], 0 offen
    v_mov_b64 v[32:33], -1
    v_mov_b64 v[34:35], -1
    s_mov_b32 s{S_T0}, {Lay.MEMX + MEMX_SLOT}
    s_mov_b32 s{S_T1}, {Lay.MEMX + 2*MEMX_SLOT}
    buffer_store_dwordx4 v[32:35], v26, s[{S_WS}:{S_WS+3}], s{S_T0} offen {st}
    buffer_store_dwordx4 v[32:35], v26, s[{S_WS}:{S_WS+3}], s{S_T1} offen {st}
    s_mov_b32 s{S_T0}, 0x05040100
    s_mov_b32 s{S_T1}, 0x07060302
    v_perm_b32 v40, v37, v36, s{S_T0}
    v_perm_b32 v41, v37, v36, s{S_T1}
    v_perm_b32 v42, v39, v38, s{S_T0}
    v_perm_b32 v43, v39, v38, s{S_T1}
    buffer_store_dwordx4 v[40:43], v26, s[{S_WS}:{S_WS+3}], s{S_MNEXT} offen {st}
    """)
    team_arrive(b, ptr)

def team_consts(b, ptr, bound=0x42200000):
    consts(b)
    L = C.uid("tc")
    b(f"""
    v_lshrrev_b32 v26, 7, v{A1}
    v_lshlrev_b32 v26, 11, v26
    v_and_b32 v27, 127, v{A1}
    v_add_u32 v{TMP}, v26, v27
    s_cmp_eq_u32 s{S_WAVE}, 3
    s_cbranch_scc0 {L}
    v_add_u32 v{TMP}, s{S_H288}, v{A1}
    {L}:
    s_mov_b32 s{S_GF}, {Lay.FLAG}
    s_mov_b32 s{S_BND}, {bound}
    s_mov_b32 s{S_ONE}, 0x3f803f80
    s_mov_b32 s{S_QM}, 0x55555555
    s_mov_b32 s{S_QM+1}, 0x55555555
    s_mov_b32 s{S_XM}, 0xcccccccc
    s_mov_b32 s{S_XM+1}, 0xcccccccc
    """)

def team_go(b, ptr, names):
    b(f"s_lshl_b32 s{S_T0}, s{S_HEAD}, 2\ns_add_u32 s{S_T0}, s{S_T0}, {Lay.FLAG}")
    C.srd(b, S_FL, ptr['WS'], 4, f"s{S_T0}")
    C.srd(b, S_FB, S_FL, 4, 128)
    b(f"s_mul_i32 s{S_T0}, s{S_WAVE}, {PIECE}\ns_add_u32 s{S_T0}, s{S_T0}, {L_W}\nv_add_u32 v{A2}, s{S_T0}, v{A1}")
    for op in range(2):
        for hf in range(2):
            b(f"ds_read_b128 {v(8+8*op+4*hf,4)}, v{A2} offset:{op*2048 + hf*1024}")
    team_wait(b, ptr)
    L = C.uid("tg")
    if len(names) > 1:
        b(f"""
        v_mov_b32 v26, {C.D_SLOW}
        global_load_dword v27, v26, s[{ptr['DBG']}:{ptr['DBG']+1}] sc1
        s_waitcnt vmcnt(0)
        v_cmp_ne_u32 vcc, 0, v27
        """)
    b("s_waitcnt vmcnt(0) lgkmcnt(0)")
    if len(names) > 1: b(f"s_cbranch_vccnz {L}")
    for k, name in enumerate(names):
        if k: b.label(L)
        for w in range(1, 4):
            b(f"s_cmp_eq_u32 s{S_WAVE}, {w}\ns_cbranch_scc1 L_loop_{name}_w{w}")
        b(f"v_mov_b32 v{A2}, 0\ns_branch L_loop_{name}_w0")

DEFAULTS = dict(nstep=63, stamp=0, d1=[0,60,0], d2=[180], z1=11, two=[0,0,0], npoll=6, pgap=10, gp=[9,12,15], gf=2, noprobe=1)

def emit(b, nlayers, **kw):
    ptr = C.PT
    b.reset()
    b.label("L_team")
    for r in (60, 61, 62, 63): b(f"s_mov_b32 s{r}, 0")
    team_static(b, ptr)
    team_layer_init(b, ptr, 0)
    prologue_weights(b, ptr)
    team_consts(b, ptr)
    C.wait_init(b, 26, 27)
    b.label("L_team_go")
    team_go(b, ptr, ["f", "s"])
    for name, st in (("f", ""), ("s", "sc1")):
        P = dict(DEFAULTS, name=name, exit="L_team_exit", mega=1); P.update(kw)
        for w in range(4): Loop(b, w, st, P).emit()
    b.reset()
    b.label("L_team_exit")
    b(f"""
    s_waitcnt vmcnt(0) lgkmcnt(0)
    s_cmp_lg_u32 s{S_WAVE}, 3
    s_cbranch_scc1 L_team_x2
    v_mov_b32 v26, s{S_NEED}
    buffer_store_dword v26, v{A1}, s[{S_PT}:{S_PT+3}], 0 offen sc1
    L_team_x2:
    s_add_u32 s{S_LAY}, s{S_LAY}, 1
    s_cmp_ge_u32 s{S_LAY}, {nlayers}
    s_cbranch_scc1 L_end
    """)
    team_arrive(b, ptr); team_wait(b, ptr)
    b(f"v_lshrrev_b32 v24, 4, v{A1}\ns_lshl_b32 s{S_T0}, s{S_WAVE}, 6\nv_add_u32 v24, s{S_T0}, v24")
    team_layer_init(b, ptr, 24)
    b("s_branch L_team_go")
```

```python
import sys, os
sys.path.insert(0, os.path.dirname(os.path.abspath(__file__)))
from asmb import Asm
from common import *
import team, hw, ow, qw
NAME = "interleave_layers__memory_aug_recurrent_mem_tr__softmax_full_mha__prompt"

def body(nlayers=2, roles=("hw", "ow", "qw", "bw"), force_slow=False, team_kw={}, bw_kw={}):
    b = Asm()
    b(f"""
    s_cmp_ge_u32 s2, 256
    s_cbranch_scc1 L_end0
    s_load_dwordx16 s[64:79], s[0:1], 0
    s_load_dwordx8 s[80:87], s[0:1], 64
    s_load_dwordx2 s[88:89], s[0:1], 96
    s_getreg_b32 s4, hwreg(HW_REG_XCC_ID)
    s_and_b32 s4, s4, 15
    s_getreg_b32 s5, hwreg(HW_REG_HW_ID, 4, 2)
    v_lshrrev_b32 v1, 6, v0
    v_readfirstlane_b32 s{S_WAVE}, v1
    v_lshlrev_b32 v1, 2, v1
    s_lshl_b32 s6, 1, s5
    v_mov_b32 v2, s6
    ds_write_b32 v1, v2 offset:16
    s_mov_b32 s{S_TO}, 0
    s_mov_b32 s{S_ONE}, 0x3f803f80
    s_waitcnt lgkmcnt(0)
    """)
    srd(b, S_WS, PT['WS'], W.END)
    D = PT['DBG']
    b(f"""
    s_cmp_lg_u32 s{S_WAVE}, 0
    s_cbranch_scc1 L_e_bar
    s_mov_b64 exec, 1
    v_mov_b64 v[2:3], 0
    s_lshl_b32 s6, s2, 3
    s_add_u32 s6, s6, {W.PROG}
    buffer_store_dwordx2 v[2:3], off, s[{S_WS}:{S_WS+3}], s6 sc1
    v_mov_b32 v4, 1
    s_cmp_lg_u32 s4, {15 if force_slow else 0}
    s_cbranch_scc1 L_e_worker
    global_atomic_add v5, v2, v4, s[{D}:{D+1}] offset:{D_T0} sc0
    s_waitcnt vmcnt(0)
    v_readfirstlane_b32 s6, v5
    s_add_u32 s7, s6, 224
    s_cmp_lt_u32 s6, 32
    s_cbranch_scc1 L_e_got
    L_e_worker:
    global_atomic_add v5, v2, v4, s[{D}:{D+1}] offset:{D_TW} sc0
    s_waitcnt vmcnt(0)
    v_readfirstlane_b32 s7, v5
    s_cmp_lt_u32 s7, 224
    s_cbranch_scc1 L_e_got
    s_sub_u32 s7, {255 + 224}, s7
    global_atomic_add v2, v4, s[{D}:{D+1}] offset:{D_SLOW}
    L_e_got:
    s_waitcnt vmcnt(0)
    global_atomic_add v2, v4, s[{D}:{D+1}] offset:{D_INIT}
    v_mov_b32 v5, s7
    ds_write_b32 v2, v5
    s_waitcnt lgkmcnt(0)
    s_mov_b64 exec, -1
    L_e_bar:
    s_barrier
    v_mov_b32 v2, 0
    ds_read_b32 v3, v2
    ds_read_b128 v[4:7], v2 offset:16
    s_waitcnt lgkmcnt(0)
    v_or3_b32 v4, v4, v5, v6
    v_or_b32 v4, v4, v7
    v_readfirstlane_b32 s{S_ID}, v3
    v_readfirstlane_b32 s6, v4
    s_barrier
    s_cmp_eq_u32 s6, 15
    s_cselect_b32 s{S_WAVE}, s5, s{S_WAVE}
    s_lshl_b32 s6, s{S_WAVE}, 6
    v_and_b32 v0, 63, v0
    v_or_b32 v0, s6, v0
    """)
    for nm, n in (("hw", N_HW), ("ow", N_OW), ("qw", N_QW), ("bw", N_BW)):
        b(f"s_cmp_lt_u32 s{S_ID}, {n}\ns_cbranch_scc1 {'L_j_' + nm if nm in roles else 'L_end0'}\ns_sub_u32 s{S_ID}, s{S_ID}, {n}")
    b(f"s_and_b32 s{S_ID}, s{S_ID}, 31\ns_branch L_team")
    b.label("L_end0")
    b("s_endpgm")
    for nm in roles: b(f"L_j_{nm}:\ns_branch L_{nm}")
    team.emit(b, nlayers, **team_kw)
    if "hw" in roles: hw.emit(b, nlayers)
    if "ow" in roles: ow.emit(b, nlayers)
    if "qw" in roles: qw.emit(b, nlayers)
    if "bw" in roles:
        import bw
        bw.emit(b, nlayers, **bw_kw)
    b.reset()
    b.label("L_end")
    b("s_waitcnt vmcnt(0)")
    return b.finish()

def full(**kw):
    ref = open(os.path.join(os.path.dirname(os.path.abspath(__file__)), "..", "cdna_kernels", NAME + ".s.ref")).read()
    head = [l for l in ref.split("\n") if l.startswith(";") and "@launch" not in l and "Override launch" not in l and "grid=ceil" not in l]
    out = "\n".join(head) + f"\n; @launch grid=(256,1,1) block=(256,1,1) lds={LDS_BYTES}\n"
    out += f""".amdgcn_target "amdgcn-amd-amdhsa--gfx950"
.text
.globl {NAME}_kernel
.p2align 8
.type {NAME}_kernel,@function
{NAME}_kernel:
"""
    out += body(**kw)
    out += f"""s_endpgm
.section .rodata,"a"
.p2align 6
.amdhsa_kernel {NAME}_kernel
  .amdhsa_next_free_vgpr 512
  .amdhsa_next_free_sgpr 102
  .amdhsa_accum_offset 256
  .amdhsa_group_segment_fixed_size 0
  .amdhsa_kernarg_size 104
  .amdhsa_user_sgpr_count 2
  .amdhsa_user_sgpr_kernarg_segment_ptr 1
  .amdhsa_system_sgpr_workgroup_id_x 1
.end_amdhsa_kernel
"""
    return out
if __name__ == "__main__":
    open(os.path.join(os.path.dirname(os.path.abspath(__file__)), "..", "cdna_kernels", NAME + ".s"), "w").write(full())
```

```python
from common import *
import ow
S_H, S_PAR, S_PA, S_PW, S_NU, S_NN, S_OWN, S_QO, S_SG, S_CG, S_RET, S_LO, S_HI, S_NX, S_FO = 40, 41, 42, 43, 44, 45, 46, 47, 48, 49, 50, 52, 53, 54, 55
A1, K2B, VB, VS, KA, K2A, VA = 0, 1, 2, 3, 4, 5, 6
SS, P, K1, K2, VFA, VFB, TN, QN1, QN2 = (8, 24), 40, 48, 52, 56, 60, 64, 80, 84
T, OBX, EL, EG, DM, DX, VS8, PF, VF2, QN3, K2P = 86, 92, 94, 98, 102, 103, 104, 105, 108, 106, 54
L_ONE = 147456
L_EX = (148608, 149632, 157696)
L_XT, L_ET, L_VETO = (0, 65536), 40960, 147456 + 64
def wfrag(kk, i):
    r = 4*(kk*3 + i)
    return a(176 + r, 4) if r < 80 else v(120 + r - 80, 4)
S1 = lambda d, q: f"v_mfma_f32_32x32x16_bf16 {v(d,16)}, {v(K1,4)}, {q}, 0"
S2 = lambda d, q: f"v_mfma_f32_32x32x8_bf16 {v(d,16)}, {v(K2,2)}, {q}, {v(d,16)}"
PV = lambda o, h: f"v_mfma_f32_32x32x16_bf16 {o}, {v((VFA, VFB)[h],4)}, {v(P+4*h,4)}, {o}"
def exps(b, cur, g, *fill):
    fill = list(fill)
    for r in range(4):
        b(f"v_exp_f32 v{cur+4*g+r}, v{cur+4*g+r}")
        if fill: b(fill.pop(0))
    assert not fill
    b(cvt(P + 2*g, cur + 4*g)); b(cvt(P + 2*g + 1, cur + 4*g + 2))
def kv_addr(b, sreg):
    b(f"""
    s_mul_i32 s{S_T0}, s{sreg}, 2304
    v_add_u32 v{KA}, s{S_T0}, v{A1}
    v_add_u32 v{K2A}, s{S_T0}, v{K2B}
    v_mad_u32_u24 v{VA}, s{sreg}, v{VS}, v{VB}
    """)
rK1 = lambda off=0: f"ds_read_b128 {v(K1,4)}, v{KA} offset:{off}"
rK2 = lambda off=0: f"ds_read_b32 v{K2}, v{K2A} offset:{off}"
rV = lambda h, off=0: f"ds_read_b128 {v((VFA, VFB)[h],4)}, v{VA} offset:{576*h + off}"

def next_addr(b):
    b(f"""
    s_lshl_b32 s{S_NEED}, s{S_LAY}, 6
    s_add_u32 s{S_NEED}, s{S_NEED}, s{S_NX}
    s_lshl_b32 s{S_QO}, s{S_NEED}, 5
    s_add_u32 s{S_QO}, s{S_QO}, s{S_H}
    s_mul_i32 s{S_QO}, s{S_QO}, 3584
    s_add_u32 s{S_QO}, s{S_QO}, {W.QB}
    s_add_u32 s{S_NEED}, s{S_NEED}, 1
    s_and_b32 s{S_FO}, s{S_NX}, 1
    s_lshl_b32 s{S_FO}, s{S_FO}, 7
    s_and_b32 s{S_T1}, s{S_H}, 28
    s_add_u32 s{S_FO}, s{S_FO}, s{S_T1}
    s_add_u32 s{S_FO}, s{S_FO}, {W.PROG + P_QW}
    """)
def request(b):
    b.reset()
    b.label("L_bw_req")
    b(f"""
    s_cmp_eq_u32 s{S_WAVE}, 3
    s_cbranch_scc1 L_bw_nd
    s_lshl_b32 s{S_T0}, s{S_WAVE}, 10
    s_mul_i32 s{S_T1}, s{S_NX}, 2304
    s_add_u32 m0, s{S_T0}, s{S_T1}
    s_add_u32 s{S_T0}, s{S_T0}, s{S_QO}
    s_cmp_eq_u32 s{S_WAVE}, 2
    s_cselect_b64 exec, 0xffff, -1
    buffer_load_dwordx4 v{A1}, s[{S_WS}:{S_WS+3}], s{S_T0} offen sc1 lds
    s_mov_b64 exec, -1
    L_bw_nd:
    s_and_b32 s{S_T0}, s{S_NX}, 1
    s_cmp_lg_u32 s{S_T0}, s{S_PAR}
    s_cbranch_scc1 L_bw_nq
    buffer_load_dwordx4 {v(QN1,4)}, v{A1}, s[{S_WS}:{S_WS+3}], s{S_QO} offen offset:2304 sc1
    buffer_load_dword v{QN2}, v{OBX}, s[{S_WS}:{S_WS+3}], s{S_QO} offen offset:3328 sc1
    L_bw_nq:
    s_add_u32 s{S_NX}, s{S_NX}, 1
    s_setpc_b64 s[{S_RET}:{S_RET+1}]
    """)

def segment(b):
    b(f"s_cmp_gt_u32 s{S_NX}, s{S_SEG}\ns_cbranch_scc1 L_bw_have")
    next_addr(b)
    b(f"v_mov_b32 v{T}, 0")
    wait_words(b, T, S_FO, S_NEED, T+1, 1)
    b(f"s_call_b64 s[{S_RET}:{S_RET+1}], L_bw_req")
    b.label("L_bw_have")
    next_addr(b)
    b(f"""
    s_lshl_b32 s{S_T0}, s{S_WAVE}, 1
    s_add_u32 s{S_T0}, s{S_T0}, s{S_PAR}
    s_add_u32 s{S_NU}, s{S_SEG}, 7
    s_sub_u32 s{S_NU}, s{S_NU}, s{S_T0}
    s_lshr_b32 s{S_NU}, s{S_NU}, 3
    """)
    kv_addr(b, S_SEG)
    b("s_waitcnt vmcnt(0)\ns_barrier")
    b(f"buffer_load_dword v{PF}, off, s[{S_WS}:{S_WS+3}], s{S_FO} sc1")
    b(rK1()); b(rK2()); b(rV(0)); b(rV(1))
    b(f"s_waitcnt lgkmcnt(0)\ns_cmp_eq_u32 s{S_NU}, 0\ns_cbranch_scc1 L_bw_n")
    q1 = lambda k: a(128 + 4*k, 4); q2 = lambda k: a(160 + 2*k, 2); st = lambda k: a(16*k, 16)
    b(S1(SS[0], q1(0))); b(S2(SS[0], q2(0)))
    for k in range(8):
        cur, nxt = SS[k % 2], SS[(k + 1) % 2]
        if k < 7: b(S1(nxt, q1(k+1)))
        exps(b, cur, 0)
        if k > 0: b(PV(st(k-1), 1))
        if k == 3: b(f"v_cmp_gt_u32 vcc, s{S_NEED}, v{PF}")
        exps(b, cur, 1)
        if k < 7: b(S2(nxt, q2(k+1)))
        if k == 3:
            b(f"s_cbranch_vccnz L_bw_np\ns_call_b64 s[{S_RET}:{S_RET+1}], L_bw_req\nL_bw_np:")
        exps(b, cur, 2)
        b(PV(st(k), 0))
        exps(b, cur, 3, *([f"s_cmp_eq_u32 s{S_NU}, {k+1}"] if k < 7 else []))
        if k < 7: b(f"s_cbranch_scc1 L_bw_u{k}")
    b(PV(st(7), 1))
    b.label("L_bw_n")
    b(f"""
    s_and_b32 s{S_T0}, s{S_SEG}, 1
    s_cmp_lg_u32 s{S_T0}, s{S_PAR}
    s_cbranch_scc1 L_bw_next
    s_bfe_u32 s{S_OWN}, s{S_SEG}, 0x20001
    s_sub_u32 s{S_OWN}, s{S_WAVE}, s{S_OWN}
    s_add_u32 s{S_OWN}, s{S_OWN}, 3
    s_and_b32 s{S_OWN}, s{S_OWN}, 3
    """)
    kv_addr(b, S_OWN)
    rK2P = lambda o: f"ds_read2st64_b32 {v(K2P,2)}, v{K2A} offset0:{36*o} offset1:{36*o+36}"
    rVa = lambda r, off: f"ds_read_b128 {v(r,4)}, v{VA} offset:{off}"
    b(rK1()); b(rK2()); b(rVa(VFA, 0)); b(rVa(VF2, 9216)); b(rK2P(1))
    b(f"s_sub_u32 s{S_NN}, s{S_SEG}, s{S_OWN}")
    for i in range(8): b(f"v_mov_b64 {v(TN+2*i,2)}, 0")
    b(f"v_mov_b64 {v(P+4,2)}, 0\nv_mov_b64 {v(P+6,2)}, 0\nv_mov_b32 v{QN3+1}, v{QN2}")
    b(f"s_cbranch_scc1 L_bw_x\ns_lshr_b32 s{S_NN}, s{S_NN}, 2")
    qa, qb, tn = v(QN1, 4), v(QN2, 2), v(TN, 16)
    b(S1(SS[0], qa)); b(rK1(9216)); b(S2(SS[0], qb))
    b("s_waitcnt lgkmcnt(0)"); b.nop(9)
    b.label("L_bw_nl")
    b.auto_wait = False
    for u in range(4):
        e = u % 2
        cur, nxt = SS[e], SS[1 - e]
        b(S1(nxt, qa)); b(rK1(18432 + 9216*u))
        exps(b, cur, 0)
        b(PV(tn, 1)); b(rV(1, 0 if e == 0 else 9216))
        exps(b, cur, 1)
        b(f"v_mfma_f32_32x32x8_bf16 {v(nxt,16)}, {v(K2P,2)}, {qb if e == 0 else v(QN3,2)}, {v(nxt,16)}")
        b("s_waitcnt lgkmcnt(1)" if e == 0 else rK2P(u + 2))
        if e: b(f"v_add_u32 v{VA}, v{VA}, v{VS8}")
        if u == 3: b(f"v_add_u32 v{KA}, 36864, v{KA}\nv_add_u32 v{K2A}, 36864, v{K2A}")
        exps(b, cur, 2)
        va = (VFA, VF2)[e]
        b(f"v_mfma_f32_32x32x16_bf16 {tn}, {v(va,4)}, {v(P,4)}, {tn}")
        if e == 0:
            b("s_waitcnt lgkmcnt(0)")
            exps(b, cur, 3, f"s_sub_u32 s{S_NN}, s{S_NN}, 1")
        else:
            b(rVa(VFA, 0))
            exps(b, cur, 3, rVa(VF2, 9216), f"s_sub_u32 s{S_NN}, s{S_NN}, 1", "s_waitcnt lgkmcnt(2)")
        b("s_cbranch_scc1 L_bw_ne" if u < 3 else "s_cbranch_scc0 L_bw_nl")
    b.auto_wait = True
    b.label("L_bw_ne")
    b("s_waitcnt lgkmcnt(0)\ns_nop 0"); b(PV(tn, 1)); b.nop(6)
    b.label("L_bw_x")
    b(f"""
    s_cmp_eq_u32 s{S_OWN}, 3
    s_cbranch_scc1 L_bw_own
    s_lshl_b32 s{S_T1}, s{S_OWN}, 10
    s_add_u32 s{S_T1}, s{S_T1}, {L_EX[0]}
    s_cmp_eq_u32 s{S_OWN}, 2
    s_cselect_b32 s{S_T0}, {L_EX[2]}, s{S_T1}
    v_add_u32 v{T}, s{S_T0}, v{A1}
    """)
    for i in range(3): b(f"ds_write_b128 v{T}, {v(TN+4*i,4)} offset:{i*2304}")
    b("s_waitcnt lgkmcnt(0)\ns_barrier\ns_branch L_bw_next")
    b.label("L_bw_own")
    b(f"v_add_u32 v{T}, {L_EX[0]}, v{A1}\ns_barrier")
    for i in range(9): b(f"ds_read_b128 {v(8+4*i,4)}, v{T} offset:{L_EX[i//3] - L_EX[0] + (i%3)*2304}")
    for j in range(3):
        for r in range(0, 12, 2): b(f"v_pk_add_f32 {v(TN+r,2)}, {v(TN+r,2)}, {v(8+12*j+r,2)}")
    b(f"s_waitcnt lgkmcnt(0)\ns_lshr_b32 s{S_T0}, s{S_SEG}, 3")
    for k in range(7): b(f"s_cmp_eq_u32 s{S_T0}, {k}\ns_cbranch_scc1 L_bw_o{k}")
    for k in [7] + list(range(7)):
        if k < 7: b.label(f"L_bw_o{k}")
        for r in range(11): b(f"v_accvgpr_write_b32 a{16*k+r}, v{TN+r}")
        for r in range(4): b(f"v_accvgpr_write_b32 a{128+4*k+r}, v{QN1+r}")
        b(f"v_accvgpr_write_b32 a{160+2*k}, v{QN2}\ns_branch L_bw_next")
    for k in range(7):
        b.reset(); b.label(f"L_bw_u{k}")
        b("s_nop 1"); b(PV(st(k), 1)); b("s_branch L_bw_n")

def truemax(b):
    b.reset()
    b.label("L_bw_tm")
    qa, qb, tn, S0, M = v(QN1, 4), v(QN2, 2), v(TN, 16), SS[0], T+2
    b(f"v_mov_b32 v{M}, 0xff800000\ns_mov_b32 s{S_NN}, 0")
    b.label("L_bw_tm1")
    kv_addr(b, S_NN)
    b(rK1()); b(rK2()); b(S1(S0, qa)); b(S2(S0, qb))
    for r in range(0, 16, 2): b(f"v_max3_f32 v{M}, v{M}, v{S0+r}, v{S0+r+1}")
    b(f"s_add_u32 s{S_NN}, s{S_NN}, 1\ns_cmp_lt_u32 s{S_NN}, 64\ns_cbranch_scc1 L_bw_tm1")
    b(f"v_mov_b32 v{M+1}, v{M}\nv_permlane32_swap_b32 v{M}, v{M+1}\nv_max_f32 v{M}, v{M}, v{M+1}\ns_mov_b32 s{S_NN}, 0")
    for i in range(8): b(f"v_mov_b64 {v(TN+2*i,2)}, 0")
    b.label("L_bw_tm2")
    kv_addr(b, S_NN)
    b(rK1()); b(rK2()); b(rV(0)); b(rV(1)); b(S1(S0, qa)); b(S2(S0, qb))
    for r in range(16): b(f"v_sub_f32 v{S0+r}, v{S0+r}, v{M}")
    for g in range(4): exps(b, S0, g)
    b(PV(tn, 0)); b(PV(tn, 1))
    b(f"s_add_u32 s{S_NN}, s{S_NN}, 1\ns_cmp_lt_u32 s{S_NN}, 64\ns_cbranch_scc1 L_bw_tm2")
    b.nop(12)
    b(f"v_mov_b32 v{T}, v{TN+10}\nv_permlane32_swap_b32 v{TN+10}, v{T}\ns_setpc_b64 s[{S_RET}:{S_RET+1}]")

def finish(b):
    b.nop(12)
    b(f"""
    s_lshl_b32 s{S_T1}, s{S_LAY}, 6
    s_lshl_b32 s{S_T0}, s{S_WAVE}, 1
    s_add_u32 s{S_T0}, s{S_T0}, s{S_PAR}
    s_add_u32 s{S_T0}, s{S_T0}, s{S_T1}
    s_lshl_b32 s{S_T0}, s{S_T0}, 5
    s_add_u32 s{S_T0}, s{S_T0}, s{S_H}
    s_mul_i32 s{S_QO}, s{S_T0}, 1152
    s_add_u32 s{S_QO}, s{S_QO}, {W.OB}
    """)
    for k in range(8):
        for r in range(11): b(f"v_accvgpr_read_b32 v{TN+r}, a{16*k+r}")
        b(f"""
        v_mov_b32 v{T}, v{TN+10}
        v_permlane32_swap_b32 v{TN+10}, v{T}
        v_cmp_nlt_f32 vcc, s{S_LO}, v{TN+10}
        v_cmp_ngt_f32 s[{S_T0}:{S_T0+1}], s{S_HI}, v{TN+10}
        s_or_b64 vcc, vcc, s[{S_T0}:{S_T0+1}]
        s_cbranch_scc0 L_bw_f{k}
        """)
        for r in range(4): b(f"v_accvgpr_read_b32 v{QN1+r}, a{128+4*k+r}")
        b(f"v_accvgpr_read_b32 v{QN2}, a{160+2*k}")
        b(f"s_call_b64 s[{S_RET}:{S_RET+1}], L_bw_tm")
        b.label(f"L_bw_f{k}")
        b(f"v_rcp_f32 v{T}, v{TN+10}")
        for r in range(10): b(f"v_mul_f32 v{TN+r}, v{TN+r}, v{T}")
        d = 8 + 8*(k % 2)
        for i in range(5): b(cvt(d + i, TN + 2*i))
        b(f"buffer_store_dwordx4 {v(d,4)}, v{A1}, s[{S_WS}:{S_WS+3}], s{S_QO} offen sc1")
        b(f"buffer_store_dword v{d+4}, v{OBX}, s[{S_WS}:{S_WS+3}], s{S_QO} offen offset:1024 sc1")
        b(f"s_add_u32 s{S_QO}, s{S_QO}, {8*32*1152}")
        if k in (0, 2, 7):
            b(f"s_lshl_b32 s{S_T1}, s{S_LAY}, 6\ns_add_u32 s{S_T1}, s{S_T1}, {8*(k+1)}")
            signal(b, S_PA, S_T1, T, T+1)

def pnext_addr(b):
    b(f"""
    s_lshl_b32 s{S_NEED}, s{S_LAY}, 6
    s_add_u32 s{S_NEED}, s{S_NEED}, s{S_NX}
    s_mul_i32 s{S_QO}, s{S_NEED}, 36864
    s_add_u32 s{S_QO}, s{S_QO}, {W.OB}
    s_add_u32 s{S_NEED}, s{S_NEED}, 1
    s_and_b32 s{S_FO}, s{S_NX}, 1
    s_lshl_b32 s{S_FO}, s{S_FO}, 7
    s_add_u32 s{S_FO}, s{S_FO}, {W.PROG + P_BW}
    """)
def prequest(b):
    b.reset()
    b.label("L_bw_preq")
    b(f"s_mul_i32 s{S_T0}, s{S_WAVE}, 9216\ns_add_u32 s{S_T0}, s{S_T0}, s{S_QO}\ns_lshl_b32 s{S_T2}, s{S_WAVE}, 12\ns_add_u32 s{S_T2}, s{S_T2}, s{S_NU}")
    for kk in range(4):
        for tt in range(2):
            b(f"s_add_u32 m0, s{S_T2}, {tt*18432 + kk*1024}\ns_add_u32 s{S_T1}, s{S_T0}, {kk*2304 + tt*256}")
            b(f"buffer_load_dwordx4 v{DM}, s[{S_WS}:{S_WS+3}], s{S_T1} offen sc1 lds")
    b(f"s_mul_i32 s{S_T0}, s{S_WAVE}, 4608\ns_add_u32 s{S_T0}, s{S_T0}, s{S_QO}\ns_lshl_b32 s{S_T2}, s{S_WAVE}, 8\ns_add_u32 s{S_T2}, s{S_T2}, s{S_NU}")
    for e in range(2):
        for tt in range(2):
            b(f"s_add_u32 m0, s{S_T2}, {tt*18432 + (16+e)*1024}\ns_add_u32 s{S_T1}, s{S_T0}, {e*16*1152 + tt*64}")
            b(f"buffer_load_dword v{DX}, s[{S_WS}:{S_WS+3}], s{S_T1} offen sc1 lds")
    b(f"s_add_u32 s{S_NX}, s{S_NX}, 21\ns_xor_b32 s{S_NU}, s{S_NU}, {L_XT[0] ^ L_XT[1]}\ns_setpc_b64 s[{S_RET}:{S_RET+1}]")

def project(b):
    RES, ACC, FB, FA, XR = 64, 8, 32, 76, 77
    b(f"""
    s_cmp_ge_u32 s{S_SG}, 21
    s_cbranch_scc1 L_bw_pe
    s_mov_b32 s{S_SEG}, s{S_SG}
    s_mov_b32 s{S_NX}, s{S_SG}
    s_mov_b32 s{S_NU}, {L_XT[0]}
    s_mov_b32 s{S_NN}, 0
    v_lshrrev_b32 v{FA}, 2, v{A1}
    v_and_b32 v{FA}, 127, v{FA}
    v_add_u32 v{XR}, {L_XT[0]}, v{A1}
    """)
    b.label("L_bw_pl")
    b(f"s_cmp_gt_u32 s{S_NX}, s{S_SEG}\ns_cbranch_scc1 L_bw_ph")
    b(f"s_cmp_eq_u32 s{S_NN}, 0\ns_cbranch_scc1 L_bw_pw")
    signal(b, S_PW, S_NN, T, T+1, code=4)
    b(f"s_mov_b32 s{S_NN}, 0")
    b.label("L_bw_pw")
    pnext_addr(b)
    b(f"v_mov_b32 v{T}, v{FA}")
    wait_words(b, T, S_FO, S_NEED, T+1, 1, code=3)
    b(f"s_call_b64 s[{S_RET}:{S_RET+1}], L_bw_preq")
    b.label("L_bw_ph")
    pnext_addr(b)
    b(f"buffer_load_dword v{PF}, v{FA}, s[{S_WS}:{S_WS+3}], s{S_FO} offen sc1")
    b(f"s_waitcnt vmcnt(0)\nv_cmp_gt_u32 vcc, s{S_NEED}, v{PF}")
    b(f"""
    v_mov_b32 v{T}, {L_VETO}
    v_mov_b32 v{T+1}, s{S_NEED}
    s_cbranch_vccz L_bw_pv
    ds_write_b32 v{T}, v{T+1}
    L_bw_pv:
    s_waitcnt lgkmcnt(0)
    s_barrier
    ds_read_b32 v{PF}, v{T}
    s_cmp_eq_u32 s{S_NN}, 0
    s_cbranch_scc1 L_bw_ps
    """)
    signal(b, S_PW, S_NN, T+2, T+3, barrier=False, code=4)
    b.label("L_bw_ps")
    b(f"s_mul_i32 s{S_OWN}, s{S_SEG}, 36864")
    for n in range(3): b(f"buffer_load_dwordx4 {v(RES+4*n,4)}, v{EG+n}, s[{S_XI}:{S_XI+3}], s{S_OWN} offen sc1")
    rd = lambda kk, tt: f"ds_read_b128 {v(FB + 8*(kk%2) + 4*tt,4)}, v{XR} offset:{tt*18432 + kk*1024}"
    b(f"v_cmp_eq_u32 vcc, s{S_NEED}, v{PF}")
    b(rd(0, 0)); b(rd(0, 1))
    b(f"s_cbranch_vccnz L_bw_pn\ns_call_b64 s[{S_RET}:{S_RET+1}], L_bw_preq\nL_bw_pn:")
    for kk in range(18):
        for tt in range(2):
            for i in range(3):
                d = ACC + 12*tt + 4*i
                b(f"v_mfma_f32_16x16x32_bf16 {v(d,4)}, {wfrag(kk,i)}, {v(FB + 8*(kk%2) + 4*tt,4)}, {'0' if kk == 0 else v(d,4)}")
                if kk < 17 and tt == 0 and i < 2: b(rd(kk + 1, i))
    b(f"s_mul_i32 s{S_T0}, s{S_WAVE}, 6144\nv_add_u32 v{T}, s{S_T0}, v{A1}\nv_xor_b32 v{XR}, {L_XT[0] ^ L_XT[1]}, v{XR}")
    for n in range(6): b(f"ds_write_b128 v{T}, {v(ACC+4*n,4)} offset:{L_ET + n*1024}")
    b("s_waitcnt lgkmcnt(0)\ns_barrier")
    for n in range(3):
        for hf in range(2): b(f"ds_read_b128 {v(8 + 8*n + 4*hf,4)}, v{EL+n} offset:{hf*256}")
    for n in range(3):
        for k in range(4):
            b(f"v_lshlrev_b32 v{T}, 16, v{RES+4*n+k}\nv_and_b32 v{T+1}, 0xffff0000, v{RES+4*n+k}")
            b(f"v_add_f32 v{T}, v{T}, v{8+8*n+2*k}\nv_add_f32 v{T+1}, v{T+1}, v{8+8*n+2*k+1}")
            b(cvt(RES + 4*n + k, T))
        b(f"buffer_store_dwordx4 {v(RES+4*n,4)}, v{EG+n}, s[{S_XO}:{S_XO+3}], s{S_OWN} offen sc1")
    b(f"""
    s_lshl_b32 s{S_NN}, s{S_LAY}, 6
    s_add_u32 s{S_NN}, s{S_NN}, s{S_SEG}
    s_add_u32 s{S_NN}, s{S_NN}, 1
    s_add_u32 s{S_SEG}, s{S_SEG}, 21
    s_cmp_lt_u32 s{S_SEG}, 64
    s_cbranch_scc1 L_bw_pl
    """)
    signal(b, S_PW, S_NN, T, T+1, code=4)
    b.label("L_bw_pe")

def emit(b, nlayers, lo=2.0**-80, hi=2.0**80):
    b.reset()
    b.label("L_bw")
    b(f"""
    s_and_b32 s{S_H}, s{S_ID}, 31
    s_lshr_b32 s{S_PAR}, s{S_ID}, 5
    s_lshl_b32 s{S_PA}, s{S_ID}, 2
    s_add_u32 s{S_PW}, s{S_PA}, {W.PROG + P_WW}
    s_add_u32 s{S_PA}, s{S_PA}, {W.PROG + P_BW}
    s_mul_i32 s{S_SG}, s{S_ID}, 21846
    s_lshr_b32 s{S_SG}, s{S_SG}, 16
    s_mul_i32 s{S_T0}, s{S_SG}, 3
    s_sub_u32 s{S_CG}, s{S_ID}, s{S_T0}
    s_mul_i32 s{S_T1}, s{S_CG}, 384
    s_mul_i32 s{S_T0}, s{S_WAVE}, 96
    s_add_u32 s{S_T1}, s{S_T1}, s{S_T0}
    s_mov_b32 s{S_LO}, {fhex(lo)}
    s_mov_b32 s{S_HI}, {fhex(hi)}
    """)
    srd(b, S_WG, PT['WO'], 576*1152)
    def main_row(r):
        b(f"v_bfe_u32 v6, v{r}, 3, 1\nv_mul_u32_u24 v6, 18, v6\nv_lshrrev_b32 v7, 4, v{r}\nv_lshl_add_u32 v6, v7, 3, v6\nv_and_b32 v{r}, 7, v{r}\nv_add_u32 v{r}, v{r}, v6")
    def extra_row(r):
        b(f"v_and_b32 v6, 12, v{r}\nv_lshrrev_b32 v7, 4, v{r}\nv_lshl_add_u32 v6, v7, 1, v6\nv_bfe_u32 v7, v{r}, 1, 1\nv_add_u32 v6, v6, v7\nv_mul_u32_u24 v6, 18, v6\nv_and_b32 v{r}, 1, v{r}\nv_add3_u32 v{r}, v{r}, v6, 16")
    ow.row96_addr(b, 8, main_row, S_T1)
    ow.row96_addr(b, 12, extra_row, S_T1)
    ow.load96(b, [(8, kk*36*1152) for kk in range(16)] + [(12, e*16*18*1152) for e in range(2)], wfrag, 16)
    for n in range(3):
        b(f"""
        v_add_u32 v8, {256*n}, v0
        v_mul_u32_u24 v9, 2731, v8
        v_lshrrev_b32 v9, 16, v9
        v_mul_u32_u24 v10, 24, v9
        v_sub_u32 v8, v8, v10
        v_mul_u32_u24 v10, 1152, v9
        v_lshl_add_u32 v10, v8, 4, v10
        s_mul_i32 s{S_T0}, s{S_CG}, 384
        v_add_u32 v{EG+n}, s{S_T0}, v10
        v_mul_u32_u24 v10, 10923, v8
        v_lshrrev_b32 v10, 16, v10
        v_mul_u32_u24 v11, 6, v10
        v_sub_u32 v8, v8, v11
        v_mul_u32_u24 v10, 6144, v10
        v_lshl_add_u32 v10, v8, 9, v10
        v_lshrrev_b32 v11, 4, v9
        v_mul_u32_u24 v11, 3072, v11
        v_and_b32 v9, 15, v9
        v_lshl_add_u32 v10, v9, 4, v10
        v_add_u32 v10, v10, v11
        v_add_u32 v{EL+n}, {L_ET}, v10
        """)
    b(f"""
    v_and_b32 v8, 63, v0
    v_lshlrev_b32 v{A1}, 4, v8
    v_and_b32 v9, 31, v8
    v_lshrrev_b32 v10, 5, v8
    v_lshlrev_b32 v11, 2, v9
    v_add_u32 v{K2B}, 1024, v11
    v_mov_b32 v12, {OOB}
    v_cmp_gt_u32 vcc, 32, v8
    v_cndmask_b32 v{OBX}, v12, v11, vcc
    v_mul_u32_u24 v11, 18, v10
    v_add_u32 v11, v11, v9
    v_lshlrev_b32 v11, 4, v11
    v_add_u32 v11, 1152, v11
    v_mov_b32 v12, {L_ONE}
    v_mov_b32 v13, 2304
    v_cmp_gt_u32 vcc, 18, v9
    v_cndmask_b32 v{VB}, v12, v11, vcc
    v_cndmask_b32 v{VS}, 0, v13, vcc
    v_lshlrev_b32 v{VS8}, 3, v{VS}
    v_mul_u32_u24 v11, 1152, v10
    v_bfe_u32 v13, v8, 4, 1
    v_lshl_add_u32 v11, v13, 9, v11
    v_and_b32 v13, 15, v8
    v_lshl_add_u32 v{DM}, v13, 4, v11
    v_and_b32 v11, 3, v8
    v_mul_u32_u24 v11, 1152, v11
    v_and_b32 v13, 60, v8
    v_add_u32 v11, v11, v13
    v_add_u32 v{DX}, 1024, v11
    v_mov_b32 v16, s{S_ONE}
    v_mov_b32 v17, s{S_ONE}
    v_mov_b32 v18, s{S_ONE}
    v_mov_b32 v19, s{S_ONE}
    ds_write_b128 v12, v[16:19]
    ds_write_b128 v12, v[16:19] offset:576
    ds_write_b128 v12, v[16:19] offset:9216
    ds_write_b128 v12, v[16:19] offset:9792
    v_mov_b32 v{K2+1}, 0
    v_mov_b32 v{QN2+1}, 0
    v_mov_b32 v{QN3}, 0
    s_mov_b32 s{S_LAY}, 0
    """)
    for r in range(176): b(f"v_accvgpr_write_b32 a{r}, 0")
    b("s_waitcnt lgkmcnt(0)")
    srd(b, S_XI, PT['WS'], XB, W.X1); srd(b, S_XO, PT['WS'], XB, W.X2)
    wait_init(b, T, T+1)
    b.label("L_bw_layer")
    b(f"s_mov_b32 s{S_SEG}, 0\ns_mov_b32 s{S_NX}, 0")
    b(f"""
    v_lshrrev_b32 v8, 7, v{A1}
    s_lshl_b32 s{S_T0}, s{S_WAVE}, 3
    v_add_u32 v8, s{S_T0}, v8
    v_mul_u32_u24 v8, 2304, v8
    v_and_b32 v9, 127, v{A1}
    v_add_u32 v8, v8, v9
    v_add_u32 v9, {32*2304}, v8
    v_add_u32 v10, {36*2304}, v8
    v_mov_b64 v[12:13], 0
    v_mov_b64 v[14:15], 0
    ds_write_b128 v8, v[12:15] offset:1024
    ds_write_b128 v9, v[12:15] offset:1024
    ds_write_b128 v10, v[12:15] offset:1024
    s_waitcnt lgkmcnt(0)
    s_barrier
    """)
    b.label("L_bw_loop")
    segment(b)
    truemax(b)
    request(b)
    prequest(b)
    b.reset()
    b.label("L_bw_next")
    trace(b, 5, T)
    b(f"s_add_u32 s{S_SEG}, s{S_SEG}, 1\ns_cmp_lt_u32 s{S_SEG}, 64\ns_cbranch_scc1 L_bw_loop")
    finish(b)
    project(b)
    b(f"s_add_u32 s{S_LAY}, s{S_LAY}, 1\ns_cmp_ge_u32 s{S_LAY}, {nlayers}\ns_cbranch_scc1 L_end")
    srd(b, S_XI, PT['WS'], XB, W.X3); srd(b, S_XO, PT['OUT'], XB)
    b("s_branch L_bw_layer")
```

```python
import struct, math
def v(b, n=1): return "v%d" % b if n == 1 else "v[%d:%d]" % (b, b+n-1)
def a(b, n=1): return "a%d" % b if n == 1 else "a[%d:%d]" % (b, b+n-1)
def s(b, n=1): return "s%d" % b if n == 1 else "s[%d:%d]" % (b, b+n-1)
def fhex(x): return hex(struct.unpack('<I', struct.pack('<f', x))[0])
def cvt(d, x): return f"v_cvt_pk_bf16_f32 v{d}, v{x}, v{x+1}"

PT = dict(X=64, MEM0=66, Q=68, K=70, V=72, O=74, WQKV=80, WO=82, OUT=84, DBG=86, WS=88)

XB = 2048*576*2
class W:
    TEAM = 0
    PROG = 0x60000
    ARCH = 0x61000
    X1 = ARCH + 2*64*9216
    X2 = X1 + XB
    X3 = X2 + XB
    OB = X3 + XB
    QB = OB + 2*XB
    QB_L = 64*32*3584
    O = QB + 2*QB_L
    O_L = 64*2*32*4096
    KV = O + 2*O_L
    KV_L = 64*32*16384
    TRACE = KV + 2*KV_L
    END = TRACE + 256*8192
P_TEAM, P_HWP, P_HWF, P_OW, P_QW, P_BW, P_WW = 0, 128, 512, 896, 1152, 1408, 1664
D_T0, D_SLOW, D_TB, D_TW = 0, 4, 8, 128

N_HW, N_OW, N_QW, N_BW = 96, 48, 16, 64
OOB = 0x40000000
TIMEOUT = 400000
LDS_BYTES = 163840

S_WAVE, S_ID = 20, 21
S_WS = 12
S_XI = 16
S_XO = 24
S_WG = 28
S_LAY, S_SEG, S_NEED = 32, 33, 38
S_T0, S_T1, S_T2, S_TO = 34, 35, 36, 37
S_ONE = 39

def srd(b, r, ptr, nbytes, off=None):
    if off is None:
        b(f"s_mov_b32 s{r}, s{ptr}\ns_mov_b32 s{r+1}, s{ptr+1}")
    else:
        b(f"s_add_u32 s{r}, s{ptr}, {off}\ns_addc_u32 s{r+1}, s{ptr+1}, 0")
    b(f"s_mov_b32 s{r+2}, {nbytes}\ns_mov_b32 s{r+3}, 0x20000")

TRACE_ON = [False]
S_TR = 90
def trace_init(b, gid):
    if not TRACE_ON[0]: return
    b(f"s_lshl_b32 s{S_TR}, s{gid}, 13")
    srd(b, 96, PT['WS'], 256*8192, W.TRACE)
def trace(b, code, t0, wave=0, check=True):
    if not TRACE_ON[0]: return
    L = uid("t")
    if check: b(f"s_cmp_lg_u32 s{S_WAVE}, {wave}\ns_cbranch_scc1 {L}")
    b(f"""
    s_memrealtime s[92:93]
    s_waitcnt lgkmcnt(0)
    v_mov_b32 v{t0}, {code}
    v_mov_b32 v{t0+1}, s92
    s_mov_b64 exec, 1
    buffer_store_dwordx2 {v(t0,2)}, off, s[96:99], s{S_TR}
    s_mov_b64 exec, -1
    s_add_u32 s{S_TR}, s{S_TR}, 8
    {L}:
    """)
    b.vm = [x for x in b.vm if "s[96:99]" not in x.text]

_uid = [0]
def uid(p):
    _uid[0] += 1
    return f"L_{p}{_uid[0]}"

def wait_words(b, va, so, need, tmp, sleep=2, code=1):
    L = uid("w")
    b.label(L)
    b(f"""
    buffer_load_dword v{tmp}, v{va}, s[{S_WS}:{S_WS+3}], s{so} offen sc1
    s_add_u32 s{S_TO}, s{S_TO}, 1
    s_waitcnt vmcnt(0)
    v_cmp_gt_u32 vcc, s{need}, v{tmp}
    s_cbranch_vccz {L}_d
    s_sleep {sleep}
    s_cmp_lt_u32 s{S_TO}, {TIMEOUT}
    s_cbranch_scc1 {L}
    {L}_d:
    """)
    trace(b, code, va)

def signal(b, so, val, t0, t1, barrier=True, code=2):
    L = uid("s")
    if barrier: b("s_waitcnt vmcnt(0) lgkmcnt(0)\ns_barrier")
    vm = list(b.vm)
    b(f"""
    s_cmp_lg_u32 s{S_WAVE}, 0
    s_cbranch_scc1 {L}
    v_mov_b32 v{t0}, s{val}
    v_mov_b32 v{t1}, 0
    s_mov_b64 exec, 1
    buffer_store_dword v{t0}, v{t1}, s[{S_WS}:{S_WS+3}], s{so} offen sc1
    s_mov_b64 exec, -1
    {L}:
    """)
    trace(b, code, t0)
    b.vm = vm

def wait_init(b, t0, t1):
    L = uid("i")
    b.label(L)
    b(f"""
    v_mov_b32 v{t0}, 0
    global_load_dword v{t1}, v{t0}, s[{PT['DBG']}:{PT['DBG']+1}] offset:{D_T0} sc1
    global_load_dword v{t0}, v{t0}, s[{PT['DBG']}:{PT['DBG']+1}] offset:{D_TW} sc1
    s_add_u32 s{S_TO}, s{S_TO}, 1
    s_waitcnt vmcnt(0)
    v_min_u32 v{t1}, 32, v{t1}
    v_add_u32 v{t1}, v{t1}, v{t0}
    v_cmp_gt_u32 vcc, 256, v{t1}
    s_cbranch_vccz {L}_d
    s_sleep 4
    s_cmp_lt_u32 s{S_TO}, {TIMEOUT}
    s_cbranch_scc1 {L}
    {L}_d:
    """)
    trace(b, 9, t0)

def layernorm(b, raw, T, perm, lds_addr, lds_off, lds_step):
    S, Q = T, T+1
    for i in range(36):
        b(f"v_dot2_f32_bf16 v{S}, v{raw+i}, s{S_ONE}, {'0' if i == 0 else v(S)}")
        b(f"v_dot2_f32_bf16 v{Q}, v{raw+i}, v{raw+i}, {'0' if i == 0 else v(Q)}")
    for ctl in ("quad_perm:[1,0,3,2]", "quad_perm:[2,3,0,1]", "row_half_mirror"):
        b(f"v_add_f32_dpp v{S}, v{S}, v{S} {ctl} row_mask:0xf bank_mask:0xf")
        b(f"v_add_f32_dpp v{Q}, v{Q}, v{Q} {ctl} row_mask:0xf bank_mask:0xf")
    b(f"""
    v_mul_f32 v{S}, {fhex(1/576)}, v{S}
    v_mul_f32 v{T+2}, v{S}, v{S}
    v_mul_f32 v{Q}, {fhex(1/576)}, v{Q}
    v_sub_f32 v{Q}, v{Q}, v{T+2}
    v_max_f32 v{Q}, 0, v{Q}
    v_add_f32 v{Q}, {fhex(1e-5)}, v{Q}
    v_rsq_f32 v{T+2}, v{Q}
    v_mul_f32 v{S}, v{S}, v{T+2}
    v_sub_f32 v{S}, 0, v{S}
    """)
    for f in range(9):
        for hlf in range(2):
            d0, d1 = raw + 4*f + 2*hlf, raw + 4*f + 2*hlf + 1
            if perm:
                b(f"v_lshlrev_b32 v{T+4}, 16, v{d0}\nv_lshlrev_b32 v{T+5}, 16, v{d1}\nv_and_b32 v{T+6}, 0xffff0000, v{d0}\nv_and_b32 v{T+7}, 0xffff0000, v{d1}")
            else:
                b(f"v_lshlrev_b32 v{T+4}, 16, v{d0}\nv_and_b32 v{T+5}, 0xffff0000, v{d0}\nv_lshlrev_b32 v{T+6}, 16, v{d1}\nv_and_b32 v{T+7}, 0xffff0000, v{d1}")
            b(f"v_pk_fma_f32 {v(T+4,2)}, {v(T+4,2)}, {v(T+2,2)}, {v(T,2)} op_sel_hi:[1,0,0]")
            b(f"v_pk_fma_f32 {v(T+6,2)}, {v(T+6,2)}, {v(T+2,2)}, {v(T,2)} op_sel_hi:[1,0,0]")
            b(cvt(d0, T+4)); b(cvt(d1, T+6))
        b(f"ds_write_b128 v{lds_addr}, {v(raw+4*f,4)} offset:{lds_off + f*lds_step}")

def row_addr(b, dst, lane, t):
    b(f"""
    v_lshrrev_b32 v{t}, 3, v{lane}
    s_lshl_b32 s{S_T0}, s{S_WAVE}, 3
    v_add_u32 v{t}, s{S_T0}, v{t}
    v_mul_u32_u24 v{t}, 1152, v{t}
    v_and_b32 v{dst}, 7, v{lane}
    v_lshl_add_u32 v{dst}, v{dst}, 4, v{t}
    """)
```

```python
from common import *
R = 3
L_XT, L_MT, L_KM, L_VM, L_RAW, L_RING, SLOT, NSLOT = 0, 36864, 46080, 50176, 54272, 91136, 24576, 2
L_W, PIECE = 16384, 36864
S_H, S_R, S_PS, S_FS, S_PSL, S_FSL, S_C = 40, 41, 42, 43, 44, 45, 46
S_PA, S_PB = 47, 48
S_RET = 50
S_PEND = 49
A1, XA, MA, MD = 0, 1, 2, 3
FB, ACC, T = 8, 24, 72
def wfrag(X, i, kk):
    n = ("QKV".index(X)*9 + kk//2)*2 + i
    r = 8*n + 4*(kk % 2)
    return a(r, 4) if r < 256 else v(80 + r - 256, 4)

def load_weights(b):
    b(f"""
    v_and_b32 v24, 63, v0
    v_lshrrev_b32 v25, 4, v24
    s_lshl_b32 s{S_T0}, s{S_WAVE}, 4
    v_add_u32 v26, s{S_T0}, v25
    v_lshlrev_b32 v26, 13, v26
    s_lshl_b32 s{S_T0}, s{S_H}, 8
    v_add_u32 v26, s{S_T0}, v26
    v_lshlrev_b32 v27, 1, v25
    v_and_b32 v40, 15, v24
    v_xor_b32 v27, v27, v40
    """)
    for q in range(4):
        b(f"v_xor_b32 v41, {8*(q>>1)}, v27\nv_lshl_add_u32 v41, v41, 4, v26\nv_add_u32 v{28+q}, {4*q*8192}, v41")
    b(f"""
    v_bfe_u32 v40, v24, 2, 1       ; rp&1
    v_bfe_u32 v41, v24, 3, 1       ; rp>>1
    v_bfe_u32 v42, v24, 4, 1       ; gb&1
    v_bfe_u32 v43, v24, 5, 1       ; gb>>1
    v_and_b32 v44, 3, v24
    v_lshlrev_b32 v44, 3, v44
    v_add_u32 v44, {L_W}, v44
    v_lshl_add_u32 v46, v40, 1, v41
    v_lshl_add_u32 v45, v42, 3, v46
    v_lshl_add_u32 v45, v45, 8, v44
    v_mul_u32_u24 v47, {PIECE}, v43
    v_add_u32 v45, v45, v47
    v_lshl_add_u32 v46, v42, 2, v46      ; swizzle
    s_lshl_b32 s{S_T0}, s{S_WAVE}, 1
    v_xor_b32 v46, s{S_T0}, v46
    v_lshl_add_u32 v48, v46, 5, v45
    v_xor_b32 v46, 1, v46
    v_lshl_add_u32 v50, v46, 5, v45
    v_add_u32 v49, {2*PIECE}, v48
    v_add_u32 v51, {2*PIECE}, v50
    s_mul_i32 s{S_T2}, s{S_WAVE}, {PIECE}
    s_add_u32 s{S_T2}, s{S_T2}, {L_W}
    s_mov_b32 s{S_WG+2}, {576*8192}
    s_mov_b32 s{S_WG+3}, 0x20000
    """)
    seq = [(X, j) for X in "KVQ" for j in range(9)]
    def dma(t):
        X, j = seq[t]
        if j == 0: b(f"s_mov_b32 s{S_WG}, s{PT[X]}\ns_mov_b32 s{S_WG+1}, s{PT[X]+1}")
        b(f"s_mov_b32 s{S_T0}, {j*64*8192}")
        for q in range(4):
            b(f"s_add_u32 m0, s{S_T2}, {(t % 9)*4096 + q*1024}")
            b(f"buffer_load_dwordx4 v{28+q}, s[{S_WG}:{S_WG+3}], s{S_T0} offen lds")
    for t in range(9): dma(t)
    for t in range(27):
        X, j = seq[t]
        issued = min(27, max(9, t + 8))
        b(f"s_waitcnt vmcnt({4*(issued - t - 1)}) lgkmcnt(0)\ns_barrier")
        if t >= 1 and t + 8 < 27: dma(t + 8)
        for i in range(2):
            for hb in range(2):
                f = wfrag(X, i, 2*j + hb); k, r = f[0], int(f[2:f.index(':')])
                for aa in range(2):
                    b(f"ds_read_b64_tr_b16 {k}[{r+2*aa}:{r+2*aa+1}], v{48 + 2*i + hb} offset:{(t % 9)*4096 + aa*1024}")
    b("s_waitcnt lgkmcnt(0)\ns_barrier")

def prefetch(b):
    L = uid("hp")
    b(f"s_cmp_eq_u32 s{S_LAY}, 0\ns_cbranch_scc1 {L}")
    b(f"""
    s_mul_i32 s{S_T0}, s{S_PS}, 3121
    s_lshr_b32 s{S_T0}, s{S_T0}, 16
    s_mul_i32 s{S_T0}, s{S_T0}, 21
    s_sub_u32 s{S_T0}, s{S_PS}, s{S_T0}
    s_mul_i32 s{S_T0}, s{S_T0}, 12
    s_add_u32 s{S_T0}, s{S_T0}, {W.PROG + P_WW}
    s_add_u32 s{S_NEED}, s{S_PS}, 1
    v_lshrrev_b32 v4, 2, v{A1}
    v_min_u32 v4, 8, v4
    """)
    wait_words(b, 4, S_T0, S_NEED, 5, 1)
    b.label(L)
    b(f"s_mul_i32 s{S_T0}, s{S_PS}, 36864\ns_mul_i32 s{S_T1}, s{S_WAVE}, 9216")
    for i in range(9):
        b(f"s_add_u32 m0, s{S_T1}, {L_RAW + i*1024 - i*128}")
        b(f"buffer_load_dwordx4 v{XA}, s[{S_XI}:{S_XI+3}], s{S_T0} offen offset:{128*i} sc1 lds")

def stage_p(b):
    L = uid("hq")
    b(f"""
    s_mul_i32 s{S_T1}, s{S_WAVE}, 9216
    s_add_u32 s{S_T1}, s{S_T1}, {L_RAW}
    v_add_u32 v4, s{S_T1}, v{A1}
    s_cmp_eq_u32 s{S_PEND}, 0
    s_cbranch_scc0 {L}a
    s_waitcnt vmcnt(0)
    {L}a:
    s_waitcnt vmcnt(2)
    """)
    for i in range(9): b(f"ds_read_b128 {v(ACC+4*i,4)}, v4 offset:{i*1024}")
    b(f"""
    v_bfe_u32 v5, v{A1}, 4, 3
    v_lshrrev_b32 v6, 7, v{A1}
    v_xor_b32 v6, v6, v5
    v_lshlrev_b32 v6, 4, v6
    v_lshl_add_u32 v6, v5, 8, v6
    s_and_b32 s{S_T0}, s{S_WAVE}, 1
    s_lshl_b32 s{S_T0}, s{S_T0}, 7
    s_lshr_b32 s{S_T1}, s{S_WAVE}, 1
    s_mul_i32 s{S_T1}, s{S_T1}, 18432
    s_add_u32 s{S_T0}, s{S_T0}, s{S_T1}
    v_add_u32 v6, s{S_T0}, v6
    """)
    layernorm(b, ACC, T, True, 6, L_XT, 2048)
    b(f"""
    v_lshrrev_b32 v6, 8, v{A1}
    v_lshlrev_b32 v6, 4, v6
    v_xor_b32 v6, v6, v{A1}
    v_xor_b32 v7, 64, v6
    s_waitcnt vmcnt(0) lgkmcnt(0)
    s_barrier
    s_cmp_eq_u32 s{S_PEND}, 0
    s_cbranch_scc1 {L}b
    """)
    signal(b, S_PB, S_PEND, 4, 5, barrier=False, code=4)
    b(f"s_mov_b32 s{S_PEND}, 0")
    b.label(L + "b")
    rd = lambda kk, tt: f"ds_read_b128 {v(FB + 8*(kk%2) + 4*tt,4)}, v{6 + kk%2} offset:{L_XT + tt*18432 + kk*1024}"
    def gemm(XS, extra):
        for kk in range(18):
            n = 0
            for X in XS:
                for tt in range(2):
                    for i in range(2):
                        x = v(FB + 8*(kk%2) + 4*tt, 4); wf = wfrag(X, i, kk)
                        if X == 'V': d, A, B = ACC + 32 + 8*i + 4*tt, x, wf
                        else: d, A, B = ACC + (16 if X == 'K' else 0) + 8*tt + 4*i, wf, x
                        b(f"v_mfma_f32_16x16x32_bf16 {v(d,4)}, {A}, {B}, {'0' if kk == 0 else v(d,4)}")
                        if n in (0, 1) and (kk < 17 or XS != "Q"): b(rd((kk + 1) % 18, n))
                        elif kk >= 1:
                            for _ in range(2):
                                if extra: b(extra.pop(0))
                        n += 1
        for x in extra: b(x)
    b(rd(0, 0)); b(rd(0, 1))
    gemm("KV", [])
    b(f"""
    s_lshl_b32 s{S_T0}, s{S_PS}, 19
    s_lshl_b32 s{S_T1}, s{S_H}, 14
    s_add_u32 s{S_T0}, s{S_T0}, s{S_T1}
    s_lshl_b32 s{S_T1}, s{S_WAVE}, 12
    s_add_u32 s{S_T0}, s{S_T0}, s{S_T1}
    s_mul_i32 s{S_T1}, s{S_LAY}, {W.KV_L}
    s_add_u32 s{S_T0}, s{S_T0}, s{S_T1}
    s_add_u32 s{S_T0}, s{S_T0}, {W.KV}
    s_lshl_b32 s{S_T1}, s{S_WAVE}, 11
    s_add_u32 s{S_T1}, s{S_T1}, s{S_PSL}
    v_add_u32 v4, s{S_T1}, v{A1}
    """)
    for f in (2, 3, 4, 5):
        d = ACC + 8*f
        if f < 4:
            for r in range(8): b(f"v_mul_f32 v{d+r}, s{S_C}, v{d+r}")
        for k in range(4): b(cvt(d + k, d + 2*k))
        b(f"buffer_store_dwordx4 {v(d,4)}, v{A1}, s[{S_WS}:{S_WS+3}], s{S_T0} offen offset:{(f-2)*1024} sc1")
    gemm("Q", [f"ds_write_b128 v4, {v(ACC+8*f,4)} offset:{(f//2)*8192 + (f%2)*1024}" for f in (2, 3, 4, 5)])
    b(f"s_lshl_b32 s{S_T1}, s{S_LAY}, 6\ns_add_u32 s{S_T1}, s{S_T1}, s{S_PS}\ns_add_u32 s{S_T1}, s{S_T1}, 1")
    for f in (0, 1):
        d = ACC + 8*f
        for k in range(4): b(cvt(d + k, d + 2*k))
        b(f"ds_write_b128 v4, {v(d,4)} offset:{f*1024}")
    signal(b, S_PA, S_T1, 4, 5)
    b(f"""
    s_add_u32 s{S_PS}, s{S_PS}, {R}
    s_add_u32 s{S_PSL}, s{S_PSL}, {SLOT}
    s_cmp_eq_u32 s{S_PSL}, {L_RING + NSLOT*SLOT}
    s_cselect_b32 s{S_PSL}, {L_RING}, s{S_PSL}
    """)

def stage_f(b):
    L = uid("hf")
    b(f"""
    s_lshl_b32 s{S_NEED}, s{S_LAY}, 6
    s_add_u32 s{S_NEED}, s{S_NEED}, s{S_FS}
    s_mul_i32 s{S_T1}, s{S_NEED}, 9216
    s_add_u32 s{S_NEED}, s{S_NEED}, 1
    s_mov_b32 s{S_T0}, {W.PROG + P_TEAM}
    v_lshrrev_b32 v4, 2, v{A1}
    v_and_b32 v4, 127, v4
    """)
    wait_words(b, 4, S_T0, S_NEED, 5, 1, code=3)
    b(f"""
    s_lshl_b32 s{S_T0}, s{S_WAVE}, 10
    s_add_u32 s{S_T1}, s{S_T1}, s{S_T0}
    s_add_u32 s{S_T1}, s{S_T1}, {W.ARCH}
    s_add_u32 m0, s{S_T0}, {L_MT}
    buffer_load_dwordx4 v{A1}, s[{S_WS}:{S_WS+3}], s{S_T1} offen sc1 lds
    s_add_u32 s{S_T1}, s{S_T1}, 4096
    s_add_u32 m0, s{S_T0}, {L_MT + 4096}
    buffer_load_dwordx4 v{A1}, s[{S_WS}:{S_WS+3}], s{S_T1} offen sc1 lds
    s_cmp_lg_u32 s{S_WAVE}, 0
    s_cbranch_scc1 {L}
    s_add_u32 s{S_T1}, s{S_T1}, 4096
    s_mov_b32 m0, {L_MT + 8192}
    buffer_load_dwordx4 v{A1}, s[{S_WS}:{S_WS+3}], s{S_T1} offen sc1 lds
    {L}:
    s_mov_b32 s{S_PEND}, s{S_NEED}
    s_cmp_lt_u32 s{S_PS}, 64
    s_cbranch_scc1 {L}p
    s_waitcnt vmcnt(0)
    s_branch {L}q
    {L}p:
    s_call_b64 s[{S_RET}:{S_RET+1}], L_hw_pre
    s_waitcnt vmcnt(9)
    {L}q:
    s_barrier
    """)
    b.vm = []
    rd = lambda kk: f"ds_read_b128 {v(FB + 4*(kk%4),4)}, v{MA} offset:{kk*512}"
    for kk in range(3): b(rd(kk))
    for kk in range(18):
        x = v(FB + 4*(kk%4), 4)
        for n, (X, i) in enumerate([('K',0),('K',1),('V',0),('V',1)]):
            d = ACC + 4*n; wf = wfrag(X, i, kk)
            A, B = (wf, x) if X == 'K' else (x, wf)
            b(f"v_mfma_f32_16x16x32_bf16 {v(d,4)}, {A}, {B}, {'0' if kk == 0 else v(d,4)}")
            if n == 0 and kk + 3 < 18: b(rd(kk + 3))
    QF, S0, KF = 40, 56, 8
    b(f"""
    s_and_b32 s{S_T0}, s{S_WAVE}, 1
    s_lshl_b32 s{S_T0}, s{S_T0}, 10
    s_add_u32 s{S_T0}, s{S_T0}, s{S_FSL}
    v_add_u32 v4, s{S_T0}, v{A1}
    v_add_u32 v5, s{S_FSL}, v{A1}
    s_lshl_b32 s{S_T0}, s{S_WAVE}, 10
    v_add_u32 v6, s{S_T0}, v{A1}
    """)
    for wq in range(4): b(f"ds_read_b128 {v(QF+4*wq,4)}, v4 offset:{wq*2048}")
    for r in range(8): b(f"v_mul_f32 v{ACC+r}, s{S_C}, v{ACC+r}")
    for k in range(4): b(cvt(ACC + k, ACC + 2*k))
    for k in range(4): b(cvt(ACC + 8 + k, ACC + 8 + 2*k))
    b(f"ds_write_b128 v6, {v(ACC,4)} offset:{L_KM}\nds_write_b128 v6, {v(ACC+8,4)} offset:{L_VM}")
    for n in range(2):
        for wq in range(4): b(f"ds_read_b128 {v((KF if n == 0 else ACC)+4*wq,4)}, v5 offset:{8192 + wq*2048 + n*1024}")
    for n in range(2):
        for wq in range(4):
            d = S0 + 4*n
            b(f"v_mfma_f32_16x16x32_bf16 {v(d,4)}, {v((KF if n == 0 else ACC)+4*wq,4)}, {v(QF+4*wq,4)}, {'0' if wq == 0 else v(d,4)}")
    b("s_waitcnt lgkmcnt(0)\ns_barrier")
    for wq in range(4): b(f"ds_read_b128 {v(KF+4*wq,4)}, v{A1} offset:{L_KM + wq*1024}")
    b(f"""
    s_lshr_b32 s{S_T0}, s{S_WAVE}, 1
    s_lshl_b32 s{S_T1}, s{S_T0}, 12
    v_add_u32 v5, s{S_T1}, v5
    s_lshl_b32 s{S_T1}, s{S_T0}, 11
    v_add_u32 v6, s{S_T1}, v{A1}
    """)
    for k in range(4): b(f"ds_read_b128 {v(ACC+4*k,4)}, v5 offset:{16384 + k*1024}")
    for wq in range(4):
        d = S0 + 8
        b(f"v_mfma_f32_16x16x32_bf16 {v(d,4)}, {v(KF+4*wq,4)}, {v(QF+4*wq,4)}, {'0' if wq == 0 else v(d,4)}")
    for k in range(2): b(f"ds_read_b128 {v(KF+4*k,4)}, v6 offset:{L_VM + k*1024}")
    b(f"v_mov_b32 v7, 0xff800000")
    for n in range(2):
        for r in range(4):
            b(f"v_cmp_le_i32 vcc, {16*n + r}, v{MD}\nv_cndmask_b32 v{S0+4*n+r}, v7, v{S0+4*n+r}, vcc")
    b(f"v_cmp_gt_u32 vcc, 512, v{A1}")
    for r in range(4): b(f"v_cndmask_b32 v{S0+8+r}, v7, v{S0+8+r}, vcc")
    M = T
    b(f"v_max3_f32 v{M}, v{S0}, v{S0+1}, v{S0+2}")
    for r in range(3, 11, 2): b(f"v_max3_f32 v{M}, v{M}, v{S0+r}, v{S0+r+1}")
    b(f"v_max_f32 v{M}, v{M}, v{S0+11}")
    for sw in ("16", "32"):
        b(f"v_mov_b32 v{M+1}, v{M}\nv_permlane{sw}_swap_b32 v{M}, v{M+1}\nv_max_f32 v{M}, v{M}, v{M+1}")
    for r in range(12): b(f"v_sub_f32 v{S0+r}, v{S0+r}, v{M}")
    for r in range(12): b(f"v_exp_f32 v{S0+r}, v{S0+r}")
    b(f"v_add_f32 v{M}, v{S0}, v{S0+1}")
    for r in range(2, 12): b(f"v_add_f32 v{M}, v{M}, v{S0+r}")
    for sw in ("16", "32"):
        b(f"v_mov_b32 v{M+1}, v{M}\nv_permlane{sw}_swap_b32 v{M}, v{M+1}\nv_add_f32 v{M}, v{M}, v{M+1}")
    b(f"v_rcp_f32 v{M}, v{M}")
    for r in range(12): b(f"v_mul_f32 v{S0+r}, v{S0+r}, v{M}")
    for k in range(6): b(cvt(S0 + k, S0 + 2*k))
    OD = QF
    for k in range(4): b(f"v_mfma_f32_16x16x32_bf16 {v(OD+4*k,4)}, {v(ACC+4*k,4)}, {v(S0,4)}, 0")
    for k in range(4): b(f"v_mfma_f32_16x16x16_bf16 {v(OD+4*k,4)}, {v(KF+2*k,2)}, {v(S0+4,2)}, {v(OD+4*k,4)}")
    b(f"""
    s_lshl_b32 s{S_T0}, s{S_FS}, 1
    s_and_b32 s{S_T1}, s{S_WAVE}, 1
    s_add_u32 s{S_T0}, s{S_T0}, s{S_T1}
    s_lshl_b32 s{S_T0}, s{S_T0}, 5
    s_add_u32 s{S_T0}, s{S_T0}, s{S_H}
    s_lshl_b32 s{S_T0}, s{S_T0}, 12
    s_lshr_b32 s{S_T1}, s{S_WAVE}, 1
    s_lshl_b32 s{S_T1}, s{S_T1}, 11
    s_add_u32 s{S_T0}, s{S_T0}, s{S_T1}
    s_mul_i32 s{S_T1}, s{S_LAY}, {W.O_L}
    s_add_u32 s{S_T0}, s{S_T0}, s{S_T1}
    s_add_u32 s{S_T0}, s{S_T0}, {W.O}
    """)
    for f in range(2):
        d = OD + 8*f
        for k in range(4): b(cvt(d + k, d + 2*k))
        b(f"buffer_store_dwordx4 {v(d,4)}, v{A1}, s[{S_WS}:{S_WS+3}], s{S_T0} offen offset:{f*1024} sc1")
    b(f"s_cmp_lt_u32 s{S_PS}, 64\ns_cbranch_scc1 {L}z")
    signal(b, S_PB, S_PEND, 4, 5, code=4)
    b(f"s_mov_b32 s{S_PEND}, 0")
    b.label(L + "z")
    b.vm = []
    b(f"""
    s_add_u32 s{S_FS}, s{S_FS}, {R}
    s_add_u32 s{S_FSL}, s{S_FSL}, {SLOT}
    s_cmp_eq_u32 s{S_FSL}, {L_RING + NSLOT*SLOT}
    s_cselect_b32 s{S_FSL}, {L_RING}, s{S_FSL}
    """)

def emit(b, nlayers):
    b.reset()
    b.label("L_hw")
    b(f"""
    s_and_b32 s{S_H}, s{S_ID}, 31
    s_lshr_b32 s{S_R}, s{S_ID}, 5
    s_lshl_b32 s{S_PA}, s{S_ID}, 2
    s_add_u32 s{S_PB}, s{S_PA}, {W.PROG + P_HWF}
    s_add_u32 s{S_PA}, s{S_PA}, {W.PROG + P_HWP}
    s_mov_b32 s{S_C}, {fhex(128**-0.5 * math.log2(math.e))}
    """)
    load_weights(b)
    b(f"""
    v_and_b32 v24, 63, v0
    v_lshlrev_b32 v{A1}, 4, v24
    v_and_b32 v25, 15, v24
    v_lshrrev_b32 v26, 4, v24
    s_and_b32 s{S_T0}, s{S_WAVE}, 1
    s_lshl_b32 s{S_T0}, s{S_T0}, 4
    v_add_u32 v27, s{S_T0}, v25
    v_lshlrev_b32 v28, 2, v26
    v_sub_u32 v{MD}, v27, v28
    v_and_b32 v27, 7, v25
    v_lshlrev_b32 v27, 5, v27
    v_lshrrev_b32 v28, 1, v26
    v_lshl_add_u32 v27, v28, 8, v27
    v_and_b32 v28, 1, v26
    v_lshl_add_u32 v27, v28, 4, v27
    v_add_u32 v{MA}, {L_MT}, v27
    s_mov_b32 s{S_LAY}, 0
    """)
    row_addr(b, XA, 24, 27)
    b(f"s_mov_b32 s{S_PEND}, 0")
    srd(b, S_XI, PT['X'], XB)
    wait_init(b, 4, 5)
    b.label("L_hw_layer")
    b(f"s_mov_b32 s{S_PS}, s{S_R}\ns_mov_b32 s{S_FS}, s{S_R}\ns_mov_b32 s{S_PSL}, {L_RING}\ns_mov_b32 s{S_FSL}, {L_RING}")
    b.label("L_hw_first")
    b(f"s_call_b64 s[{S_RET}:{S_RET+1}], L_hw_pre")
    b.label("L_hw_loop")
    b(f"s_cmp_ge_u32 s{S_PS}, 64\ns_cbranch_scc1 L_hw_f")
    stage_p(b)
    b(f"s_sub_u32 s{S_T0}, s{S_PS}, s{S_FS}\ns_cmp_lt_u32 s{S_T0}, {2*R}\ns_cbranch_scc1 L_hw_first")
    b.label("L_hw_f")
    stage_f(b)
    b(f"s_cmp_lt_u32 s{S_FS}, 64\ns_cbranch_scc1 L_hw_loop")
    b(f"s_add_u32 s{S_LAY}, s{S_LAY}, 1\ns_cmp_ge_u32 s{S_LAY}, {nlayers}\ns_cbranch_scc1 L_end")
    srd(b, S_XI, PT['WS'], XB, W.X2)
    b("s_branch L_hw_layer")
    b.reset()
    b.label("L_hw_pre")
    prefetch(b)
    b(f"s_setpc_b64 s[{S_RET}:{S_RET+1}]")
```

```python
from common import *
S_GRP, S_HH, S_PA, S_C = 40, 41, 42, 43
A1, XA, VA, EA, EM, WA, RA = 0, 1, 2, 3, 6, 7, 8
FB, ACC, T, EX = 12, 28, 72, 80
L_XT = 0
def wfrag(m, kk):
    r = 4*(m*36 + kk)
    return a(r, 4) if r < 256 else v(128 + r - 256, 4)

def emit(b, nlayers):
    b.reset()
    b.label("L_qw")
    b(f"""
    s_lshr_b32 s{S_GRP}, s{S_ID}, 3
    s_and_b32 s{S_T0}, s{S_ID}, 7
    s_lshl_b32 s{S_PA}, s{S_GRP}, 5
    s_add_u32 s{S_PA}, s{S_PA}, s{S_T0}
    s_lshl_b32 s{S_PA}, s{S_PA}, 2
    s_add_u32 s{S_PA}, s{S_PA}, {W.PROG + P_QW}
    s_lshl_b32 s{S_HH}, s{S_T0}, 2
    s_add_u32 s{S_HH}, s{S_HH}, s{S_WAVE}
    s_mov_b32 s{S_C}, {fhex(18**-0.5 * math.log2(math.e))}
    v_and_b32 v24, 63, v0
    v_lshrrev_b32 v25, 4, v24
    v_mul_u32_u24 v25, 3456, v25
    s_mul_i32 s{S_T0}, s{S_HH}, 36
    v_add_u32 v25, s{S_T0}, v25
    v_and_b32 v26, 7, v24
    v_lshl_add_u32 v27, v26, 2, v25
    v_bfe_u32 v26, v24, 3, 1
    v_mul_u32_u24 v26, 1152, v26
    v_add_u32 v20, v27, v26
    v_and_b32 v26, 15, v24
    v_lshlrev_b32 v27, 2, v26
    v_add_u32 v27, 2304, v27
    v_cmp_eq_u32 vcc, 9, v26
    v_cndmask_b32 v27, v27, 32, vcc
    v_mov_b32 v28, {1152 + 32}
    v_cmp_eq_u32 vcc, 10, v26
    v_cndmask_b32 v27, v27, v28, vcc
    v_add_u32 v27, v27, v25
    v_mov_b32 v28, {OOB}
    v_cmp_gt_u32 vcc, 11, v26
    v_cndmask_b32 v21, v28, v27, vcc
    v_bfe_u32 v25, v24, 2, 2
    v_lshrrev_b32 v26, 5, v24
    v_lshl_add_u32 v25, v26, 3, v25
    v_lshlrev_b32 v25, 6, v25
    v_bfe_u32 v26, v24, 4, 1
    v_lshl_add_u32 v25, v26, 5, v25
    v_and_b32 v26, 3, v24
    v_lshl_add_u32 v25, v26, 3, v25
    s_lshl_b32 s{S_T2}, s{S_WAVE}, 14
    v_add_u32 v22, s{S_T2}, v25
    """)
    srd(b, S_WG, PT['WQKV'], 576*3456)
    seq = [(m, kk) for kk in range(36) for m in range(2)]
    n, D = len(seq), 15
    def dma(t):
        m, kk = seq[t]
        for q in range(4):
            b(f"s_mov_b32 s{S_T0}, {(16*kk + 4*q)*3456}")
            b(f"s_add_u32 m0, s{S_T2}, {(t % 16)*1024 + q*256}")
            b(f"buffer_load_dword v{20+m}, s[{S_WG}:{S_WG+3}], s{S_T0} offen lds")
    for t in range(D): dma(t)
    for t in range(n):
        issued = min(n, t + D)
        b(f"s_waitcnt vmcnt({4*(issued - t - 1)}) lgkmcnt(0)")
        if t + D < n: dma(t + D)
        f = wfrag(*seq[t]); k, r = f[0], int(f[2:f.index(':')])
        for aa in range(2): b(f"ds_read_b64_tr_b16 {k}[{r+2*aa}:{r+2*aa+1}], v22 offset:{(t % 16)*1024 + aa*256}")
    b("s_waitcnt lgkmcnt(0)\ns_barrier")
    row_addr(b, XA, 24, 27)
    b(f"""
    v_lshlrev_b32 v{A1}, 4, v24
    v_and_b32 v25, 31, v24
    v_lshrrev_b32 v26, 5, v24
    v_mul_u32_u24 v27, 18, v26
    v_add_u32 v27, v27, v25
    v_lshlrev_b32 v27, 4, v27
    v_mov_b32 v28, {OOB}
    v_cmp_gt_u32 vcc, 18, v25
    v_cndmask_b32 v{VA}, v28, v27, vcc
    v_lshlrev_b32 v27, 4, v26
    v_add_u32 v29, 3328, v27
    v_add_u32 v27, 1024, v27
    v_cmp_eq_u32 vcc, 20, v25
    v_cndmask_b32 v28, v28, v27, vcc
    v_cmp_eq_u32 vcc, 18, v25
    v_cndmask_b32 v{EA}, v28, v29, vcc
    v_mov_b32 v27, s{S_C}
    v_cndmask_b32 v{EM}, 1.0, v27, vcc
    v_and_b32 v27, 7, v24
    v_lshrrev_b32 v28, 3, v24
    v_xor_b32 v28, v28, v27
    v_lshlrev_b32 v28, 4, v28
    v_lshl_add_u32 v28, v27, 9, v28
    s_lshl_b32 s{S_T0}, s{S_WAVE}, 7
    v_add_u32 v{WA}, s{S_T0}, v28
    v_lshlrev_b32 v27, 4, v26
    v_xor_b32 v{RA}, v27, v{A1}
    v_xor_b32 v{RA+1}, 32, v{RA}
    v_xor_b32 v{RA+2}, 64, v{RA}
    v_xor_b32 v{RA+3}, 96, v{RA}
    s_mov_b32 s{S_LAY}, 0
    """)
    srd(b, S_XI, PT['WS'], XB, W.X1)
    wait_init(b, 4, 5)
    b.label("L_qw_layer")
    b(f"s_mov_b32 s{S_SEG}, s{S_GRP}")
    b.label("L_qw_loop")
    b(f"""
    s_lshl_b32 s{S_NEED}, s{S_LAY}, 6
    s_add_u32 s{S_NEED}, s{S_NEED}, s{S_SEG}
    s_add_u32 s{S_NEED}, s{S_NEED}, 1
    s_lshl_b32 s{S_T0}, s{S_GRP}, 7
    s_lshr_b32 s{S_T1}, s{S_WAVE}, 1
    s_mul_i32 s{S_T1}, s{S_T1}, 48
    s_add_u32 s{S_T0}, s{S_T0}, s{S_T1}
    s_add_u32 s{S_T0}, s{S_T0}, {W.PROG + P_OW}
    v_lshrrev_b32 v4, 2, v{A1}
    v_min_u32 v4, 44, v4
    """)
    wait_words(b, 4, S_T0, S_NEED, 5, 1)
    b(f"s_mul_i32 s{S_T0}, s{S_SEG}, 36864")
    for i in range(9): b(f"buffer_load_dwordx4 {v(ACC+4*i,4)}, v{XA}, s[{S_XI}:{S_XI+3}], s{S_T0} offen offset:{128*i} sc1")
    layernorm(b, ACC, T, False, WA, L_XT, 4096)
    b("s_waitcnt lgkmcnt(0)\ns_barrier")
    rd = lambda kk: f"ds_read_b128 {v(FB + 4*(kk%4),4)}, v{RA + kk%4} offset:{L_XT + kk*1024}"
    for kk in range(3): b(rd(kk))
    for kk in range(36):
        x = v(FB + 4*(kk%4), 4)
        for m in range(2):
            d = ACC + 16*m
            A, B = (wfrag(m, kk), x) if m == 0 else (x, wfrag(m, kk))
            b(f"v_mfma_f32_32x32x16_bf16 {v(d,16)}, {A}, {B}, {'0' if kk == 0 else v(d,16)}")
            if m == 0 and kk + 3 < 36: b(rd(kk + 3))
    b(f"""
    s_sub_u32 s{S_T0}, s{S_NEED}, 1
    s_lshl_b32 s{S_T0}, s{S_T0}, 5
    s_add_u32 s{S_T0}, s{S_T0}, s{S_HH}
    s_mul_i32 s{S_T0}, s{S_T0}, 3584
    s_add_u32 s{S_T0}, s{S_T0}, {W.QB}
    """)
    st = lambda r, ad, off: f"buffer_store_dwordx4 {v(r,4)}, v{ad}, s[{S_WS}:{S_WS+3}], s{S_T0} offen offset:{off} sc1"
    for k in range(4): b(cvt(ACC + 8 + k, ACC + 8 + 2*k))
    b(st(ACC+8, A1, 0))
    for r in range(8): b(f"v_mul_f32 v{ACC+r}, s{S_C}, v{ACC+r}")
    for k in range(4): b(cvt(ACC + k, ACC + 2*k))
    b(st(ACC, A1, 2304))
    V = ACC + 16
    for k in range(8): b(cvt(EX + 16 + k, V + 2*k))
    b(st(EX+16, VA, 1152)); b(st(EX+20, VA, 1728))
    for m in range(4):
        for r in range(4*m, 4*m + 4):
            b(f"v_mul_f32_dpp v{EX+r}, v{V+r}, v{EM} quad_perm:[1,1,3,3] row_mask:0xf bank_mask:0xf")
            b(f"v_mul_f32 v{V+r}, v{V+r}, v{EM}")
            b(f"v_cvt_pk_bf16_f32 v{EX+r}, v{V+r}, v{EX+r}")
        b(st(EX + 4*m, EA, 32*m))
    signal(b, S_PA, S_NEED, 4, 5)
    b(f"s_add_u32 s{S_SEG}, s{S_SEG}, 2\ns_cmp_lt_u32 s{S_SEG}, 64\ns_cbranch_scc1 L_qw_loop")
    b(f"s_add_u32 s{S_LAY}, s{S_LAY}, 1\ns_cmp_ge_u32 s{S_LAY}, {nlayers}\ns_cbranch_scc1 L_end")
    srd(b, S_XI, PT['WS'], XB, W.X3)
    b("s_branch L_qw_layer")
```

```python
from asmb import Asm
import common as C

PART_BYTES = 5*4*32*512
MEMX_SLOT = 9216
class Lay:
    PART = 0
    MEMX = PART_BYTES
    FLAG = MEMX + 3*MEMX_SLOT
    END = FLAG + 4096
assert Lay.END <= C.W.PROG
KV_BYTES = 64*32*16384

L_MEM = 0
L_SX = 9216
L_SM = 13312
L_O = 14336
L_DUMMY = 163840
L_W = 16384
PIECE = 36864
LDS_BYTES = 163840

CH = (0,1,2,3,8,4,5,6,7)
POS = {c: k for k, c in enumerate(CH)}
ORDER = ["Q0","K0","Q1","K1","Q2","K2","Q3","K3","Q8","K8","Q4","Q5","Q6","Q7","K4","K5","K6","K7",
         "V4","V5","V6","V7","V0","V1","V2","V3","V8"] + ["O%d" % i for i in (0,1,2,3,8,4,5,6,7)]
LDS_STAGES = ["Q0","Q2","K3","Q6","K6","V8","O0","O8","O7"]
REG_STAGES = [s for s in ORDER if s not in LDS_STAGES]
def wreg(n):
    if n < 32: return "a[%d:%d]" % (8*n, 8*n+7), ('a', 8*n)
    b = 80 + 8*(n-32)
    return "v[%d:%d]" % (b, b+7), ('v', b)
WOP = {}
for i, s in enumerate(REG_STAGES):
    WOP[(s,0)] = wreg(2*i); WOP[(s,1)] = wreg(2*i+1)
for s in LDS_STAGES:
    WOP[(s,0)] = ("v[8:15]", ('v', 8)); WOP[(s,1)] = ("v[16:23]", ('v', 16))

A1, A2, IDX, TMP, SEL, AD0, AD1 = 0, 1, 2, 3, 4, 6, 7
RING, VX, QA, KA, KX, T1, T2 = 24, 40, 48, 56, 64, 72, 76
PR, FA = T1, T1+2
def v(b, n=1): return "v%d" % b if n == 1 else "v[%d:%d]" % (b, b+n-1)

S_WS, S_KV = 12, 16
S_WAVE, S_HEAD = 20, 21
S_STEP, S_TAG = 22, 23
S_PST = 24
S_NEED = 25
S_PS2 = 26
S_RLD = 27
S_RST = 28
S_MNEXT, S_MCUR = 29, 30
S_KVO = 31
S_C = 32
S_H288 = 33
S_XM = 58
S_FB = 52
S_QM = 56
S_PG = 8
S_PT = 48
S_LAY, S_BARN = 9, 10
S_GF = 11
S_AR = 44
S_T0, S_T1, S_T2 = 34, 35, 36
S_TO = 37
S_BND = 38
S_ONE = 39
S_FL = 40
NREP = 1
S_W = 40
TIMEOUT = 400000
import struct, math
SCALE_HEX = hex(struct.unpack('<I', struct.pack('<f', 128**-0.5 * math.log2(math.e)))[0])

def prologue_weights(b, ptr_regs):
    LANE = 24
    b(f"v_and_b32 v{LANE}, 63, v0")
    b(f"""
    v_lshrrev_b32 v25, 4, v{LANE}
    s_lshl_b32 s{S_T0}, s{S_WAVE}, 4
    v_add_u32 v26, s{S_T0}, v25
    v_lshlrev_b32 v26, 13, v26
    s_lshl_b32 s{S_T0}, s{S_HEAD}, 8
    v_add_u32 v26, s{S_T0}, v26
    v_and_b32 v27, 2, v25
    v_and_b32 v40, 15, v{LANE}
    v_xor_b32 v27, v27, v40
    """)
    for q in range(4):
        b(f"""
        v_xor_b32 v41, {4*q}, v27
        v_lshlrev_b32 v41, 4, v41
        v_add_u32 v41, v41, v26
        v_add_u32 v{28+q}, {4*q*8192}, v41
        """)
    b(f"""
    v_lshrrev_b32 v25, 3, v{LANE}
    s_lshl_b32 s{S_T0}, s{S_WAVE}, 5
    v_add_u32 v26, s{S_T0}, v25
    v_mul_u32_u24 v26, 1152, v26
    s_mul_i32 s{S_T0}, s{S_HEAD}, 147456
    v_add_u32 v26, s{S_T0}, v26
    v_lshrrev_b32 v27, 5, v{LANE}
    v_lshlrev_b32 v27, 1, v27
    v_and_b32 v40, 7, v{LANE}
    v_xor_b32 v27, v27, v40
    """)
    for q in range(4):
        b(f"""
        v_xor_b32 v41, {4*(q>>1)}, v27
        v_lshlrev_b32 v41, 4, v41
        v_add_u32 v41, v41, v26
        v_add_u32 v{32+q}, {8*q*1152}, v41
        """)
    b(f"""
    v_bfe_u32 v40, v{LANE}, 2, 1       ; rp&1
    v_bfe_u32 v41, v{LANE}, 3, 1       ; rp>>1
    v_bfe_u32 v42, v{LANE}, 4, 1       ; gb&1
    v_bfe_u32 v43, v{LANE}, 5, 1       ; gb>>1
    v_and_b32 v44, 3, v{LANE}          ; cc
    v_lshlrev_b32 v44, 3, v44
    v_add_u32 v44, {L_W}, v44
    v_lshl_add_u32 v46, v42, 1, v40
    v_lshl_add_u32 v46, v41, 2, v46
    v_lshl_add_u32 v45, v46, 9, v44
    v_mul_u32_u24 v47, {PIECE}, v43
    v_add_u32 v45, v45, v47
    s_lshl_b32 s{S_T0}, s{S_WAVE}, 1
    v_xor_b32 v46, s{S_T0}, v46
    v_lshl_add_u32 v48, v46, 5, v45    ; (i=0,hb=0)
    v_xor_b32 v46, 1, v46
    v_lshl_add_u32 v50, v46, 5, v45    ; (i=1,hb=0)
    v_add_u32 v49, {2*PIECE}, v48
    v_add_u32 v51, {2*PIECE}, v50
    v_lshlrev_b32 v45, 4, v42
    v_lshl_add_u32 v45, v43, 3, v45
    v_lshl_add_u32 v45, v41, 2, v45
    v_add_u32 v45, v45, v40
    v_lshl_add_u32 v45, v45, 7, v44
    v_lshl_add_u32 v46, v42, 1, v41
    v_xor_b32 v46, s{S_WAVE}, v46
    v_lshl_add_u32 v52, v46, 5, v45    ; (kappa=0,hb=0)
    v_add_u32 v53, {PIECE}, v52
    v_add_u32 v54, {2*PIECE}, v52
    v_add_u32 v55, {3*PIECE}, v52
    s_mul_i32 s{S_T2}, s{S_WAVE}, {PIECE}
    s_add_u32 s{S_T2}, s{S_T2}, {L_W}
    v_lshlrev_b32 v{A2}, 4, v{LANE}
    v_add_u32 v{A2}, s{S_T2}, v{A2}
    s_mov_b32 s{S_W+2}, {576*8192}
    s_mov_b32 s{S_W+3}, 0x20000
    """)
    seq = REG_STAGES + LDS_STAGES
    cur = [None]
    def dma(t):
        s = seq[t]; X, j = s[0], int(s[1]); reg = t % 9
        if cur[0] != X:
            b(f"s_mov_b32 s{S_W}, s{ptr_regs[X]}\ns_mov_b32 s{S_W+1}, s{ptr_regs[X]+1}"); cur[0] = X
        b(f"s_mov_b32 s{S_T0}, {j*64*8192 if X != 'O' else j*128}")
        for q in range(4):
            b(f"s_add_u32 m0, s{S_T2}, {reg*4096 + q*1024}")
            b(f"buffer_load_dwordx4 v{(28 if X != 'O' else 32)+q}, s[{S_W}:{S_W+3}], s{S_T0} offen lds")
    def wb(t):
        reg = t % 9; base = 56 if t % 2 == 0 else 8
        for k in range(4):
            b(f"ds_write_b128 v{A2}, v[{base+4*k}:{base+4*k+3}] offset:{reg*4096 + k*1024}")
    for t in range(9): dma(t)
    for t in range(36):
        s = seq[t]; X = s[0]; reg = t % 9
        issued = min(36, max(9, t + 8))
        b(f"s_waitcnt vmcnt({4*(issued - t - 1)}) lgkmcnt(0)")
        b("s_barrier")
        if t >= 1 and t + 8 < 36: dma(t + 8)
        if t - 1 >= 27: wb(t - 1)
        for op in range(2):
            if t < 27: kind, base = WOP[(s, op)][1]
            else: kind, base = 'v', (56 if t % 2 == 0 else 8) + 8*op
            for hb in range(2):
                for a in range(2):
                    r = base + 4*hb + 2*a
                    if X != 'O': ad, off = 48 + 2*op + hb, reg*4096 + a*256
                    else: ad, off = 52 + 2*op + hb, reg*4096 + a*256
                    b(f"ds_read_b64_tr_b16 {kind}[{r}:{r+1}], v{ad} offset:{off}")
    b("s_waitcnt lgkmcnt(0)\ns_barrier")
    wb(35)
    b("s_waitcnt lgkmcnt(0)")

def consts(b):
    b(f"""
    v_and_b32 v24, 63, v0
    v_lshlrev_b32 v{A1}, 4, v24
    v_and_b32 v25, 1, v24
    v_mov_b32 v{IDX}, 0x4444
    v_mov_b32 v26, 0xeeee
    v_cmp_eq_u32 vcc, 1, v25
    v_cndmask_b32 v{IDX}, v{IDX}, v26, vcc
    ; Sel16
    v_bfe_u32 v26, v24, 2, 2
    v_lshrrev_b32 v27, 4, v24
    v_cmp_eq_u32 vcc, v26, v27
    v_mov_b32 v28, 0x3f803f80
    v_cndmask_b32 v28, 0, v28, vcc
    v_cmp_eq_u32 vcc, 1, v25
    v_cndmask_b32 v{SEL}, v28, 0, vcc
    v_cndmask_b32 v{SEL+1}, 0, v28, vcc
    v_and_b32 v{AD0}, 0xffffffdf, v{A1}
    v_lshlrev_b32 v28, 6, v26
    v_lshl_add_u32 v28, v25, 5, v28
    v_bfe_u32 v29, v24, 4, 1
    v_lshl_add_u32 v28, v29, 4, v28
    v_bfe_u32 v29, v24, 5, 1
    v_lshl_add_u32 v28, v29, 8, v28
    s_lshl_b32 s{S_T0}, s{S_WAVE}, 9
    s_add_u32 s{S_T0}, s{S_T0}, {L_O}
    v_add_u32 v29, s{S_T0}, v28
    v_add_u32 v28, {L_DUMMY}, v28
    v_bfe_u32 v30, v24, 1, 1
    v_cmp_eq_u32 vcc, 1, v30
    v_cndmask_b32 v{AD1}, v29, v28, vcc
    """)

def set_lds_stages(lst):
    global LDS_STAGES, REG_STAGES
    LDS_STAGES = list(lst)
    assert [x for x in ORDER if x in LDS_STAGES] == LDS_STAGES and len(LDS_STAGES) == 9
    REG_STAGES = [x for x in ORDER if x not in LDS_STAGES]
    WOP.clear()
    for i, x in enumerate(REG_STAGES):
        WOP[(x,0)] = wreg(2*i); WOP[(x,1)] = wreg(2*i+1)
    for x in LDS_STAGES:
        WOP[(x,0)] = ("v[8:15]", ('v', 8)); WOP[(x,1)] = ("v[16:23]", ('v', 16))

class Loop:
    def __init__(self, b, w, st, P):
        self.b, self.w, self.st, self.P = b, w, st, P
        self.slow = []
        self.bg = []
        self.sfx = f"_{P['name']}_w{w}"
    def slot(self, shadow):
        if self.bg and not any(x.startswith("ds_") for x in shadow):
            self.b(self.bg.pop(0))
        for x in shadow: self.b(x)
    def smf(self, stage, op, acc, mem, *shadow):
        if stage in LDS_STAGES:
            assert not any(f"v[{8+8*op}:" in x or f"v[{12+8*op}:" in x for x in self.bg), (stage, self.bg)
        assert not any(x.startswith(f"ds_read_b128 v[{mem}:") for x in self.bg), (stage, self.bg)
        self.b(f"v_smfmac_f32_16x16x64_bf16 {v(acc,4)}, {v(mem,4)}, {WOP[(stage,op)][0]}, v{IDX}")
        if stage in LDS_STAGES:
            nx = (LDS_STAGES.index(stage) + 1) % 9
            self.bg += [self.wread(nx, op, hf) for hf in range(2)]
        self.slot(shadow)
    def mf(self, text, *shadow):
        self.b(text); self.slot(shadow)
    def wread(self, st, op, hf):
        off = st*4096 + op*2048 + hf*1024
        if self.w == 0: return f"ds_read_b128 {v(8+8*op+4*hf,4)}, v{A1} offset:{L_W + off}"
        return f"ds_read_b128 {v(8+8*op+4*hf,4)}, v{A2} offset:{off}"
    def memreg(self, j, vphase=False):
        j = POS[j]
        if vphase and j < 5: return RING + 4*((j + 1) % 4)
        return RING + 4*(j % 4)
    def rdmem(self, j, vphase=False):
        return f"ds_read_b128 {v(self.memreg(j, vphase),4)}, v{A1} offset:{L_MEM + j*1024}"
    def dma_group(self, b, g):
        b(f"s_mov_b32 m0, {L_MEM + g*4096}")
        b(f"s_add_u32 s{S_T0}, s{S_MNEXT}, {g*4096}")
        for n in range(4 if g < 2 else 1):
            b(f"buffer_load_dwordx4 v{A1}, s[{S_WS}:{S_WS+3}], s{S_T0} offen offset:{n*1024} sc1 lds")
    def stamp(self, i):
        if self.P.get("dump") == i:
            b = self.b
            b.join()
            b(f"s_lshl_b32 s{S_T0}, s{S_HEAD}, 2\ns_add_u32 s{S_T0}, s{S_T0}, s{S_WAVE}\ns_mul_i32 s{S_T0}, s{S_T0}, 20480")
            b(f"s_add_u32 s{S_T0}, s{S_T0}, {32*16384*8}")
            for r in range(20):
                b(f"buffer_store_dwordx4 {v(4*r,4)}, v{A1}, s[{S_KV}:{S_KV+3}], s{S_T0} offen")
                b(f"s_add_u32 s{S_T0}, s{S_T0}, 1024")
            b(f"s_branch {self.P['exit']}")
        if self.P.get("stamp"):
            sl = self.P.get("stamps", [0,1,2,3,4,5,6,7,8])
            if i in sl:
                k = sl.index(i)
                self.b.raw(f"    {'s_memrealtime' if self.P.get('rt') else 's_memtime'} s[{64+2*k}:{65+2*k}]")
    def kvstep(self):
        b, P = self.b, self.P
        b(f"s_add_u32 s{S_KVO}, s{S_KVO}, {32*16384}")
        if P.get("kvfix"): b(f"s_and_b32 s{S_KVO}, s{S_KVO}, {32*16384-1}")
    def kvload(self, i):
        return f"buffer_load_dwordx4 {v((KX, KX+4, VX, VX+4)[i],4)}, v{A1}, s[{S_KV}:{S_KV+3}], s{S_KVO} offen offset:{1024*i} sc1"
    def probe(self, b, g):
        if not self.P.get("nocomm") and not self.P.get("noprobe"):
            b(f"buffer_load_dword v{PR+g}, v{FA+g}, s[{S_WS}:{S_WS+3}], s{S_MNEXT} offen sc1")
    def round(self, b, g):
        self.probe(b, g)
        self.dma_group(b, g)
        if g == 0: self.dma_group(b, 2)
    def probe_check(self, g):
        if self.P.get("nocomm") or self.P.get("noprobe") or self.w != 3: return [], []
        lab = f"L_pr{g}{self.sfx}"
        def slow(sb):
            sb.label(lab + "_slow")
            self.round(sb, g)
            sb(f"""
            s_add_u32 s63, s63, {1 << (16*g)}
            s_add_u32 s{S_TO}, s{S_TO}, 1
            s_cmp_gt_u32 s{S_TO}, {TIMEOUT}
            s_cbranch_scc1 {lab}_ok
            v_cmp_eq_u32 vcc, -1, v{PR+g}
            s_cbranch_vccnz {lab}_slow
            """)
            if g: sb("s_waitcnt vmcnt(0)")
            sb(f"s_branch {lab}_ok")
        self.slow.append(slow)
        return [f"v_cmp_eq_u32 vcc, -1, v{PR+g}"], [f"s_cbranch_vccnz {lab}_slow", lab + "_ok:"]
    def head(self):
        b, w, P = self.b, self.w, self.P
        self.kvstep()
        z = [f"v_mov_b64 {v(QA+2*i,2)}, 0" for i in range(8)]
        nc = P.get("nocomm")
        if w == 3:
            for x in z: b(x)
            if not nc:
                NP = P.get("npoll", 4)
                lab = f"L_pl{self.sfx}"
                GA = RING + 8
                b(f"v_mov_b32 v{GA+1}, s{S_TAG}")
                b.nop(P["d2"][0] // 4)
                b(f"buffer_store_dword v{GA+1}, v{A1}, s[{S_FL}:{S_FL+3}], 0 offen {self.st}")
                b(f"""
                v_lshrrev_b32 v{GA}, 2, v{A1}
                v_and_b32 v{GA}, 127, v{GA}
                v_and_b32 v{FA}, 0xf0, v{A1}
                v_lshlrev_b32 v{FA}, 2, v{FA}
                v_add_u32 v{GA+3}, {8192 + 60}, v{FA}
                v_bfe_u32 v{GA+2}, v{A1}, 8, 1
                v_lshl_add_u32 v{FA}, v{GA+2}, 11, v{FA}
                v_cmp_gt_u32 vcc, 512, v{A1}
                v_add_u32 v{FA+1}, {4096 + 1024 + 60}, v{FA}
                v_add_u32 v{FA}, {1024 + 60}, v{FA}
                v_cndmask_b32 v{FA}, v{GA+3}, v{FA}, vcc
                """)
                b.nop(P.get("lead", 0) // 4)
                ld = lambda i: f"    buffer_load_dword v{RING+i}, v{GA}, s[{S_WS}:{S_WS+3}], s{S_GF} offen sc1"
                for i in range(NP):
                    b.raw(ld(i))
                    if i < NP - 1: b.nop(P.get("pgap", 8))
                b.label(lab)
                for i in range(NP):
                    b.raw(f"    s_waitcnt vmcnt({NP-1})")
                    b.raw(f"    v_cmp_gt_u32 vcc, s{S_TAG}, v{RING+i}")
                    b.raw(ld(i))
                    b.raw(f"    s_cbranch_vccz {lab}_o")
                b(f"s_add_u32 s60, s60, 1\ns_add_u32 s{S_TO}, s{S_TO}, 1\ns_cmp_lt_u32 s{S_TO}, {TIMEOUT}\ns_cbranch_scc1 {lab}")
                b.raw(".p2align 3")
                b.label(lab + "_o")
                b.vm = []
            self.stamp(9)
            self.round(b, 0)
            c, br = self.probe_check(0)
            for x in c + br: b(x)
            b(f"s_mov_b32 m0, {L_MEM + (4+w)*1024}\ns_add_u32 s{S_T0}, s{S_MNEXT}, {(4+w)*1024}")
            b(f"s_waitcnt vmcnt({3 if P.get('split') else 0})")
        else:
            b("s_waitcnt vmcnt(0)")
            if w == 0 and P.get("mega"):
                C.trace(b, 6, RING, check=False)
                b(f"v_cmp_gt_u32 vcc, s{S_NEED}, v{A2}")
            for x in z: b(x)
            if w == 0 and P.get("mega"):
                lab = f"L_kw{self.sfx}"
                b(f"s_cbranch_vccnz {lab}")
                b.label(lab + "_ok")
                C.trace(b, 7, RING, check=False)
                b(f"s_add_u32 s{S_PG}, s{S_PG}, 128\ns_sub_u32 s{S_T0}, s{S_PG}, 384\ns_cmp_ge_u32 s{S_T0}, {C.W.PROG + C.P_HWP}\ns_cselect_b32 s{S_PG}, s{S_T0}, s{S_PG}")
                def slow(sb):
                    sb.label(lab)
                    sb(f"""
                    buffer_load_dword v{A2}, off, s[{S_WS}:{S_WS+3}], s{S_PG} sc1
                    s_add_u32 s{S_TO}, s{S_TO}, 1
                    s_cmp_gt_u32 s{S_TO}, {TIMEOUT}
                    s_waitcnt vmcnt(0)
                    s_cbranch_scc1 {lab}_ok
                    v_cmp_gt_u32 vcc, s{S_NEED}, v{A2}
                    s_cbranch_vccnz {lab}
                    s_branch {lab}_ok
                    """)
                self.slow.append(slow)
            b(f"s_mov_b32 m0, {L_MEM + (4+w)*1024}\ns_add_u32 s{S_T0}, s{S_MNEXT}, {(4+w)*1024}")
        self.stamp(8)
        b("s_waitcnt lgkmcnt(0)\ns_barrier")
    def body(self):
        b, w, P = self.b, self.w, self.P
        smf, mr, rd = self.smf, self.memreg, self.rdmem
        sfx = self.sfx
        b.label(f"L_pa{sfx}")
        self.stamp(0)
        mf = self.mf
        b(rd(0))
        if w == 3: self.probe(b, 1)
        b(rd(1))
        b(f"buffer_load_dwordx4 v{A1}, s[{S_WS}:{S_WS+3}], s{S_T0} offen sc1 lds")
        kv = self.kvload
        nc = 1 if P.get("nocomm") else 0
        cvt = lambda d, a: f"v_cvt_pk_bf16_f32 v{d}, v{a}, v{a+1}"
        seq = [(X, j, op) for X, j in [(x[0], int(x[1])) for x in ORDER[:14]] for op in range(2)]
        sh = [[] for _ in seq]
        pb1 = P.get("pb1", 15)
        kvs = [P.get("kv0", 1) + 4*i + w for i in range(4)]
        for i in range(4): sh[kvs[i]].append(kv(i))
        c, br = self.probe_check(1)
        sh[pb1-2] += c; sh[pb1-1] += br
        sh[pb1] += [f"s_waitcnt vmcnt({sum(k <= pb1 for k in kvs)})", "s_barrier"]
        if P.get("split"):
            p0 = P["split"]
            if w == 3: sh[p0] += [f"s_waitcnt vmcnt({(1 if nc or P.get('noprobe') else 2) + sum(k <= p0 for k in kvs)})"]
            sh[p0] += ["s_barrier"]
            sh[p0+1].insert(0, rd(2)); sh[p0+3].insert(0, rd(3)); sh[p0+4].insert(0, rd(8))
        else:
            sh[2].insert(0, rd(2)); sh[5].insert(0, rd(3)); sh[7].insert(0, rd(8))
        sh[pb1+1].insert(0, rd(4)); sh[pb1+3].insert(0, rd(5)); sh[pb1+5].insert(0, rd(6)); sh[pb1+7].insert(0, rd(7))
        if w == 0 and P.get("touch", 1):
            t = kvs[3] + 4
            sh[t] += [f"s_add_u32 s{S_T1}, s{S_KVO}, {32*16384*P.get('touch',1)}", f"v_lshlrev_b32 v{A2}, 3, v{A1}"]
            sh[t+1] += [f"buffer_load_dword v{A2}, v{A2}, s[{S_KV}:{S_KV+3}], s{S_T1} offen ; nowait"]
            sh[t+2] += [f"s_add_u32 s{S_T1}, s{S_T1}, 8192"]
            sh[t+3] += [f"buffer_load_dword v{A2}, v{A2}, s[{S_KV}:{S_KV+3}], s{S_T1} offen ; nowait"]
            if P.get("mega"): sh[t+5] += [f"buffer_load_dword v{A2}, off, s[{S_WS}:{S_WS+3}], s{S_PG} sc1 ; nowait"]
        if w == 3 and P.get("mega"):
            sh[22] += [f"s_sub_u32 s{S_T1}, s{S_NEED}, 1"]
            sh[23] += [f"v_mov_b32 v{T2}, s{S_T1}"]
            sh[24] += [f"buffer_store_dword v{T2}, v{A1}, s[{S_PT}:{S_PT+3}], 0 offen sc1"]
        for (X, j, op), shd in zip(seq, sh):
            smf(f"{X}{j}", op, (QA if X == 'Q' else KA) + 4*op, mr(j), *shd)
        self.stamp(14)
        K = [(f"K{j}", op, KA + 4*op, mr(j)) for j in CH[5:] for op in range(2)]
        def k1(*sh): smf(*K.pop(0), *sh)
        k1(cvt(T1, QA))
        k1(cvt(T1+1, QA+2))
        mf(f"v_mfma_f32_16x16x16_bf16 {v(QA,4)}, {v(T1,2)}, {v(SEL,2)}, 0", cvt(T1+2, QA+4), cvt(T1+3, QA+6))
        k1()
        mf(f"v_mfma_f32_16x16x16_bf16 {v(QA+4,4)}, {v(T1+2,2)}, {v(SEL,2)}, 0",
           *([f"ds_read_b128 {v(T1,4)}, v{TMP} offset:{L_MEM}"] if w == 3 else []), cvt(T2, QA), cvt(T2+1, QA+2))
        k1(f"v_cmp_u_f32 vcc, v{QA}, v{QA}")
        k1(cvt(T2+2, QA+4))
        k1(*([] if nc else [f"s_cbranch_vccnz L_redo{sfx}"]), f"L_noredo{sfx}:", cvt(T2+3, QA+6))
        k1(f"s_cmp_eq_u32 s{S_STEP}, {P['nstep']}", f"v_mov_b64 {v(QA,2)}, 0")
        k1(*([f"buffer_store_dwordx4 {v(T1,4)}, v{A1}, s[{S_AR}:{S_AR+3}], 0 offen sc1"] if w == 3 else []), f"s_cbranch_scc1 {P['exit']}", f"v_mov_b64 {v(QA+2,2)}, 0")
        assert not K
        mf(f"v_mfma_f32_16x16x32_bf16 {v(KX,4)}, {v(KX,4)}, {v(T2,4)}, 0", cvt(T1, KA), cvt(T1+1, KA+2))
        mf(f"v_mfma_f32_16x16x32_bf16 {v(KX+4,4)}, {v(KX+4,4)}, {v(T2,4)}, 0", cvt(T1+2, KA+4), cvt(T1+3, KA+6))
        def redo(sb):
            sb.label(f"L_redo{sfx}")
            sb(f"""
            s_add_u32 s61, s61, 1
            s_add_u32 s{S_TO}, s{S_TO}, 64
            s_cmp_gt_u32 s{S_TO}, {TIMEOUT}
            s_cbranch_scc1 L_noredo{sfx}
            s_waitcnt vmcnt(0) lgkmcnt(0)
            s_barrier
            """)
            if w < 3: self.dma_group(sb, w)
            if w == 3: sb(f"v_mov_b32 v{FA+1}, 4096")
            sb(f"s_mov_b32 m0, {L_MEM + (4+w)*1024}\ns_add_u32 s{S_T0}, s{S_MNEXT}, {(4+w)*1024}")
            sb.nop(8)
            for i in range(8): sb(f"v_mov_b64 {v(QA+2*i,2)}, 0")
            for op in range(2):
                for hf in range(2):
                    sb(self.wread(0, op, hf))
            sb(f"s_waitcnt vmcnt(0) lgkmcnt(0)\ns_barrier\ns_branch L_pa{sfx}")
        self.slow.append(redo)
        self.stamp(1)
        V = [(f"V{j}", op, QA + 4*op, mr(j, True)) for j in CH[5:] + CH[:5] for op in range(2)]
        nv = [0]
        def v1(*sh):
            nv[0] += 1
            x = V.pop(0)
            b(f"v_smfmac_f32_16x16x64_bf16 {v(x[2],4)}, {v(x[3],4)}, {WOP[(x[0],x[1])][0]}, v{IDX}")
            assert not any(y.startswith(f"ds_read_b128 v[{x[3]}:") for y in self.bg), (x, self.bg)
            if x[0] in LDS_STAGES:
                self.bg += [self.wread((LDS_STAGES.index(x[0]) + 1) % 9, x[1], hf) for hf in range(2)]
            if nv[0] in (2, 4, 6, 8, 10): self.bg.insert(0 if not self.bg or "v[8" in self.bg[0] else len(self.bg), rd(CH[nv[0]//2 - 1], True))
            self.slot(sh)
        sel = lambda r: f"v_cndmask_b32 v{KX+r}, v{KX+r}, v{KX+4+r}, s[{S_XM}:{S_XM+1}]"
        mf(f"v_mfma_f32_16x16x16_bf16 {v(KA,4)}, {v(T1,2)}, {v(SEL,2)}, 0", f"v_mov_b64 {v(QA+4,2)}, 0", f"v_mov_b64 {v(QA+6,2)}, 0")
        mf(f"v_mfma_f32_16x16x16_bf16 {v(KA+4,4)}, {v(T1+2,2)}, {v(SEL,2)}, 0", sel(0), sel(1))
        b(sel(2)); b(sel(3))
        v1(f"ds_write_b128 v{A1}, {v(KX,4)} offset:{L_SX + w*1024}", cvt(T1, KA), cvt(T1+1, KA+2), cvt(T1+2, KA+4), cvt(T1+3, KA+6))
        v1(f"s_mov_b32 s{S_MCUR}, s{S_MNEXT}", f"s_add_u32 s{S_MNEXT}, s{S_MNEXT}, {MEMX_SLOT}")
        mf(f"v_mfma_f32_16x16x32_bf16 {v(KA,4)}, {v(T1,4)}, {v(T2,4)}, 0", f"s_add_u32 s{S_STEP}, s{S_STEP}, 1", f"s_add_u32 s{S_TAG}, s{S_TAG}, 1", f"s_add_u32 s{S_NEED}, s{S_NEED}, 1")
        v1(f"s_cmp_eq_u32 s{S_MNEXT}, {Lay.MEMX + 3*MEMX_SLOT}", f"s_cselect_b32 s{S_MNEXT}, {Lay.MEMX}, s{S_MNEXT}")
        v1(f"ds_write_b64 v{AD0}, {v(KA,2)} offset:{L_SM + (w>>1)*32 + (w&1)*8}")
        b(f"s_waitcnt lgkmcnt(2)\ns_barrier")
        others = [KA+4, T1, T2]
        X = [KX if i == w else others.pop(0) for i in range(4)]
        xr = [f"ds_read_b128 {v(X[i],4)}, v{A1} offset:{L_SX + i*1024}" for i in range(4)]
        own = xr.pop(w)
        MR = [KX+4, KA]
        mrd = [f"ds_read_b128 {v(MR[i],4)}, v{AD0} offset:{L_SM + i*32}" for i in range(2)]
        SX, SM = X[0], MR[0]
        addx = [f"v_add_f32 v{X[0]+r}, v{X[0]+r}, v{X[1]+r}" for r in range(4)] + \
               [f"v_add_f32 v{X[2]+r}, v{X[2]+r}, v{X[3]+r}" for r in range(4)] + \
               [f"v_add_f32 v{X[0]+r}, v{X[0]+r}, v{X[2]+r}" for r in range(4)]
        addm = [f"v_add_f32 v{SM+r}, v{SM+r}, v{MR[1]+r}" for r in range(4)] + \
               [f"v_add_f32 v{SM+r}, v{SM+r}, v{SM+2+r}" for r in range(2)] + \
               [f"v_mul_f32 v{SM+r}, s{S_C}, v{SM+r}" for r in range(2)]
        v1(xr[0]); v1(xr[1]); v1(xr[2])
        for _ in range(P.get("vb", 1)): v1()
        b(f"s_waitcnt lgkmcnt({b.lg_after('ds_write')})\ns_barrier")
        self.stamp(2)
        b(mrd[0])
        MX = X[1]
        val = addx + [f"v_max3_f32 v{MX}, abs(v{SX}), abs(v{SX+1}), abs(v{SX+2})"] + addm + \
              [f"v_max3_f32 v{MX}, v{MX}, abs(v{SX+3}), abs(v{SM})", f"v_max_f32 v{MX}, v{MX}, abs(v{SM+1})",
               f"v_cmp_lt_f32 vcc, s{S_BND}, v{MX}"]
        per = P.get("per", 2)
        first = [[mrd[1]]] + ([[f"s_add_u32 s{S_AR}, s{S_AR}, 9216"], [f"s_addc_u32 s{S_AR+1}, s{S_AR+1}, 0"]] if w == 3 else [])
        while V:
            v1(*(first.pop(0) if first else []), *val[:per]); val = val[per:]
        for x in val: b(x)
        ex = [SX, SX+1, SX+2, SX+3, SM, SM+1]
        for r in ex:
            b(f"v_exp_f32 v{r}, v{r}")
            if self.bg: b(self.bg.pop(0))
        b(f"s_cbranch_vccnz L_max{sfx}")
        b.label(f"L_maxback{sfx}")
        def truemax(sb):
            sb.label(f"L_max{sfx}")
            for x in xr + [own] + mrd + addx + addm: sb(x)
            M, M2 = MX, MX+1
            sb(f"""
            v_max3_f32 v{M}, v{SX}, v{SX+1}, v{SX+2}
            v_max3_f32 v{M2}, v{SX+3}, v{SM}, v{SM+1}
            v_max_f32 v{M}, v{M}, v{M2}
            v_max_f32_dpp v{M}, v{M}, v{M} quad_perm:[2,3,0,1] row_mask:0xf bank_mask:0xf
            v_mov_b32 v{M2}, v{M}
            v_permlane16_swap_b32 v{M}, v{M2}
            v_max_f32 v{M}, v{M}, v{M2}
            v_mov_b32 v{M2}, v{M}
            v_permlane32_swap_b32 v{M}, v{M2}
            v_max_f32 v{M}, v{M}, v{M2}
            """)
            for r in ex: sb(f"v_sub_f32 v{r}, v{r}, v{M}")
            for r in ex: sb(f"v_exp_f32 v{r}, v{r}")
            sb(f"s_add_u32 s62, s62, 1\ns_waitcnt lgkmcnt(0)\ns_branch L_maxback{sfx}")
        self.slow.append(truemax)
        b(cvt(T1, SX)); b(cvt(T1+1, SX+2))
        b(f"v_cvt_pk_bf16_f32 v{T2}, v{SM}, v{SM}")
        b(f"v_mov_b32_dpp v{T1+2}, v{T1} quad_perm:[2,3,0,1] row_mask:0xf bank_mask:0xf")
        b(f"v_mov_b32_dpp v{T1+3}, v{T1+1} quad_perm:[2,3,0,1] row_mask:0xf bank_mask:0xf")
        b(f"v_cvt_pk_bf16_f32 v{T2+1}, v{SM+1}, v{SM+1}")
        assert not self.bg
        VM, ONE, ONEM, LS = RING, RING+4, RING+8, 60
        b(cvt(VM, QA))
        self.stamp(3)
        b(f"v_mfma_f32_16x16x32_bf16 {v(KA,4)}, {v(VX,4)}, {v(T1,4)}, 0")
        b(cvt(VM+1, QA+2)); b(cvt(VM+2, QA+4))
        b(f"v_mfma_f32_16x16x32_bf16 {v(KA+4,4)}, {v(VX+4,4)}, {v(T1,4)}, 0")
        b(cvt(VM+3, QA+6)); b(f"v_mov_b32 v{ONE}, s{S_ONE}")
        b(f"v_mfma_f32_16x16x16_bf16 {v(KA,4)}, {v(VM,2)}, {v(T2,2)}, {v(KA,4)}")
        b(f"v_mov_b32 v{ONE+1}, s{S_ONE}\nv_mov_b32 v{ONE+2}, s{S_ONE}")
        b(f"v_mfma_f32_16x16x16_bf16 {v(KA+4,4)}, {v(VM+2,2)}, {v(T2,2)}, {v(KA+4,4)}")
        b(f"v_mov_b32 v{ONE+3}, s{S_ONE}\nv_mov_b32 v{ONEM}, 0x3f80\nv_mov_b32 v{ONEM+1}, 0x3f80")
        for i in range(4): b(cvt(QA+i, KA+2*i))
        b(f"ds_write_b128 v{AD1}, {v(QA,4)}")
        OA = 24
        b(f"v_mfma_f32_16x16x32_bf16 {v(LS,4)}, {v(T1,4)}, {v(ONE,4)}, 0")
        gb = w == 3 and not nc and P.get("gb", 1)
        zz = [f"v_mov_b64 {v(OA+2*i,2)}, 0" for i in range(5, 5 + P.get("z1", 9))]
        if gb:
            zz = [f"v_mov_b32 v{T2+2}, s{S_TAG}"] + zz + [f"v_lshrrev_b32 v{T2+3}, 2, v{A1}", f"v_and_b32 v{T2+3}, 127, v{T2+3}"]
        gprobe = lambda i, a=T2+3: f"buffer_load_dword v{RING+i}, v{a}, s[{S_WS}:{S_WS+3}], s{S_GF} offen offset:128 sc1"
        for x in zz: b(x)
        for _ in range(P.get("f0", 0)): b(f"v_mov_b32 v{T2+2}, 0")
        b(f"v_mfma_f32_16x16x16_bf16 {v(LS,4)}, {v(T2,2)}, {v(ONEM,2)}, {v(LS,4)}")
        b("s_waitcnt lgkmcnt(0)\ns_barrier")
        self.stamp(4)
        b(f"ds_read_b128 {v(KX,4)}, v{A1} offset:{L_O}")
        b(f"v_mov_b64 {v(OA,2)}, 0")
        b(f"ds_read_b128 {v(KX+4,4)}, v{A1} offset:{L_O+1024}")
        for i in list(range(1, 5)) + list(range(5 + P.get("z1", 9), 18)): b(f"v_mov_b64 {v(OA+2*i,2)}, 0")
        PM, PA = LS+2, LS+3
        b(f"v_cndmask_b32 v{PM}, 0, 1, s[{S_QM}:{S_QM+1}]")
        b(f"v_lshrrev_b32 v{PA}, 1, v{A1}")
        b(f"v_rcp_f32 v{LS}, v{LS}\nv_rcp_f32 v{LS+1}, v{LS+1}")
        RL, RD, SEL32, RA, RS = 24, 40, 44, TMP, 65
        TL = (0,1,2,3,8,4,5,6,7)
        def post(m):
            n = TL[m]; a = OA + 4*m; d = T1 + n % 8
            r = [f"v_add_f32 v{a}, v{a}, v{a+1}", f"v_add_f32 v{a+2}, v{a+2}, v{a+3}",
                 f"v_mul_f32 v{a}, v{a}, v{LS}", f"v_mul_f32 v{a+2}, v{a+2}, v{LS+1}"]
            if n % 2: return r + [f"v_cvt_pk_bf16_f32 v{d}, v{a}, v{a+2}"]
            return r + [f"v_cvt_pk_bf16_f32 v{a}, v{a}, v{a+2}", f"v_bfi_b32 v{d}, v{PM}, s{S_TAG}, v{a}"]
        def store(k):
            so = S_PST if k == 0 else S_PS2
            nxt = {0: 1, 1: 4, 4: 2, 2: 3}.get(k)
            return [f"buffer_store_dwordx2 {v(T1 + (2*k if k < 4 else 0), 2)}, v{PA}, s[{S_WS}:{S_WS+3}], s{so} offen {self.st}"] + \
                   ([f"s_add_u32 s{S_PS2}, s{S_PST}, {65536*nxt}"] if nxt else [])
        rload = lambda n, R=RL: f"buffer_load_dwordx4 {v(R+4*n,4)}, v{RA}, s[{S_WS}:{S_WS+3}], s{S_RLD} offen offset:{n*512} sc1"
        O = [(f"O{TL[m]}", op, OA + 4*m, KX + 4*op) for m in range(9) for op in range(2)]
        p = [post(m) for m in range(9)]
        sh = [[] for _ in range(18)]
        sp = P.get("sp", 3)
        stg = P.get("stg", [0, 0, 1, 1])[w]
        for m in range(7):
            sh[2*m+3] += p[m][:sp]; sh[2*m+4] += p[m][sp:]
        for k, pos in ((0, 7), (1, 11), (4, 13), (2, 17)):
            pos = min(17, pos + stg); sh[pos] = store(k) + sh[pos]
        if gb:
            gp = P.get("gp", [10, 13, 16])
            sh[P.get("gf", 5)].insert(0, f"buffer_store_dword v{T2+2}, v{A1}, s[{S_FB}:{S_FB+3}], 0 offen {self.st}")
            for i in range(3): sh[gp[i]].insert(0, gprobe(i))
            sh[17] += p[7] + [f"v_cmp_gt_u32 vcc, s{S_TAG}, v{RING}"] + p[8] + store(3) + [f"s_cbranch_vccnz L_gb{sfx}", f"L_gbok{sfx}:"]
            after = lambda i: sum(x.startswith("buffer_") for k in range(gp[i], 18) for x in sh[k]) - 1
            def gslow(sb):
                GA = RING + 4
                sb.label(f"L_gb{sfx}")
                sb(f"v_lshrrev_b32 v{GA}, 2, v{A1}\nv_and_b32 v{GA}, 127, v{GA}")
                sb.raw("    " + gprobe(0, GA))
                sb(f"s_add_u32 s62, s62, 65536\ns_waitcnt vmcnt({after(1) + 1})\nv_cmp_gt_u32 vcc, s{S_TAG}, v{RING+1}")
                sb.raw("    " + gprobe(1, GA))
                sb(f"s_cbranch_vccz L_gbok{sfx}")
                sb(f"s_add_u32 s62, s62, 65536\ns_waitcnt vmcnt({after(2) + 2})\nv_cmp_gt_u32 vcc, s{S_TAG}, v{RING+2}")
                sb.raw("    " + gprobe(2, GA))
                sb(f"s_cbranch_vccz L_gbok{sfx}")
                sb.label(f"L_gbl{sfx}")
                for i in range(3):
                    sb(f"s_add_u32 s62, s62, 65536\ns_waitcnt vmcnt(2)\nv_cmp_gt_u32 vcc, s{S_TAG}, v{RING+i}")
                    sb.raw("    " + gprobe(i, GA))
                    sb(f"s_cbranch_vccz L_gbok{sfx}")
                sb(f"s_add_u32 s{S_TO}, s{S_TO}, 1\ns_cmp_lt_u32 s{S_TO}, {TIMEOUT}\ns_cbranch_scc1 L_gbl{sfx}\ns_branch L_gbok{sfx}")
            self.slow.append(gslow)
        else:
            sh[17] += p[7] + p[8] + store(3)
        r0 = P.get("r0s", [18, 18, 18, 18])[w]
        if r0 < 18 and not nc:
            for n in range(4): sh[min(17, r0 + n)].insert(0, rload(n))
        for i in range(18):
            smf(*O[i], *sh[i])
            self.stamp(20 + i)
        if not nc and P.get("gb", 1): b("s_barrier")
        tailbg, self.bg = self.bg, []
        if nc or w == 3:
            for x in tailbg: b(x)
        self.stamp(5)
        if P.get("nocomm") or w == 3:
            self.stamp(7)
            return
        if w < 3:
            def setup():
                if w != 2:
                    for x in tailbg: b(x)
                b(f"""
                v_bfe_u32 v66, v{A1}, 4, 4
                v_mov_b32 v67, 0x3f80
                v_and_b32 v69, 1, v66
                v_lshlrev_b32 v70, 4, v69
                v_lshlrev_b32 v67, v70, v67
                v_lshrrev_b32 v68, 1, v66
                v_cmp_eq_u32 vcc, 0, v68
                v_cmp_eq_u32 s[{S_T0}:{S_T0+1}], 1, v68
                v_bfe_u32 v70, v66, 1, 1
                v_cndmask_b32 v{SEL32}, 0, v67, vcc
                v_cndmask_b32 v{SEL32+1}, 0, v67, s[{S_T0}:{S_T0+1}]
                v_cmp_eq_u32 vcc, 2, v68
                v_cmp_eq_u32 s[{S_T0}:{S_T0+1}], 3, v68
                v_lshlrev_b32 v70, 10, v70
                v_cndmask_b32 v{SEL32+2}, 0, v67, vcc
                v_cndmask_b32 v{SEL32+3}, 0, v67, s[{S_T0}:{S_T0+1}]
                v_lshl_add_u32 v70, v69, 5, v70
                v_and_b32 v69, {10 if w == 2 else 8}, v66
                v_cmp_eq_u32 vcc, 0, v69
                v_and_b32 v69, 4, v66
                v_add_u32 v70, v70, v69
                v_bfe_u32 v69, v{A1}, 8, 1
                v_lshl_add_u32 v68, v69, 4, v70
                v_lshrrev_b32 v69, 9, v{A1}
                v_lshl_add_u32 v68, v69, 3, v68
                v_mov_b32 v69, 0x40000000
                v_cndmask_b32 v{RS}, v69, v68, vcc
                v_mov_b32 v70, -1
                v_mov_b32 v64, s{S_TAG}
                s_add_u32 s{S_T0}, s{S_RST}, s{S_MNEXT}
                s_add_u32 s{S_T1}, s{S_RST}, s{S_MCUR}
                """)
            flag = f"buffer_store_byte v64, v71, s[{S_FL}:{S_FL+3}], 0 offen {self.st}"
            if w == 2:
                for x in tailbg: b(x)
            if w == 2: b(f"s_cmp_ge_u32 s{S_HEAD}, 16\ns_cbranch_scc1 L_redend{sfx}")
            pre = P.get("pre", [0, 1, 0])[w]
            two = P.get("two", [0, 1, 0])[w]
            if pre: setup()
            if r0 >= 18:
                b.nop(P["d1"][w] // 4)
                for n in range(4): b(rload(n))
            if not pre: setup()
            def check(b, R, nafter):
                mm = lambda n: f"v_mfma_f32_16x16x32_bf16 {v(RD,4)}, {v(R+4*n,4)}, {v(SEL32,4)}, {'0' if n == 0 else v(RD,4)}"
                for n in range(4):
                    if nafter is not None:
                        b.vm = []
                        b(f"s_waitcnt vmcnt({3 - n + nafter})")
                    b(mm(n))
                    if b is self.b and n in (0, 3): self.stamp(50 + n)
                    b(f"v_xor_b32 v66, v64, v{R}" if n == 0 else f"v_bitop3_b32 v66, v66, v64, v{R+4*n} bitop3:0xf6")
                b(f"v_and_b32 v66, 1, v66")
                b(f"v_cmp_ne_u32 vcc, 0, v66")
            if two:
                b.nop(P.get("rgap", 80) // 4)
                for n in range(4): b(rload(n, QA))
            check(b, RL, None)
            b(f"s_cbranch_vccnz L_redslow{sfx}")
            b.label(f"L_redgo{sfx}")
            def slow(sb):
                sb.label(f"L_redslow{sfx}")
                for n in range(4): sb(rload(n))
                sb(f"s_add_u32 s60, s60, 1\ns_add_u32 s{S_TO}, s{S_TO}, 1\ns_cmp_gt_u32 s{S_TO}, {TIMEOUT}\ns_cbranch_scc1 L_redgo{sfx}")
                if two:
                    check(sb, QA, 4)
                    sb(f"s_cbranch_vccz L_redgo{sfx}")
                    for n in range(4): sb(rload(n, QA))
                    sb("s_add_u32 s60, s60, 1\ns_nop 3")
                check(sb, RL, 4*two)
                sb(f"s_cbranch_vccnz L_redslow{sfx}\ns_branch L_redgo{sfx}")
            self.slow.append(slow)
            b.vm = []
            b(f"v_permlane32_swap_b32 v{RD}, v{RD+2}\nv_permlane32_swap_b32 v{RD+1}, v{RD+3}")
            b(f"v_add_f32 v{RD}, v{RD}, v{RD+2}\nv_add_f32 v{RD+1}, v{RD+1}, v{RD+3}")
            b(f"v_cvt_pk_bf16_f32 v{RD}, v{RD}, v{RD+1}")
            b(f"buffer_store_dword v{RD}, v{RS}, s[{S_WS}:{S_WS+3}], s{S_T0} offen {self.st}")
            b(f"buffer_store_dword v70, v{RS}, s[{S_WS}:{S_WS+3}], s{S_T1} offen {self.st}")
            b.label(f"L_redend{sfx}")
        self.stamp(7)
    def emit(self):
        b = self.b
        b.vm, b.lg, b.hist = [], [], []
        b.raw(".p2align 6")
        b.label(f"L_loop{self.sfx}")
        self.head()
        n0 = len(b.out)
        self.body()
        if self.P.get("at") is not None:
            idx = [k for k in range(n0, len(b.out)) if ("mfma" in b.out[k] or "s_barrier" in b.out[k] or "v_exp" in b.out[k])]
            k = idx[self.P["at"]]
            self.P["at_text"] = b.out[k]
            b.out.insert(k, "    s_memtime s[66:67]")
        if self.P.get("stamp"):
            b("s_waitcnt lgkmcnt(0)")
            if self.P.get("trace"):
                b.raw("    s_memrealtime s[80:81]\n    s_memtime s[78:79]\n    s_waitcnt lgkmcnt(0)")
                for i, r in enumerate([80, 78, 64, 66, 68, 70, 72, 74]): b(f"v_mov_b32 v{T1+i}, s{r}")
                b(f"s_lshl_b32 s{S_T2}, s{S_HEAD}, 2\ns_add_u32 s{S_T2}, s{S_T2}, {self.w}\ns_lshl_b32 s{S_T2}, s{S_T2}, 6\ns_add_u32 s{S_T2}, s{S_T2}, s{S_STEP}\ns_lshl_b32 s{S_T2}, s{S_T2}, 5\ns_add_u32 s{S_T2}, s{S_T2}, 8192")
                b(f"v_mov_b32 v{KX}, s{S_T2}\ns_mov_b64 exec, 1")
                b(f"global_store_dwordx4 v{KX}, {v(T1,4)}, s[4:5]\nglobal_store_dwordx4 v{KX}, {v(T2,4)}, s[4:5] offset:16\ns_mov_b64 exec, -1\ns_nop 1")
            elif self.P.get("rt"):
                b(f"s_cmp_eq_u32 s{S_STEP}, {self.P['rt']}")
                for i in range(0, 8): b(f"s_cselect_b32 s{84+i}, s{64+2*i}, s{84+i}")
            else:
              for i in range(1, 9):
                if i >= len(self.P.get("stamps", range(9))): break
                b(f"s_sub_u32 s{S_T2}, s{64+2*i}, s64\ns_cmp_gt_u32 s{S_STEP}, 3\ns_cselect_b32 s{S_T2}, s{S_T2}, 0\ns_add_u32 s{83+i}, s{83+i}, s{S_T2}")
        b(f"s_branch L_loop{self.sfx}")
        for f in self.slow:
            b.vm, b.lg, b.hist = [], [], []
            f(b)

def team_static(b, ptr):
    C.srd(b, S_WS, ptr['WS'], C.W.ARCH)
    b(f"""
    s_lshl_b32 s{S_T0}, s{S_WAVE}, 14
    s_lshl_b32 s{S_T1}, s{S_HEAD}, 9
    s_add_u32 s{S_PST}, s{S_T0}, s{S_T1}
    s_lshl_b32 s{S_T0}, s{S_WAVE}, 5
    s_add_u32 s{S_T0}, s{S_T0}, s{S_HEAD}
    s_lshr_b32 s{S_RLD}, s{S_T0}, 2
    s_lshl_b32 s{S_RLD}, s{S_RLD}, 14
    s_and_b32 s{S_T1}, s{S_T0}, 3
    s_lshl_b32 s{S_T1}, s{S_T1}, 7
    s_add_u32 s{S_RLD}, s{S_RLD}, s{S_T1}
    s_lshr_b32 s{S_RST}, s{S_T0}, 4
    s_lshl_b32 s{S_RST}, s{S_RST}, 11
    s_and_b32 s{S_T1}, s{S_T0}, 15
    s_lshl_b32 s{S_T1}, s{S_T1}, 6
    s_add_u32 s{S_RST}, s{S_RST}, s{S_T1}
    s_mov_b32 s{S_C}, {SCALE_HEX}
    s_mul_i32 s{S_H288}, s{S_HEAD}, 288
    s_mov_b32 s{S_LAY}, 0
    s_mov_b32 s{S_BARN}, 0
    s_lshl_b32 s{S_T0}, s{S_HEAD}, 2
    s_add_u32 s{S_T0}, s{S_T0}, {C.W.PROG + C.P_TEAM}
    s_add_u32 s{S_PT}, s{ptr['WS']}, s{S_T0}
    s_addc_u32 s{S_PT+1}, s{ptr['WS']+1}, 0
    s_mov_b32 s{S_PT+2}, 4
    s_mov_b32 s{S_PT+3}, 0x20000
    """)

def team_arrive(b, ptr):
    L = C.uid("ta")
    b(f"""
    s_waitcnt vmcnt(0)
    s_barrier
    s_add_u32 s{S_BARN}, s{S_BARN}, 32
    s_cmp_lg_u32 s{S_WAVE}, 0
    s_cbranch_scc1 {L}
    v_mov_b32 v26, {C.D_TB}
    v_mov_b32 v27, 1
    s_mov_b64 exec, 1
    global_atomic_add v26, v27, s[{ptr['DBG']}:{ptr['DBG']+1}]
    s_mov_b64 exec, -1
    s_waitcnt vmcnt(0)
    {L}:
    """)
def team_wait(b, ptr):
    L = C.uid("tw")
    b(f"v_mov_b32 v26, {C.D_TB}")
    b.label(L)
    b(f"""
    global_load_dword v27, v26, s[{ptr['DBG']}:{ptr['DBG']+1}] sc1
    s_add_u32 s{S_TO}, s{S_TO}, 1
    s_cmp_gt_u32 s{S_TO}, {TIMEOUT}
    s_waitcnt vmcnt(0)
    s_cbranch_scc1 {L}_d
    v_cmp_gt_u32 vcc, s{S_BARN}, v27
    s_cbranch_vccnz {L}
    {L}_d:
    """)

def team_layer_init(b, ptr, tid, kv_in_ws=True):
    st = "sc1"
    if kv_in_ws:
        b(f"s_mul_i32 s{S_T0}, s{S_LAY}, {C.W.KV_L}\ns_add_u32 s{S_T0}, s{S_T0}, {C.W.KV}")
        C.srd(b, S_KV, ptr['WS'], KV_BYTES, f"s{S_T0}")
    else:
        C.srd(b, S_KV, ptr['KV'], KV_BYTES)
    b(f"s_mul_i32 s{S_T0}, s{S_LAY}, {64*9216}\ns_add_u32 s{S_T0}, s{S_T0}, s{S_H288}\ns_add_u32 s{S_T0}, s{S_T0}, {C.W.ARCH}")
    C.srd(b, S_AR, ptr['WS'], 288, f"s{S_T0}")
    b(f"""
    s_mov_b32 s{S_MNEXT}, {Lay.MEMX}
    s_mov_b32 s{S_MCUR}, {Lay.MEMX}
    s_lshl_b32 s{S_KVO}, s{S_HEAD}, 14
    s_lshl_b32 s{S_T0}, s{S_WAVE}, 12
    s_add_u32 s{S_KVO}, s{S_KVO}, s{S_T0}
    s_sub_u32 s{S_KVO}, s{S_KVO}, {32*16384}
    s_mov_b32 s{S_STEP}, 0
    s_mov_b32 s{S_TAG}, 0
    s_lshl_b32 s{S_NEED}, s{S_LAY}, 6
    s_add_u32 s{S_NEED}, s{S_NEED}, 1
    s_lshl_b32 s{S_PG}, s{S_HEAD}, 2
    s_add_u32 s{S_PG}, s{S_PG}, {C.W.PROG + C.P_HWP}
    v_and_b32 v25, 63, v{tid}
    v_lshlrev_b32 v25, 3, v25
    v_mov_b32 v28, 0
    v_mov_b32 v29, 0
    s_mov_b32 s{S_PS2}, s{S_PST}
    """)
    for n in range(5):
        b(f"buffer_store_dwordx2 v[28:29], v25, s[{S_WS}:{S_WS+3}], s{S_PS2} offen {st}\ns_add_u32 s{S_PS2}, s{S_PS2}, 65536")
    b(f"""
    ; clear own gate flags
    v_lshlrev_b32 v26, 7, v{tid}
    s_lshl_b32 s{S_T0}, s{S_HEAD}, 2
    s_add_u32 s{S_T0}, s{S_T0}, {Lay.FLAG}
    v_mov_b32 v32, 0x40000000
    v_cmp_gt_u32 vcc, 2, v{tid}
    v_cndmask_b32 v26, v32, v26, vcc
    buffer_store_dword v28, v26, s[{S_WS}:{S_WS+3}], s{S_T0} offen {st}
    s_mul_i32 s{S_T0}, s{S_HEAD}, 18
    v_add_u32 v26, s{S_T0}, v{tid}
    v_bfe_u32 v27, v26, 1, 3
    v_mul_u32_u24 v27, 1152, v27
    v_lshrrev_b32 v32, 4, v26
    v_lshl_add_u32 v27, v32, 5, v27
    v_and_b32 v32, 1, v26
    v_lshl_add_u32 v27, v32, 4, v27
    v_lshlrev_b32 v26, 4, v26
    v_mov_b32 v32, 0x40000000
    v_cmp_gt_u32 vcc, 18, v{tid}
    v_cndmask_b32 v26, v32, v26, vcc
    v_cndmask_b32 v27, v32, v27, vcc
    s_mov_b32 s{S_W}, s{ptr['MEM0']}
    s_mov_b32 s{S_W+1}, s{ptr['MEM0']+1}
    s_mov_b32 s{S_W+2}, 9216
    s_mov_b32 s{S_W+3}, 0x20000
    buffer_load_dwordx4 v[36:39], v27, s[{S_W}:{S_W+3}], 0 offen
    v_mov_b64 v[32:33], -1
    v_mov_b64 v[34:35], -1
    s_mov_b32 s{S_T0}, {Lay.MEMX + MEMX_SLOT}
    s_mov_b32 s{S_T1}, {Lay.MEMX + 2*MEMX_SLOT}
    buffer_store_dwordx4 v[32:35], v26, s[{S_WS}:{S_WS+3}], s{S_T0} offen {st}
    buffer_store_dwordx4 v[32:35], v26, s[{S_WS}:{S_WS+3}], s{S_T1} offen {st}
    s_mov_b32 s{S_T0}, 0x05040100
    s_mov_b32 s{S_T1}, 0x07060302
    v_perm_b32 v40, v37, v36, s{S_T0}
    v_perm_b32 v41, v37, v36, s{S_T1}
    v_perm_b32 v42, v39, v38, s{S_T0}
    v_perm_b32 v43, v39, v38, s{S_T1}
    buffer_store_dwordx4 v[40:43], v26, s[{S_WS}:{S_WS+3}], s{S_MNEXT} offen {st}
    """)
    team_arrive(b, ptr)

def team_consts(b, ptr, bound=0x42200000):
    consts(b)
    L = C.uid("tc")
    b(f"""
    v_lshrrev_b32 v26, 7, v{A1}
    v_lshlrev_b32 v26, 11, v26
    v_and_b32 v27, 127, v{A1}
    v_add_u32 v{TMP}, v26, v27
    s_cmp_eq_u32 s{S_WAVE}, 3
    s_cbranch_scc0 {L}
    v_add_u32 v{TMP}, s{S_H288}, v{A1}
    {L}:
    s_mov_b32 s{S_GF}, {Lay.FLAG}
    s_mov_b32 s{S_BND}, {bound}
    s_mov_b32 s{S_ONE}, 0x3f803f80
    s_mov_b32 s{S_QM}, 0x55555555
    s_mov_b32 s{S_QM+1}, 0x55555555
    s_mov_b32 s{S_XM}, 0xcccccccc
    s_mov_b32 s{S_XM+1}, 0xcccccccc
    """)

def team_go(b, ptr, names):
    b(f"s_lshl_b32 s{S_T0}, s{S_HEAD}, 2\ns_add_u32 s{S_T0}, s{S_T0}, {Lay.FLAG}")
    C.srd(b, S_FL, ptr['WS'], 4, f"s{S_T0}")
    C.srd(b, S_FB, S_FL, 4, 128)
    b(f"s_mul_i32 s{S_T0}, s{S_WAVE}, {PIECE}\ns_add_u32 s{S_T0}, s{S_T0}, {L_W}\nv_add_u32 v{A2}, s{S_T0}, v{A1}")
    for op in range(2):
        for hf in range(2):
            b(f"ds_read_b128 {v(8+8*op+4*hf,4)}, v{A2} offset:{op*2048 + hf*1024}")
    team_wait(b, ptr)
    L = C.uid("tg")
    if len(names) > 1:
        b(f"""
        v_mov_b32 v26, {C.D_SLOW}
        global_load_dword v27, v26, s[{ptr['DBG']}:{ptr['DBG']+1}] sc1
        s_waitcnt vmcnt(0)
        v_cmp_ne_u32 vcc, 0, v27
        """)
    b("s_waitcnt vmcnt(0) lgkmcnt(0)")
    if len(names) > 1: b(f"s_cbranch_vccnz {L}")
    for k, name in enumerate(names):
        if k: b.label(L)
        for w in range(1, 4):
            b(f"s_cmp_eq_u32 s{S_WAVE}, {w}\ns_cbranch_scc1 L_loop_{name}_w{w}")
        b(f"v_mov_b32 v{A2}, 0\ns_branch L_loop_{name}_w0")

DEFAULTS = dict(nstep=63, stamp=0, d1=[0,60,0], d2=[180], z1=11, two=[0,0,0], npoll=6, pgap=10, gp=[9,12,15], gf=2, noprobe=1)

def emit(b, nlayers, **kw):
    ptr = C.PT
    b.reset()
    b.label("L_team")
    for r in (60, 61, 62, 63): b(f"s_mov_b32 s{r}, 0")
    team_static(b, ptr)
    team_layer_init(b, ptr, 0)
    prologue_weights(b, ptr)
    team_consts(b, ptr)
    C.wait_init(b, 26, 27)
    b.label("L_team_go")
    team_go(b, ptr, ["f", "s"])
    for name, st in (("f", ""), ("s", "sc1")):
        P = dict(DEFAULTS, name=name, exit="L_team_exit", mega=1); P.update(kw)
        for w in range(4): Loop(b, w, st, P).emit()
    b.reset()
    b.label("L_team_exit")
    b(f"""
    s_waitcnt vmcnt(0) lgkmcnt(0)
    s_cmp_lg_u32 s{S_WAVE}, 3
    s_cbranch_scc1 L_team_x2
    v_mov_b32 v26, s{S_NEED}
    buffer_store_dword v26, v{A1}, s[{S_PT}:{S_PT+3}], 0 offen sc1
    L_team_x2:
    s_add_u32 s{S_LAY}, s{S_LAY}, 1
    s_cmp_ge_u32 s{S_LAY}, {nlayers}
    s_cbranch_scc1 L_end
    """)
    team_arrive(b, ptr); team_wait(b, ptr)
    b(f"v_lshrrev_b32 v24, 4, v{A1}\ns_lshl_b32 s{S_T0}, s{S_WAVE}, 6\nv_add_u32 v24, s{S_T0}, v24")
    team_layer_init(b, ptr, 24)
    b("s_branch L_team_go")
```

```python
import sys, os
sys.path.insert(0, os.path.dirname(os.path.abspath(__file__)))
from asmb import Asm
from common import *
import team, hw, ow, qw
NAME = "interleave_layers__memory_aug_recurrent_mem_tr__softmax_full_mha__prompt"

def body(nlayers=2, roles=("hw", "ow", "qw", "bw"), force_slow=False, team_kw={}, bw_kw={}, tr=False):
    TRACE_ON[0] = tr
    b = Asm()
    b(f"""
    s_cmp_ge_u32 s2, 256
    s_cbranch_scc1 L_end0
    s_load_dwordx16 s[64:79], s[0:1], 0
    s_load_dwordx8 s[80:87], s[0:1], 64
    s_load_dwordx2 s[88:89], s[0:1], 96
    s_getreg_b32 s4, hwreg(HW_REG_XCC_ID)
    s_and_b32 s4, s4, 15
    s_getreg_b32 s5, hwreg(HW_REG_HW_ID, 4, 2)
    v_lshrrev_b32 v1, 6, v0
    v_readfirstlane_b32 s{S_WAVE}, v1
    v_lshlrev_b32 v1, 2, v1
    s_lshl_b32 s6, 1, s5
    v_mov_b32 v2, s6
    ds_write_b32 v1, v2 offset:16
    s_mov_b32 s{S_TO}, 0
    s_mov_b32 s{S_ONE}, 0x3f803f80
    s_waitcnt lgkmcnt(0)
    """)
    srd(b, S_WS, PT['WS'], W.END)
    D = PT['DBG']
    b(f"""
    s_cmp_lg_u32 s{S_WAVE}, 0
    s_cbranch_scc1 L_e_bar
    s_mov_b64 exec, 1
    v_mov_b64 v[2:3], 0
    s_lshl_b32 s6, s2, 3
    s_add_u32 s6, s6, {W.PROG}
    buffer_store_dwordx2 v[2:3], off, s[{S_WS}:{S_WS+3}], s6 sc1
    v_mov_b32 v4, 1
    s_waitcnt vmcnt(0)
    s_cmp_lg_u32 s4, {15 if force_slow else 0}
    s_cbranch_scc1 L_e_worker
    global_atomic_add v5, v2, v4, s[{D}:{D+1}] offset:{D_T0} sc0
    s_waitcnt vmcnt(0)
    v_readfirstlane_b32 s6, v5
    s_add_u32 s7, s6, 224
    s_cmp_lt_u32 s6, 32
    s_cbranch_scc1 L_e_got
    L_e_worker:
    global_atomic_add v5, v2, v4, s[{D}:{D+1}] offset:{D_TW} sc0
    s_waitcnt vmcnt(0)
    v_readfirstlane_b32 s7, v5
    s_cmp_lt_u32 s7, 224
    s_cbranch_scc1 L_e_got
    s_sub_u32 s7, {255 + 224}, s7
    global_atomic_add v2, v4, s[{D}:{D+1}] offset:{D_SLOW}
    L_e_got:
    s_waitcnt vmcnt(0)
    v_mov_b32 v5, s7
    ds_write_b32 v2, v5
    s_waitcnt lgkmcnt(0)
    s_mov_b64 exec, -1
    L_e_bar:
    s_barrier
    v_mov_b32 v2, 0
    ds_read_b32 v3, v2
    ds_read_b128 v[4:7], v2 offset:16
    s_waitcnt lgkmcnt(0)
    v_or3_b32 v4, v4, v5, v6
    v_or_b32 v4, v4, v7
    v_readfirstlane_b32 s{S_ID}, v3
    v_readfirstlane_b32 s6, v4
    s_barrier
    s_cmp_eq_u32 s6, 15
    s_cselect_b32 s{S_WAVE}, s5, s{S_WAVE}
    s_lshl_b32 s6, s{S_WAVE}, 6
    v_and_b32 v0, 63, v0
    v_or_b32 v0, s6, v0
    """)
    trace_init(b, S_ID); trace(b, 8, 2)
    for nm, n in (("hw", N_HW), ("ow", N_OW), ("qw", N_QW), ("bw", N_BW)):
        b(f"s_cmp_lt_u32 s{S_ID}, {n}\ns_cbranch_scc1 {'L_j_' + nm if nm in roles else 'L_end0'}\ns_sub_u32 s{S_ID}, s{S_ID}, {n}")
    b(f"s_and_b32 s{S_ID}, s{S_ID}, 31\ns_branch L_team")
    b.label("L_end0")
    b("s_endpgm")
    for nm in roles: b(f"L_j_{nm}:\ns_branch L_{nm}")
    team.emit(b, nlayers, **team_kw)
    if "hw" in roles: hw.emit(b, nlayers)
    if "ow" in roles: ow.emit(b, nlayers)
    if "qw" in roles: qw.emit(b, nlayers)
    if "bw" in roles:
        import bw
        bw.emit(b, nlayers, **bw_kw)
    b.reset()
    b.label("L_end")
    b("s_waitcnt vmcnt(0)")
    return b.finish()

def full(**kw):
    ref = open(os.path.join(os.path.dirname(os.path.abspath(__file__)), "..", "cdna_kernels", NAME + ".s.ref")).read()
    head = [l for l in ref.split("\n") if l.startswith(";") and "@launch" not in l and "Override launch" not in l and "grid=ceil" not in l]
    out = "\n".join(head) + f"\n; @launch grid=(256,1,1) block=(256,1,1) lds={LDS_BYTES}\n"
    out += f""".amdgcn_target "amdgcn-amd-amdhsa--gfx950"
.text
.globl {NAME}_kernel
.p2align 8
.type {NAME}_kernel,@function
{NAME}_kernel:
"""
    out += body(**kw)
    out += f"""s_endpgm
.section .rodata,"a"
.p2align 6
.amdhsa_kernel {NAME}_kernel
  .amdhsa_next_free_vgpr 512
  .amdhsa_next_free_sgpr 102
  .amdhsa_accum_offset 256
  .amdhsa_group_segment_fixed_size 0
  .amdhsa_kernarg_size 104
  .amdhsa_user_sgpr_count 2
  .amdhsa_user_sgpr_kernarg_segment_ptr 1
  .amdhsa_system_sgpr_workgroup_id_x 1
.end_amdhsa_kernel
"""
    return out
if __name__ == "__main__":
    open(os.path.join(os.path.dirname(os.path.abspath(__file__)), "..", "cdna_kernels", NAME + ".s"), "w").write(full())
```

```python
from common import *
import ow
S_H, S_PAR, S_PA, S_PW, S_NU, S_NN, S_OWN, S_QO, S_SG, S_CG, S_RET, S_LO, S_HI, S_NX, S_FO = 40, 41, 42, 43, 44, 45, 46, 47, 48, 49, 50, 52, 53, 54, 55
S_DE, S_FX, S_MRG, S_U0 = 22, 100, 101, 3
A1, K2B, VB, VS, KA, K2A, VA, K1B = 0, 1, 2, 3, 4, 5, 6, 7
SS, SC, TN, QN1, QN2 = (8, 24), 40, 64, 80, 84
K1, K2, VFA, VFB, K1N, K2N = 56, 60, 108, 112, 116, 62
T, OBX, IX, EL, EG, DM, DX, VS8, PF = 86, 92, 93, 94, 98, 102, 103, 104, 105
L_ONE = 147456
L_EX = (148480, 151552, 157696)
L_XT, L_ET, L_VETO = (0, 65536), 40960, 147456 + 64
def wfrag(kk, i):
    r = 4*(kk*3 + i)
    return a(176 + r, 4) if r < 80 else v(120 + r - 80, 4)
S1 = lambda d, q, k=K1: f"v_mfma_f32_32x32x16_bf16 {v(d,16)}, {v(k,4)}, {q}, 0"
S2 = lambda d, q, k=K2: f"v_mfma_f32_32x32x8_bf16 {v(d,16)}, {v(k,2)}, {q}, {v(d,16)}"
PV = lambda o, h, p: f"v_smfmac_f32_32x32x32_bf16 {o}, {v((VFA, VFB)[h],4)}, {v(p+8*h,8)}, v{IX}"
def ex(b, cur, lo, hi):
    for r in range(lo, hi): b(f"v_exp_f32 v{cur+r}, v{cur+r}")
def kv_addr(b, sreg):
    b(f"""
    s_mul_i32 s{S_T0}, s{sreg}, 2304
    v_add_u32 v{KA}, s{S_T0}, v{K1B}
    v_add_u32 v{K2A}, s{S_T0}, v{K2B}
    v_mad_u32_u24 v{VA}, s{sreg}, v{VS}, v{VB}
    """)
rK1 = lambda off=0, r=K1: f"ds_read_b128 {v(r,4)}, v{KA} offset:{off}"
rK2 = lambda off=0, r=K2: f"ds_read_b32 v{r}, v{K2A} offset:{off}"
rV = lambda h, off=0: f"ds_read_b128 {v((VFA, VFB)[h],4)}, v{VA} offset:{576*h + off}"

def next_addr(b):
    b(f"""
    s_lshl_b32 s{S_NEED}, s{S_LAY}, 6
    s_lshl_b32 s{S_QO}, s{S_NEED}, 5
    s_add_u32 s{S_QO}, s{S_QO}, s{S_H}
    s_mul_i32 s{S_QO}, s{S_QO}, 3584
    s_add_u32 s{S_QO}, s{S_QO}, {W.QB}
    s_add_u32 s{S_NEED}, s{S_NEED}, 1
    s_and_b32 s{S_FO}, s{S_H}, 28
    s_lshl_b32 s{S_FO}, s{S_FO}, {PSH}
    s_add_u32 s{S_FO}, s{S_FO}, {W.PROG + P_QW}
    s_lshl_b32 s{S_FX}, s{S_FO}, 1
    s_add_u32 s{S_FX}, s{S_FX}, {128 << PSH}
    """)
def request(b):
    b.reset()
    b.label("L_bw_req")
    b(f"""
    s_lshl_b32 s{S_T0}, s{S_WAVE}, 10
    s_mul_i32 s{S_T1}, s{S_NX}, 2304
    s_cmp_eq_u32 s{S_WAVE}, 3
    s_cbranch_scc1 L_bw_nd
    s_add_u32 m0, s{S_T0}, s{S_T1}
    s_add_u32 s{S_T0}, s{S_T0}, s{S_QO}
    s_mov_b64 exec, s[{S_DE}:{S_DE+1}]
    buffer_load_dwordx4 v{A1}, s[{S_WS}:{S_WS+3}], s{S_T0} offen sc1 lds
    s_mov_b64 exec, -1
    L_bw_nd:
    s_and_b32 s{S_T0}, s{S_NX}, 1
    s_cmp_lg_u32 s{S_T0}, s{S_PAR}
    s_cbranch_scc1 L_bw_nq
    buffer_load_dwordx4 {v(QN1,4)}, v{A1}, s[{S_WS}:{S_WS+3}], s{S_QO} offen offset:2304 sc1
    buffer_load_dword v{QN2}, v{OBX}, s[{S_WS}:{S_WS+3}], s{S_QO} offen offset:3328 sc1
    L_bw_nq:
    s_add_u32 s{S_NX}, s{S_NX}, 1
    s_add_u32 s{S_NEED}, s{S_NEED}, 1
    s_add_u32 s{S_QO}, s{S_QO}, {32*3584}
    s_sub_u32 s{S_FO}, s{S_FX}, s{S_FO}
    s_setpc_b64 s[{S_RET}:{S_RET+1}]
    """)

def merge(b):
    b.reset()
    b.label("L_bw_mrg")
    b(f"v_add_u32 v{T}, {L_EX[0]}, v{A1}")
    for i in range(9): b(f"ds_read_b128 {v(8+4*i,4)}, v{T} offset:{L_EX[i//3] - L_EX[0] + (i%3)*1024}")
    b(f"s_mov_b32 s{S_MRG}, 0\ns_sub_u32 s{S_T0}, s{S_SEG}, 1\ns_lshr_b32 s{S_T0}, s{S_T0}, 3")
    for k in range(7): b(f"s_cmp_eq_u32 s{S_T0}, {k}\ns_cbranch_scc1 L_bw_o{k}")
    snap = b.snapshot()
    for k in [7] + list(range(7)):
        b.restore(snap)
        if k < 7: b.label(f"L_bw_o{k}")
        for r in range(4): b(f"v_accvgpr_write_b32 a{128+4*k+r}, v{QN1+r}")
        b(f"v_accvgpr_write_b32 a{160+2*k}, v{QN2}")
        for j in range(3):
            for r in range(0, 12, 2): b(f"v_pk_add_f32 {v(TN+r,2)}, {v(TN+r,2)}, {v(8+12*j+r,2)}")
        for r in range(11): b(f"v_accvgpr_write_b32 a{16*k+r}, v{TN+r}")
        b(f"s_setpc_b64 s[{S_RET}:{S_RET+1}]")

def segment(b):
    b(f"s_cmp_gt_u32 s{S_NX}, s{S_SEG}\ns_cbranch_scc0 L_bw_block")
    b.label("L_bw_have")
    b(f"""
    s_add_u32 s{S_NU}, s{S_SEG}, s{S_U0}
    s_lshr_b32 s{S_NU}, s{S_NU}, 3
    s_lshr_b32 s{S_OWN}, s{S_SEG}, 1
    s_sub_u32 s{S_OWN}, s{S_WAVE}, s{S_OWN}
    s_add_u32 s{S_OWN}, s{S_OWN}, 3
    s_and_b32 s{S_OWN}, s{S_OWN}, 3
    """)
    kv_addr(b, S_SEG)
    b(f"s_cmp_lg_u32 s{S_MRG}, 0\ns_waitcnt vmcnt(0) lgkmcnt(0)\ns_barrier")
    prof(b, 0)
    b(rK1()); b(rK2()); b(rV(0)); b(rV(1))
    b(f"buffer_load_dword v{PF}, off, s[{S_WS}:{S_WS+3}], s{S_FO} sc1")
    if TRACE_ON[0] == 3: b(f"s_cmp_lg_u32 s{S_MRG}, 0")
    b(f"s_cbranch_scc0 L_bw_nm\ns_call_b64 s[{S_RET}:{S_RET+1}], L_bw_mrg\nL_bw_nm:")
    q1 = lambda k: a(128 + 4*k, 4); q2 = lambda k: a(160 + 2*k, 2); st = lambda k: a(16*k, 16)
    qa, qb, tn = v(QN1, 4), v(QN2, 2), v(TN, 16)
    UB = (SS[0], SC)
    kv_addr(b, S_OWN)
    b(rK1(0, K1N)); b(rK2(0, K2N))
    for i in range(6): b(f"v_mov_b64 {v(TN+2*i,2)}, 0")
    b(S1(UB[0], q1(0))); b(S1(SS[1], qa, K1N)); b(rK1(9216, K1N))
    b(S2(UB[0], q2(0))); b(S2(SS[1], qb, K2N)); b(rK2(9216, K2N))
    b(f"s_cmp_eq_u32 s{S_NU}, 0\ns_cbranch_scc1 L_bw_u")
    for k in range(8):
        cur, nxt = UB[k % 2], UB[(k + 1) % 2]
        ex(b, cur, 0, 2)
        if k > 0: b(PV(st(k-1), 1, nxt))
        if k == 3: b(f"v_cmp_gt_u32 vcc, s{S_NEED}, v{PF}")
        ex(b, cur, 2, 5)
        if k < 7: b(S1(nxt, q1(k+1)))
        if k == 3:
            b(f"s_cbranch_vccnz L_bw_np\ns_call_b64 s[{S_RET}:{S_RET+1}], L_bw_req\nL_bw_np:")
        ex(b, cur, 5, 10)
        if k < 7: b(S2(nxt, q2(k+1)))
        ex(b, cur, 10, 13)
        b(PV(st(k), 0, cur))
        if k < 7: b(f"s_cmp_eq_u32 s{S_NU}, {k+1}")
        ex(b, cur, 13, 16)
        if k < 7: b(f"s_cbranch_scc1 L_bw_u{k}")
    b(PV(st(7), 1, UB[1]))
    b.label("L_bw_n")
    prof(b, 1)
    b(f"""
    s_and_b32 s{S_T0}, s{S_SEG}, 1
    s_cmp_lg_u32 s{S_T0}, s{S_PAR}
    s_cbranch_scc1 L_bw_next
    s_sub_u32 s{S_NN}, s{S_SEG}, s{S_OWN}
    s_cbranch_scc1 L_bw_x
    s_lshr_b32 s{S_NN}, s{S_NN}, 2
    """)
    b.reset()
    b.auto_wait = False
    ex(b, SS[1], 0, 2)
    b.label("L_bw_nl")
    for u in range(4):
        e = u % 2
        cur, nxt = SS[1 - e], SS[e]
        b(rV(1, 9216*e)); b(rV(0, 9216*e))
        if e: b(f"v_add_u32 v{VA}, v{VA}, v{VS8}")
        ex(b, cur, 2, 5)
        b("s_waitcnt lgkmcnt(2)")
        b(S1(nxt, qa, K1N)); b(rK1(18432 + 9216*u, K1N))
        ex(b, cur, 5, 10)
        b(S2(nxt, qb, K2N)); b("s_waitcnt lgkmcnt(1)")
        ex(b, cur, 10, 13)
        b(PV(tn, 0, cur)); b(rK2(18432 + 9216*u, K2N)); b(f"s_sub_u32 s{S_NN}, s{S_NN}, 1")
        if u == 3: b(f"v_add_u32 v{KA}, 36864, v{KA}\nv_add_u32 v{K2A}, 36864, v{K2A}")
        ex(b, cur, 13, 16)
        b(f"s_cbranch_scc1 L_bw_ne{e}")
        ex(b, nxt, 0, 2)
        b(PV(tn, 1, cur))
    b("s_branch L_bw_nl")
    b.auto_wait = True
    b.reset()
    b.label("L_bw_ne1")
    b("s_nop 0"); b(PV(tn, 1, SS[0])); b("s_branch L_bw_x")
    b.label("L_bw_ne0")
    b("s_nop 0"); b(PV(tn, 1, SS[1]))
    b.label("L_bw_x")
    prof(b, 2)
    b(f"""
    s_cmp_eq_u32 s{S_OWN}, 3
    s_cselect_b32 s{S_MRG}, 1, 0
    s_cbranch_scc1 L_bw_next
    s_mul_i32 s{S_T1}, s{S_OWN}, 3072
    s_add_u32 s{S_T1}, s{S_T1}, {L_EX[0]}
    s_cmp_eq_u32 s{S_OWN}, 2
    s_cselect_b32 s{S_T0}, {L_EX[2]}, s{S_T1}
    v_add_u32 v{T}, s{S_T0}, v{A1}
    """)
    for i in range(3): b(f"ds_write_b128 v{T}, {v(TN+4*i,4)} offset:{i*1024}")
    b("s_branch L_bw_next")
    for k in range(7):
        b.reset(); b.label(f"L_bw_u{k}")
        b("s_nop 0"); b(PV(st(k), 1, UB[k % 2])); b("s_branch L_bw_n")
    b.label("L_bw_u")
    b.nop(10); b("s_branch L_bw_n")
    b.reset()
    b.label("L_bw_block")
    b(f"v_mov_b32 v{T}, 0")
    wait_words(b, T, S_FO, S_NEED, T+1, 1, scale=False)
    b(f"s_call_b64 s[{S_RET}:{S_RET+1}], L_bw_req\ns_branch L_bw_have")

def truemax(b):
    b.reset()
    b.label("L_bw_tm")
    qa, qb, tn, S0, M = v(QN1, 4), v(QN2, 2), v(TN, 16), SC, T+2
    b(f"v_mov_b32 v{M}, 0xff800000\ns_mov_b32 s{S_NN}, 0")
    b.label("L_bw_tm1")
    kv_addr(b, S_NN)
    b(rK1()); b(rK2()); b(S1(S0, qa)); b(S2(S0, qb))
    for r in range(0, 16, 2): b(f"v_max3_f32 v{M}, v{M}, v{S0+r}, v{S0+r+1}")
    b(f"s_add_u32 s{S_NN}, s{S_NN}, 1\ns_cmp_lt_u32 s{S_NN}, 64\ns_cbranch_scc1 L_bw_tm1")
    b(f"v_mov_b32 v{M+1}, v{M}\nv_permlane32_swap_b32 v{M}, v{M+1}\nv_max_f32 v{M}, v{M}, v{M+1}\ns_mov_b32 s{S_NN}, 0")
    for i in range(8): b(f"v_mov_b64 {v(TN+2*i,2)}, 0")
    b.label("L_bw_tm2")
    kv_addr(b, S_NN)
    b(rK1()); b(rK2()); b(rV(0)); b(rV(1)); b(S1(S0, qa)); b(S2(S0, qb))
    for r in range(16): b(f"v_sub_f32 v{S0+r}, v{S0+r}, v{M}")
    ex(b, S0, 0, 16)
    b(PV(tn, 0, S0)); b(PV(tn, 1, S0))
    b.nop(8)
    b(f"s_add_u32 s{S_NN}, s{S_NN}, 1\ns_cmp_lt_u32 s{S_NN}, 64\ns_cbranch_scc1 L_bw_tm2")
    b.nop(12)
    b(f"v_mov_b32 v{T}, v{TN+10}\nv_permlane32_swap_b32 v{TN+10}, v{T}\ns_setpc_b64 s[{S_RET}:{S_RET+1}]")

def finish(b):
    b(f"s_waitcnt lgkmcnt(0)\ns_barrier\ns_nop 9\ns_cmp_lg_u32 s{S_MRG}, 0\ns_cbranch_scc0 L_bw_fm\ns_call_b64 s[{S_RET}:{S_RET+1}], L_bw_mrg\nL_bw_fm:")
    b(f"""
    s_lshl_b32 s{S_T1}, s{S_LAY}, 6
    s_lshl_b32 s{S_T0}, s{S_WAVE}, 1
    s_add_u32 s{S_T0}, s{S_T0}, s{S_PAR}
    s_add_u32 s{S_T0}, s{S_T0}, s{S_T1}
    s_lshl_b32 s{S_T0}, s{S_T0}, 5
    s_add_u32 s{S_T0}, s{S_T0}, s{S_H}
    s_mul_i32 s{S_QO}, s{S_T0}, 1152
    s_add_u32 s{S_QO}, s{S_QO}, {W.OB}
    """)
    for k in range(8):
        for r in range(11): b(f"v_accvgpr_read_b32 v{TN+r}, a{16*k+r}")
        b(f"""
        v_mov_b32 v{T}, v{TN+10}
        v_permlane32_swap_b32 v{TN+10}, v{T}
        v_cmp_nlt_f32 vcc, s{S_LO}, v{TN+10}
        v_cmp_ngt_f32 s[{S_T0}:{S_T0+1}], s{S_HI}, v{TN+10}
        s_or_b64 vcc, vcc, s[{S_T0}:{S_T0+1}]
        s_cbranch_scc0 L_bw_f{k}
        """)
        for r in range(4): b(f"v_accvgpr_read_b32 v{QN1+r}, a{128+4*k+r}")
        b(f"v_accvgpr_read_b32 v{QN2}, a{160+2*k}")
        b(f"s_call_b64 s[{S_RET}:{S_RET+1}], L_bw_tm")
        b.label(f"L_bw_f{k}")
        b(f"v_rcp_f32 v{T}, v{TN+10}")
        for r in range(10): b(f"v_mul_f32 v{TN+r}, v{TN+r}, v{T}")
        d = 8 + 8*(k % 2)
        for i in range(5): b(cvt(d + i, TN + 2*i))
        b(f"buffer_store_dwordx4 {v(d,4)}, v{A1}, s[{S_WS}:{S_WS+3}], s{S_QO} offen sc1")
        b(f"buffer_store_dword v{d+4}, v{OBX}, s[{S_WS}:{S_WS+3}], s{S_QO} offen offset:1024 sc1")
        b(f"s_add_u32 s{S_QO}, s{S_QO}, {8*32*1152}")
        if k in (0, 2, 7):
            b(f"s_lshl_b32 s{S_T1}, s{S_LAY}, 6\ns_add_u32 s{S_T1}, s{S_T1}, {8*(k+1)}")
            signal(b, S_PA, S_T1, T, T+1)

def pnext_addr(b):
    b(f"""
    s_lshl_b32 s{S_NEED}, s{S_LAY}, 6
    s_add_u32 s{S_NEED}, s{S_NEED}, s{S_NX}
    s_mul_i32 s{S_QO}, s{S_NEED}, 36864
    s_add_u32 s{S_QO}, s{S_QO}, {W.OB}
    s_add_u32 s{S_NEED}, s{S_NEED}, 1
    s_and_b32 s{S_FO}, s{S_NX}, 1
    s_lshl_b32 s{S_FO}, s{S_FO}, 7
    s_lshl_b32 s{S_FO}, s{S_FO}, {PSH}
    s_add_u32 s{S_FO}, s{S_FO}, {W.PROG + P_BW}
    """)
def prequest(b):
    b.reset()
    b.label("L_bw_preq")
    b(f"s_mul_i32 s{S_T0}, s{S_WAVE}, 9216\ns_add_u32 s{S_T0}, s{S_T0}, s{S_QO}\ns_lshl_b32 s{S_T2}, s{S_WAVE}, 12\ns_add_u32 s{S_T2}, s{S_T2}, s{S_NU}")
    for kk in range(4):
        for tt in range(2):
            b(f"s_add_u32 m0, s{S_T2}, {tt*18432 + kk*1024}\ns_add_u32 s{S_T1}, s{S_T0}, {kk*2304 + tt*256}")
            b(f"buffer_load_dwordx4 v{DM}, s[{S_WS}:{S_WS+3}], s{S_T1} offen sc1 lds")
    b(f"s_mul_i32 s{S_T0}, s{S_WAVE}, 4608\ns_add_u32 s{S_T0}, s{S_T0}, s{S_QO}\ns_lshl_b32 s{S_T2}, s{S_WAVE}, 8\ns_add_u32 s{S_T2}, s{S_T2}, s{S_NU}")
    for e in range(2):
        for tt in range(2):
            b(f"s_add_u32 m0, s{S_T2}, {tt*18432 + (16+e)*1024}\ns_add_u32 s{S_T1}, s{S_T0}, {e*16*1152 + tt*64}")
            b(f"buffer_load_dword v{DX}, s[{S_WS}:{S_WS+3}], s{S_T1} offen sc1 lds")
    b(f"s_add_u32 s{S_NX}, s{S_NX}, 21\ns_xor_b32 s{S_NU}, s{S_NU}, {L_XT[0] ^ L_XT[1]}\ns_setpc_b64 s[{S_RET}:{S_RET+1}]")

def project(b):
    RES, ACC, FB, FA, XR = 64, 8, 32, 76, 77
    b(f"""
    s_cmp_ge_u32 s{S_SG}, 21
    s_cbranch_scc1 L_bw_pe
    s_mov_b32 s{S_SEG}, s{S_SG}
    s_mov_b32 s{S_NX}, s{S_SG}
    s_mov_b32 s{S_NU}, {L_XT[0]}
    s_mov_b32 s{S_NN}, 0
    v_lshrrev_b32 v{FA}, 2, v{A1}
    v_and_b32 v{FA}, 127, v{FA}
    v_lshlrev_b32 v{FA}, {PSH}, v{FA}
    v_add_u32 v{XR}, {L_XT[0]}, v{A1}
    """)
    b.label("L_bw_pl")
    b(f"s_cmp_gt_u32 s{S_NX}, s{S_SEG}\ns_cbranch_scc1 L_bw_ph")
    b(f"s_cmp_eq_u32 s{S_NN}, 0\ns_cbranch_scc1 L_bw_pw")
    signal(b, S_PW, S_NN, T, T+1, code=4)
    b(f"s_mov_b32 s{S_NN}, 0")
    b.label("L_bw_pw")
    pnext_addr(b)
    b(f"v_mov_b32 v{T}, v{FA}")
    wait_words(b, T, S_FO, S_NEED, T+1, 1, code=3, scale=False)
    b(f"s_call_b64 s[{S_RET}:{S_RET+1}], L_bw_preq")
    b.label("L_bw_ph")
    pnext_addr(b)
    b(f"buffer_load_dword v{PF}, v{FA}, s[{S_WS}:{S_WS+3}], s{S_FO} offen sc1")
    b(f"s_waitcnt vmcnt(0)\nv_cmp_gt_u32 vcc, s{S_NEED}, v{PF}")
    b(f"""
    v_mov_b32 v{T}, {L_VETO}
    v_mov_b32 v{T+1}, s{S_NEED}
    s_cbranch_vccz L_bw_pv
    ds_write_b32 v{T}, v{T+1}
    L_bw_pv:
    s_waitcnt lgkmcnt(0)
    s_barrier
    ds_read_b32 v{PF}, v{T}
    s_cmp_eq_u32 s{S_NN}, 0
    s_cbranch_scc1 L_bw_ps
    """)
    signal(b, S_PW, S_NN, T+2, T+3, barrier=False, code=4)
    b.label("L_bw_ps")
    b(f"s_mul_i32 s{S_OWN}, s{S_SEG}, 36864")
    for n in range(3): b(f"buffer_load_dwordx4 {v(RES+4*n,4)}, v{EG+n}, s[{S_XI}:{S_XI+3}], s{S_OWN} offen sc1")
    rd = lambda kk, tt: f"ds_read_b128 {v(FB + 8*(kk%2) + 4*tt,4)}, v{XR} offset:{tt*18432 + kk*1024}"
    b(f"v_cmp_eq_u32 vcc, s{S_NEED}, v{PF}")
    b(rd(0, 0)); b(rd(0, 1))
    b(f"s_cbranch_vccnz L_bw_pn\ns_call_b64 s[{S_RET}:{S_RET+1}], L_bw_preq\nL_bw_pn:")
    for kk in range(18):
        for tt in range(2):
            for i in range(3):
                d = ACC + 12*tt + 4*i
                b(f"v_mfma_f32_16x16x32_bf16 {v(d,4)}, {wfrag(kk,i)}, {v(FB + 8*(kk%2) + 4*tt,4)}, {'0' if kk == 0 else v(d,4)}")
                if kk < 17 and tt == 0 and i < 2: b(rd(kk + 1, i))
    b(f"s_mul_i32 s{S_T0}, s{S_WAVE}, 6144\nv_add_u32 v{T}, s{S_T0}, v{A1}\nv_xor_b32 v{XR}, {L_XT[0] ^ L_XT[1]}, v{XR}")
    for n in range(6): b(f"ds_write_b128 v{T}, {v(ACC+4*n,4)} offset:{L_ET + n*1024}")
    b("s_waitcnt lgkmcnt(0)\ns_barrier")
    for n in range(3):
        for hf in range(2): b(f"ds_read_b128 {v(8 + 8*n + 4*hf,4)}, v{EL+n} offset:{hf*256}")
    for n in range(3):
        for k in range(4):
            b(f"v_lshlrev_b32 v{T}, 16, v{RES+4*n+k}\nv_and_b32 v{T+1}, 0xffff0000, v{RES+4*n+k}")
            b(f"v_add_f32 v{T}, v{T}, v{8+8*n+2*k}\nv_add_f32 v{T+1}, v{T+1}, v{8+8*n+2*k+1}")
            b(cvt(RES + 4*n + k, T))
        b(f"buffer_store_dwordx4 {v(RES+4*n,4)}, v{EG+n}, s[{S_XO}:{S_XO+3}], s{S_OWN} offen sc1")
    b(f"""
    s_lshl_b32 s{S_NN}, s{S_LAY}, 6
    s_add_u32 s{S_NN}, s{S_NN}, s{S_SEG}
    s_add_u32 s{S_NN}, s{S_NN}, 1
    s_add_u32 s{S_SEG}, s{S_SEG}, 21
    s_cmp_lt_u32 s{S_SEG}, 64
    s_cbranch_scc1 L_bw_pl
    """)
    signal(b, S_PW, S_NN, T, T+1, code=4)
    b.label("L_bw_pe")

def emit(b, nlayers, lo=2.0**-80, hi=2.0**80):
    b.reset()
    b.label("L_bw")
    b(f"""
    s_and_b32 s{S_H}, s{S_ID}, 31
    s_lshr_b32 s{S_PAR}, s{S_ID}, 5
    s_lshl_b32 s{S_PA}, s{S_ID}, 2
    s_lshl_b32 s{S_PA}, s{S_PA}, {PSH}
    s_add_u32 s{S_PW}, s{S_PA}, {W.PROG + P_WW}
    s_add_u32 s{S_PA}, s{S_PA}, {W.PROG + P_BW}
    s_mul_i32 s{S_SG}, s{S_ID}, 21846
    s_lshr_b32 s{S_SG}, s{S_SG}, 16
    s_mul_i32 s{S_T0}, s{S_SG}, 3
    s_sub_u32 s{S_CG}, s{S_ID}, s{S_T0}
    s_mul_i32 s{S_T1}, s{S_CG}, 384
    s_mul_i32 s{S_T0}, s{S_WAVE}, 96
    s_add_u32 s{S_T1}, s{S_T1}, s{S_T0}
    s_mov_b32 s{S_LO}, {fhex(lo)}
    s_mov_b32 s{S_HI}, {fhex(hi)}
    """)
    srd(b, S_WG, PT['WO'], 576*1152)
    def main_row(r):
        b(f"v_bfe_u32 v6, v{r}, 3, 1\nv_mul_u32_u24 v6, 18, v6\nv_lshrrev_b32 v7, 4, v{r}\nv_lshl_add_u32 v6, v7, 3, v6\nv_and_b32 v{r}, 7, v{r}\nv_add_u32 v{r}, v{r}, v6")
    def extra_row(r):
        b(f"v_and_b32 v6, 12, v{r}\nv_lshrrev_b32 v7, 4, v{r}\nv_lshl_add_u32 v6, v7, 1, v6\nv_bfe_u32 v7, v{r}, 1, 1\nv_add_u32 v6, v6, v7\nv_mul_u32_u24 v6, 18, v6\nv_and_b32 v{r}, 1, v{r}\nv_add3_u32 v{r}, v{r}, v6, 16")
    ow.row96_addr(b, 8, main_row, S_T1)
    ow.row96_addr(b, 12, extra_row, S_T1)
    ow.load96(b, [(8, kk*36*1152) for kk in range(16)] + [(12, e*16*18*1152) for e in range(2)], wfrag, 16)
    for n in range(3):
        b(f"""
        v_add_u32 v8, {256*n}, v0
        v_mul_u32_u24 v9, 2731, v8
        v_lshrrev_b32 v9, 16, v9
        v_mul_u32_u24 v10, 24, v9
        v_sub_u32 v8, v8, v10
        v_mul_u32_u24 v10, 1152, v9
        v_lshl_add_u32 v10, v8, 4, v10
        s_mul_i32 s{S_T0}, s{S_CG}, 384
        v_add_u32 v{EG+n}, s{S_T0}, v10
        v_mul_u32_u24 v10, 10923, v8
        v_lshrrev_b32 v10, 16, v10
        v_mul_u32_u24 v11, 6, v10
        v_sub_u32 v8, v8, v11
        v_mul_u32_u24 v10, 6144, v10
        v_lshl_add_u32 v10, v8, 9, v10
        v_lshrrev_b32 v11, 4, v9
        v_mul_u32_u24 v11, 3072, v11
        v_and_b32 v9, 15, v9
        v_lshl_add_u32 v10, v9, 4, v10
        v_add_u32 v10, v10, v11
        v_add_u32 v{EL+n}, {L_ET}, v10
        """)
    b(f"""
    v_and_b32 v8, 63, v0
    v_lshlrev_b32 v{A1}, 4, v8
    v_and_b32 v9, 31, v8
    v_lshrrev_b32 v10, 5, v8
    v_lshlrev_b32 v11, 2, v9
    v_and_b32 v14, 0x33, v8
    v_bfe_u32 v15, v8, 2, 1
    v_lshl_add_u32 v14, v15, 3, v14
    v_bfe_u32 v15, v8, 3, 1
    v_lshl_add_u32 v14, v15, 2, v14
    v_lshlrev_b32 v{K1B}, 4, v14
    v_and_b32 v14, 31, v14
    v_lshlrev_b32 v14, 2, v14
    v_add_u32 v{K2B}, 1024, v14
    v_mov_b32 v{IX}, 0xdddd
    s_cmp_eq_u32 s{S_WAVE}, 2
    s_cselect_b64 s[{S_DE}:{S_DE+1}], 0xffff, -1
    s_lshl_b32 s{S_U0}, s{S_WAVE}, 1
    s_add_u32 s{S_U0}, s{S_U0}, s{S_PAR}
    s_sub_u32 s{S_U0}, 7, s{S_U0}
    s_mov_b32 s{S_MRG}, 0
    v_mov_b32 v12, {OOB}
    v_cmp_gt_u32 vcc, 32, v8
    v_cndmask_b32 v{OBX}, v12, v11, vcc
    v_mul_u32_u24 v11, 18, v10
    v_add_u32 v11, v11, v9
    v_lshlrev_b32 v11, 4, v11
    v_add_u32 v11, 1152, v11
    v_mov_b32 v12, {L_ONE}
    v_mov_b32 v13, 2304
    v_cmp_gt_u32 vcc, 18, v9
    v_cndmask_b32 v{VB}, v12, v11, vcc
    v_cndmask_b32 v{VS}, 0, v13, vcc
    v_lshlrev_b32 v{VS8}, 3, v{VS}
    v_mul_u32_u24 v11, 1152, v10
    v_bfe_u32 v13, v8, 4, 1
    v_lshl_add_u32 v11, v13, 9, v11
    v_and_b32 v13, 15, v8
    v_lshl_add_u32 v{DM}, v13, 4, v11
    v_and_b32 v11, 3, v8
    v_mul_u32_u24 v11, 1152, v11
    v_and_b32 v13, 60, v8
    v_add_u32 v11, v11, v13
    v_add_u32 v{DX}, 1024, v11
    v_mov_b32 v16, s{S_ONE}
    v_mov_b32 v17, s{S_ONE}
    v_mov_b32 v18, s{S_ONE}
    v_mov_b32 v19, s{S_ONE}
    ds_write_b128 v12, v[16:19]
    ds_write_b128 v12, v[16:19] offset:576
    ds_write_b128 v12, v[16:19] offset:9216
    ds_write_b128 v12, v[16:19] offset:9792
    v_mov_b32 v{K2+1}, 0
    v_mov_b32 v{QN2+1}, 0
    v_mov_b32 v{K2N+1}, 0
    s_mov_b32 s{S_LAY}, 0
    """)
    for r in range(176): b(f"v_accvgpr_write_b32 a{r}, 0")
    b("s_waitcnt lgkmcnt(0)")
    srd(b, S_XI, PT['WS'], XB, W.X1); srd(b, S_XO, PT['WS'], XB, W.X2)
    wait_init(b, T, T+1)
    b.label("L_bw_layer")
    b(f"s_mov_b32 s{S_SEG}, 0\ns_mov_b32 s{S_NX}, 0")
    next_addr(b)
    b.label("L_bw_loop")
    segment(b)
    truemax(b)
    request(b)
    merge(b)
    prequest(b)
    b.reset()
    b.label("L_bw_next")
    trace(b, 5, T)
    prof(b, 3)
    b(f"s_add_u32 s{S_SEG}, s{S_SEG}, 1\ns_cmp_lt_u32 s{S_SEG}, 64\ns_cbranch_scc1 L_bw_loop")
    finish(b)
    project(b)
    b(f"s_add_u32 s{S_LAY}, s{S_LAY}, 1\ns_cmp_ge_u32 s{S_LAY}, {nlayers}\ns_cbranch_scc1 L_end")
    srd(b, S_XI, PT['WS'], XB, W.X3); srd(b, S_XO, PT['OUT'], XB)
    b("s_branch L_bw_layer")
```

```python
import struct, math
def v(b, n=1): return "v%d" % b if n == 1 else "v[%d:%d]" % (b, b+n-1)
def a(b, n=1): return "a%d" % b if n == 1 else "a[%d:%d]" % (b, b+n-1)
def s(b, n=1): return "s%d" % b if n == 1 else "s[%d:%d]" % (b, b+n-1)
def fhex(x): return hex(struct.unpack('<I', struct.pack('<f', x))[0])
def cvt(d, x): return f"v_cvt_pk_bf16_f32 v{d}, v{x}, v{x+1}"

PT = dict(X=64, MEM0=66, Q=68, K=70, V=72, O=74, WQKV=80, WO=82, OUT=84, DBG=86, WS=88)

XB = 2048*576*2
class W:
    TEAM = 0
    PROG = 0x60000
    ARCH = 0x70000
    X1 = ARCH + 2*64*9216
    X2 = X1 + XB
    X3 = X2 + XB
    OB = X3 + XB
    QB = OB + 2*XB
    QB_L = 64*32*3584
    O = QB + 2*QB_L
    O_L = 64*2*32*4096
    KV = O + 2*O_L
    KV_L = 64*32*16384
    TRACE = KV + 2*KV_L
    END = TRACE + 256*8192
PSH = 5
P_TEAM, P_HWP, P_HWF, P_OW, P_QW, P_BW, P_WW = [x << PSH for x in (0, 128, 512, 896, 1152, 1408, 1664)]
D_T0, D_SLOW, D_TB, D_TW = 0, 4, 8, 128

N_HW, N_OW, N_QW, N_BW = 96, 48, 16, 64
OOB = 0x40000000
TIMEOUT = 400000
LDS_BYTES = 163840

S_WAVE, S_ID = 20, 21
S_WS = 12
S_XI = 16
S_XO = 24
S_WG = 28
S_LAY, S_SEG, S_NEED = 32, 33, 38
S_T0, S_T1, S_T2, S_TO = 34, 35, 36, 37
S_ONE = 39

def srd(b, r, ptr, nbytes, off=None):
    if off is None:
        b(f"s_mov_b32 s{r}, s{ptr}\ns_mov_b32 s{r+1}, s{ptr+1}")
    else:
        b(f"s_add_u32 s{r}, s{ptr}, {off}\ns_addc_u32 s{r+1}, s{ptr+1}, 0")
    b(f"s_mov_b32 s{r+2}, {nbytes}\ns_mov_b32 s{r+3}, 0x20000")

TRACE_ON = [False]
S_TR = 90
def trace_init(b, gid):
    if not TRACE_ON[0]: return
    b(f"s_lshl_b32 s{S_TR}, s{gid}, 13")
    srd(b, 96, PT['WS'], 256*8192, W.TRACE)
def trace(b, code, t0, wave=0, check=True):
    if TRACE_ON[0] != True: return
    L = uid("t")
    if check: b(f"s_cmp_lg_u32 s{S_WAVE}, {wave}\ns_cbranch_scc1 {L}")
    b(f"""
    s_memrealtime s[92:93]
    s_waitcnt lgkmcnt(0)
    v_mov_b32 v{t0}, {code}
    v_mov_b32 v{t0+1}, s92
    s_mov_b64 exec, 1
    buffer_store_dwordx2 {v(t0,2)}, off, s[96:99], s{S_TR}
    s_mov_b64 exec, -1
    s_add_u32 s{S_TR}, s{S_TR}, 8
    {L}:
    """)
    b.vm = [x for x in b.vm if "s[96:99]" not in x.text]

def prof(b, k):
    if TRACE_ON[0] != 3: return
    r = 56 + k if k < 8 else k - 4
    b(f"s_memtime s[92:93]\ns_waitcnt lgkmcnt(0)\ns_sub_u32 s93, s92, s91\ns_mov_b32 s91, s92\ns_add_u32 s{r}, s{r}, s93")
def prof_init(b):
    if TRACE_ON[0] != 3: return
    for r in list(range(56, 64)) + list(range(4, 12)): b(f"s_mov_b32 s{r}, 0")
    b("s_memtime s[92:93]\ns_memrealtime s[94:95]\ns_waitcnt lgkmcnt(0)\ns_mov_b32 s91, s92")
def prof_dump(b):
    if TRACE_ON[0] != 3: return
    b("s_memrealtime s[92:93]\ns_waitcnt lgkmcnt(0)\ns_sub_u32 s11, s92, s94")
    for i, r in enumerate(list(range(56, 64)) + list(range(4, 12))): b(f"v_mov_b32 v{8+i}, s{r}")
    b(f"s_lshl_b32 s92, s{S_WAVE}, 6\ns_add_u32 s92, s92, s{S_TR}")
    for i in range(4): b(f"buffer_store_dwordx4 v[{8+4*i}:{11+4*i}], off, s[96:99], s92 offset:{16*i}")

_uid = [0]
def uid(p):
    _uid[0] += 1
    return f"L_{p}{_uid[0]}"

def wait_words(b, va, so, need, tmp, sleep=2, code=1, scale=True):
    L = uid("w")
    if scale: b(f"v_lshlrev_b32 v{va}, {PSH}, v{va}")
    b.label(L)
    b(f"""
    buffer_load_dword v{tmp}, v{va}, s[{S_WS}:{S_WS+3}], s{so} offen sc1
    s_add_u32 s{S_TO}, s{S_TO}, 1
    s_waitcnt vmcnt(0)
    v_cmp_gt_u32 vcc, s{need}, v{tmp}
    s_cbranch_vccz {L}_d
    s_sleep {sleep}
    s_cmp_lt_u32 s{S_TO}, {TIMEOUT}
    s_cbranch_scc1 {L}
    {L}_d:
    """)
    trace(b, code, va)

def signal(b, so, val, t0, t1, barrier=True, code=2):
    L = uid("s")
    if barrier: b("s_waitcnt vmcnt(0) lgkmcnt(0)\ns_barrier")
    vm = list(b.vm)
    b(f"""
    s_cmp_lg_u32 s{S_WAVE}, 0
    s_cbranch_scc1 {L}
    v_mov_b32 v{t0}, s{val}
    v_mov_b32 v{t1}, 0
    s_mov_b64 exec, 1
    buffer_store_dword v{t0}, v{t1}, s[{S_WS}:{S_WS+3}], s{so} offen sc1
    s_mov_b64 exec, -1
    {L}:
    """)
    trace(b, code, t0)
    b.vm = vm

def wait_init(b, t0, t1, worker=True):
    L = uid("i")
    b.label(L)
    b(f"""
    v_mov_b32 v{t0}, 0
    global_load_dword v{t1}, v{t0}, s[{PT['DBG']}:{PT['DBG']+1}] offset:{D_T0} sc1
    global_load_dword v{t0}, v{t0}, s[{PT['DBG']}:{PT['DBG']+1}] offset:{D_TW} sc1
    s_add_u32 s{S_TO}, s{S_TO}, 1
    s_waitcnt vmcnt(0)
    v_min_u32 v{t1}, 32, v{t1}
    v_add_u32 v{t1}, v{t1}, v{t0}
    v_cmp_gt_u32 vcc, 256, v{t1}
    s_cbranch_vccz {L}_d
    s_sleep 4
    s_cmp_lt_u32 s{S_TO}, {TIMEOUT}
    s_cbranch_scc1 {L}
    {L}_d:
    """)
    trace(b, 9, t0)
    if worker: prof_init(b)

def stats_stream(rd_addr, RB, T, st_addr):
    S, Q, X, Y = T, T+1, T+2, T+3
    rd = lambda i: f"ds_read_b128 {v(RB + 4*(i%2),4)}, v{rd_addr} offset:{i*1024}"
    o = [rd(0), rd(1), f"v_mov_b32 v{S}, 0", f"v_mov_b32 v{Q}, 0", None, None, None, None, None, None]
    for i in range(9):
        for k in range(4):
            d = RB + 4*(i%2) + k
            o += [f"v_lshlrev_b32 v{X}, 16, v{d}", f"v_and_b32 v{Y}, 0xffff0000, v{d}"]
            if k == 3 and i + 2 < 9: o.append(rd(i + 2))
            o += [f"v_add_f32 v{S}, v{S}, v{X}", f"v_fmac_f32 v{Q}, v{X}, v{X}", f"v_add_f32 v{S}, v{S}, v{Y}", f"v_fmac_f32 v{Q}, v{Y}, v{Y}"]
    for ctl in ("quad_perm:[1,0,3,2]", "quad_perm:[2,3,0,1]", "row_half_mirror"):
        o += [f"v_add_f32_dpp v{S}, v{S}, v{S} {ctl} row_mask:0xf bank_mask:0xf", f"v_add_f32_dpp v{Q}, v{Q}, v{Q} {ctl} row_mask:0xf bank_mask:0xf"]
    o += [f"v_mul_f32 v{S}, {fhex(1/576)}, v{S}", f"v_mul_f32 v{Q}, {fhex(1/576)}, v{Q}", f"v_fma_f32 v{Q}, -v{S}, v{S}, v{Q}",
          f"v_max_f32 v{Q}, 0, v{Q}", f"v_add_f32 v{Q}, {fhex(1e-5)}, v{Q}", f"v_rsq_f32 v{Q}, v{Q}", None,
          f"ds_write2_b32 v{st_addr}, v{S}, v{Q} offset0:0 offset1:32"]
    return o

def drip(b, lst, nvalu, allow_ds=True):
    n = 0
    while lst and n < nvalu:
        x = lst[0]
        if x is None: lst.pop(0); n += 1; continue
        if callable(x): lst.pop(0); x(); continue
        if not x.startswith("v_"):
            lst.pop(0); b(x); continue
        lst.pop(0); b(x); n += 1

def row_addr(b, dst, lane, t, wx=False):
    b(f"""
    v_lshrrev_b32 v{t}, 3, v{lane}
    v_and_b32 v{dst}, 7, v{lane}
    v_xor_b32 v{dst}, v{dst}, v{t}
    s_lshr_b32 s{S_T0}, s{S_WAVE}, {1 if wx else 2}
    v_xor_b32 v{dst}, s{S_T0}, v{dst}
    s_lshl_b32 s{S_T0}, s{S_WAVE}, 3
    v_add_u32 v{t}, s{S_T0}, v{t}
    v_mul_u32_u24 v{t}, 1152, v{t}
    v_lshl_add_u32 v{dst}, v{dst}, 4, v{t}
    """)
```

```python
from common import *
R = 3
L_XT, L_MT, L_KM, L_VM, L_ST, L_CS, L_RING, SLOT, NSLOT = 0, 36864, 46080, 50176, 54272, 54528, 57344, 24576, 3
L_W, PIECE = 16384, 36864
S_H, S_R, S_PS, S_FS, S_PSL, S_FSL, S_C = 40, 41, 42, 43, 44, 45, 46
S_PA, S_PB = 47, 48
S_RET = 50
S_MPF, S_SL, S_SH = 52, 53, 54
S_PEND = 49
A1, XA, MA, MD = 0, 1, 2, 3
FB, ACC, T = 8, 24, 72
def wfrag(X, i, kk):
    n = ("QKV".index(X)*9 + kk//2)*2 + i
    r = 8*n + 4*(kk % 2)
    return a(r, 4) if r < 256 else v(80 + r - 256, 4)

def load_weights(b):
    b(f"""
    v_and_b32 v24, 63, v0
    v_lshrrev_b32 v25, 4, v24
    s_lshl_b32 s{S_T0}, s{S_WAVE}, 4
    v_add_u32 v26, s{S_T0}, v25
    v_lshlrev_b32 v26, 13, v26
    s_lshl_b32 s{S_T0}, s{S_H}, 8
    v_add_u32 v26, s{S_T0}, v26
    v_lshlrev_b32 v27, 1, v25
    v_and_b32 v40, 15, v24
    v_xor_b32 v27, v27, v40
    """)
    for q in range(4):
        b(f"v_xor_b32 v41, {8*(q>>1)}, v27\nv_lshl_add_u32 v41, v41, 4, v26\nv_add_u32 v{28+q}, {4*q*8192}, v41")
    b(f"""
    v_bfe_u32 v40, v24, 2, 1       ; rp&1
    v_bfe_u32 v41, v24, 3, 1       ; rp>>1
    v_bfe_u32 v42, v24, 4, 1       ; gb&1
    v_bfe_u32 v43, v24, 5, 1       ; gb>>1
    v_and_b32 v44, 3, v24
    v_lshlrev_b32 v44, 3, v44
    v_add_u32 v44, {L_W}, v44
    v_lshl_add_u32 v46, v41, 1, v40
    v_lshl_add_u32 v45, v42, 3, v46
    v_lshl_add_u32 v45, v45, 8, v44
    v_mul_u32_u24 v47, {PIECE}, v43
    v_add_u32 v45, v45, v47
    v_lshl_add_u32 v46, v42, 2, v46      ; swizzle
    s_lshl_b32 s{S_T0}, s{S_WAVE}, 1
    v_xor_b32 v46, s{S_T0}, v46
    v_lshl_add_u32 v48, v46, 5, v45
    v_xor_b32 v46, 1, v46
    v_lshl_add_u32 v50, v46, 5, v45
    v_add_u32 v49, {2*PIECE}, v48
    v_add_u32 v51, {2*PIECE}, v50
    s_mul_i32 s{S_T2}, s{S_WAVE}, {PIECE}
    s_add_u32 s{S_T2}, s{S_T2}, {L_W}
    s_mov_b32 s{S_WG+2}, {576*8192}
    s_mov_b32 s{S_WG+3}, 0x20000
    """)
    seq = [(X, j) for X in "KVQ" for j in range(9)]
    def dma(t):
        X, j = seq[t]
        if j == 0: b(f"s_mov_b32 s{S_WG}, s{PT[X]}\ns_mov_b32 s{S_WG+1}, s{PT[X]+1}")
        b(f"s_mov_b32 s{S_T0}, {j*64*8192}")
        for q in range(4):
            b(f"s_add_u32 m0, s{S_T2}, {(t % 9)*4096 + q*1024}")
            b(f"buffer_load_dwordx4 v{28+q}, s[{S_WG}:{S_WG+3}], s{S_T0} offen lds")
    for t in range(9): dma(t)
    for t in range(27):
        X, j = seq[t]
        issued = min(27, max(9, t + 8))
        b(f"s_waitcnt vmcnt({4*(issued - t - 1)}) lgkmcnt(0)\ns_barrier")
        if t >= 1 and t + 8 < 27: dma(t + 8)
        for i in range(2):
            for hb in range(2):
                f = wfrag(X, i, 2*j + hb); k, r = f[0], int(f[2:f.index(':')])
                for aa in range(2):
                    b(f"ds_read_b64_tr_b16 {k}[{r+2*aa}:{r+2*aa+1}], v{48 + 2*i + hb} offset:{(t % 9)*4096 + aa*1024}")
    b("s_waitcnt lgkmcnt(0)\ns_barrier")

def prefetch(b):
    L = uid("hp")
    b(f"s_cmp_eq_u32 s{S_LAY}, 0\ns_cbranch_scc1 {L}")
    b(f"""
    s_mul_i32 s{S_T0}, s{S_PS}, 3121
    s_lshr_b32 s{S_T0}, s{S_T0}, 16
    s_mul_i32 s{S_T0}, s{S_T0}, 21
    s_sub_u32 s{S_T0}, s{S_PS}, s{S_T0}
    s_mul_i32 s{S_T0}, s{S_T0}, 12
    s_lshl_b32 s{S_T0}, s{S_T0}, {PSH}
    s_add_u32 s{S_T0}, s{S_T0}, {W.PROG + P_WW}
    s_add_u32 s{S_NEED}, s{S_PS}, 1
    v_lshrrev_b32 v4, 2, v{A1}
    v_min_u32 v4, 8, v4
    """)
    wait_words(b, 4, S_T0, S_NEED, 5, 1)
    b.label(L)
    b(f"s_mul_i32 s{S_T0}, s{S_PS}, 36864\ns_mul_i32 s{S_T1}, s{S_WAVE}, 9216")
    for i in range(9):
        b(f"s_add_u32 m0, s{S_T1}, {L_XT + i*1024 - i*128}")
        b(f"buffer_load_dwordx4 v{XA}, s[{S_XI}:{S_XI+3}], s{S_T0} offen offset:{128*i} sc1 lds")

def colsums(b):
    for r in range(4): b(f"v_mov_b32 v{FB+r}, s{S_ONE}")
    for kk in range(18):
        for n, (X, i) in enumerate([(X, i) for X in "QKV" for i in range(2)]):
            d = ACC + 4*n
            b(f"v_mfma_f32_16x16x32_bf16 {v(d,4)}, {v(FB,4)}, {wfrag(X,i,kk)}, {'0' if kk == 0 else v(d,4)}")
    b(f"v_and_b32 v4, 15, v0\nv_lshlrev_b32 v4, 2, v4\ns_lshl_b32 s{S_T0}, s{S_WAVE}, 7\nv_add_u32 v4, s{S_T0}, v4")
    for n in range(6): b(f"ds_write_b32 v4, v{ACC+4*n} offset:{L_CS + (n//2)*512 + (n%2)*64}")
    b("s_waitcnt lgkmcnt(0)")

def mem_addr(b):
    b(f"""
    s_lshl_b32 s{S_NEED}, s{S_LAY}, 6
    s_add_u32 s{S_NEED}, s{S_NEED}, s{S_FS}
    s_add_u32 s{S_NEED}, s{S_NEED}, 1
    s_mov_b32 s{S_T0}, {W.PROG + P_TEAM}
    v_lshlrev_b32 v5, 3, v{A1}
    v_and_b32 v5, 4095, v5
    """)
def mem_request(b):
    b.reset()
    b.label("L_hw_mreq")
    b(f"""
    s_sub_u32 s{S_T1}, s{S_NEED}, 1
    s_mul_i32 s{S_T1}, s{S_T1}, 9216
    s_lshl_b32 s{S_T2}, s{S_WAVE}, 10
    s_add_u32 s{S_T1}, s{S_T1}, s{S_T2}
    s_add_u32 s{S_T1}, s{S_T1}, {W.ARCH}
    s_add_u32 m0, s{S_T2}, {L_MT}
    buffer_load_dwordx4 v{A1}, s[{S_WS}:{S_WS+3}], s{S_T1} offen sc1 lds
    s_add_u32 s{S_T1}, s{S_T1}, 4096
    s_add_u32 m0, s{S_T2}, {L_MT + 4096}
    buffer_load_dwordx4 v{A1}, s[{S_WS}:{S_WS+3}], s{S_T1} offen sc1 lds
    s_mov_b32 s{S_MPF}, 1
    s_cmp_lg_u32 s{S_WAVE}, 0
    s_cbranch_scc1 L_hw_mreq1
    s_add_u32 s{S_T1}, s{S_T1}, 4096
    s_mov_b32 m0, {L_MT + 8192}
    buffer_load_dwordx4 v{A1}, s[{S_WS}:{S_WS+3}], s{S_T1} offen sc1 lds
    L_hw_mreq1:
    s_setpc_b64 s[{S_RET}:{S_RET+1}]
    """)

def stage_p(b):
    L = uid("hq")
    RB, ST = ACC, ACC + 8
    b(f"""
    s_mul_i32 s{S_T1}, s{S_WAVE}, 9216
    v_add_u32 v4, s{S_T1}, v{A1}
    v_lshrrev_b32 v{ST+4}, 7, v{A1}
    s_lshl_b32 s{S_T1}, s{S_WAVE}, 5
    s_add_u32 s{S_T1}, s{S_T1}, {L_ST}
    v_lshl_add_u32 v{ST+4}, v{ST+4}, 2, s{S_T1}
    v_bfe_u32 v6, v{A1}, 4, 3
    v_lshrrev_b32 v7, 8, v{A1}
    v_xor_b32 v7, v7, v6
    v_lshlrev_b32 v7, 4, v7
    v_lshl_add_u32 v6, v6, 7, v7
    v_bfe_u32 v7, v{A1}, 7, 1
    v_mul_u32_u24 v7, 9216, v7
    v_add_u32 v6, v6, v7
    v_xor_b32 v7, 64, v6
    """)
    mem_addr(b)
    b(f"""
    s_cmp_eq_u32 s{S_PEND}, 0
    s_cbranch_scc0 {L}a
    s_waitcnt vmcnt(0)
    {L}a:
    s_waitcnt vmcnt(2)
    s_barrier
    buffer_load_dword v5, v5, s[{S_WS}:{S_WS+3}], s{S_T0} offen sc1
    """)
    rd = lambda kk, tt: f"ds_read_b128 {v(FB + 8*(kk%2) + 4*tt,4)}, v{6 + kk%2} offset:{L_XT + tt*18432 + (kk//2)*1024}"
    def gemm(XS, extra):
        for kk in range(18):
            n = 0
            for X in XS:
                for tt in range(2):
                    for i in range(2):
                        x = v(FB + 8*(kk%2) + 4*tt, 4); wf = wfrag(X, i, kk)
                        if X == 'V': d, A, B = ACC + 32 + 8*i + 4*tt, x, wf
                        else: d, A, B = ACC + (16 if X == 'K' else 0) + 8*tt + 4*i, wf, x
                        b(f"v_mfma_f32_16x16x32_bf16 {v(d,4)}, {A}, {B}, {'0' if kk == 0 else v(d,4)}")
                        if n in (0, 1) and (kk < 17 or XS != "Q"): b(rd((kk + 1) % 18, n))
                        drip(b, extra, 2)
                        n += 1
        drip(b, extra, 999)
    def early():
        b(f"s_waitcnt vmcnt(0)\nv_cmp_gt_u32 vcc, s{S_NEED}, v5\ns_barrier\ns_cmp_eq_u32 s{S_PEND}, 0\ns_cbranch_scc1 {L}b")
        signal(b, S_PB, S_PEND, T, T+1, barrier=False, code=4)
        b(f"s_mov_b32 s{S_PEND}, 0")
        b.label(L + "b")
        b(f"s_cbranch_vccnz {L}c\ns_call_b64 s[{S_RET}:{S_RET+1}], L_hw_mreq\n{L}c:")
    def mid():
        b(f"s_waitcnt lgkmcnt({b.lg_after('ds_write')})\ns_barrier")
    MR, CK, CV = T, ACC, T + 4
    post = [None, None, None, None, None, None, mid,
            f"v_bfe_u32 v4, v{A1}, 4, 4", f"v_lshlrev_b32 v4, 2, v4", f"v_lshrrev_b32 v5, 4, v{A1}", f"v_and_b32 v5, 48, v5",
            f"s_lshl_b32 s{S_T0}, s{S_WAVE}, 7", f"v_add_u32 v{T+6}, s{S_T0}, v4", f"v_add_u32 v{T+7}, s{S_T0}, v5",
            f"v_add_u32 v4, {L_ST}, v4",
            f"ds_read2_b32 {v(MR,2)}, v4 offset0:0 offset1:32", None, f"ds_read2_b32 {v(MR+2,2)}, v4 offset0:16 offset1:48", None,
            f"ds_read_b128 {v(CK,4)}, v{T+7} offset:{L_CS + 512}", None, f"ds_read_b128 {v(CK+4,4)}, v{T+7} offset:{L_CS + 512 + 64}", None,
            f"ds_read_b32 v{CV}, v{T+6} offset:{L_CS + 1024}", None, f"ds_read_b32 v{CV+1}, v{T+6} offset:{L_CS + 1024 + 64}", None,
            f"ds_read_b128 {v(ACC+8,4)}, v5 offset:{L_ST}", None, f"ds_read_b128 {v(ACC+12,4)}, v5 offset:{L_ST + 128}"]
    prof(b, 0)
    b(rd(0, 0)); b(rd(0, 1))
    ss = stats_stream(4, RB, ST, ST+4)
    ss.insert(86, early)
    gemm("KV", ss + post)
    prof(b, 1)
    b(f"""
    s_lshl_b32 s{S_T0}, s{S_PS}, 19
    s_lshl_b32 s{S_T1}, s{S_H}, 14
    s_add_u32 s{S_T0}, s{S_T0}, s{S_T1}
    s_lshl_b32 s{S_T1}, s{S_WAVE}, 12
    s_add_u32 s{S_T0}, s{S_T0}, s{S_T1}
    s_mul_i32 s{S_T1}, s{S_LAY}, {W.KV_L}
    s_add_u32 s{S_T0}, s{S_T0}, s{S_T1}
    s_add_u32 s{S_T0}, s{S_T0}, {W.KV}
    s_lshl_b32 s{S_T1}, s{S_WAVE}, 11
    s_add_u32 s{S_T1}, s{S_T1}, s{S_PSL}
    v_add_u32 v4, s{S_T1}, v{A1}
    """)
    st = lambda f: f"buffer_store_dwordx4 {v(ACC+8*f,4)}, v{A1}, s[{S_WS}:{S_WS+3}], s{S_T0} offen offset:{(f-2)*1024} sc1"
    for tt in range(2):
        d = ACC + 16 + 8*tt
        b(f"v_mul_f32 v{T+6}, s{S_C}, v{MR+2*tt+1}")
        for r in range(8): b(f"v_fma_f32 v{d+r}, -v{MR+2*tt}, v{CK+r}, v{d+r}")
        if tt == 1: b(f"ds_read_b128 {v(ACC,4)}, v5 offset:{L_ST + 64}\nds_read_b128 {v(ACC+4,4)}, v5 offset:{L_ST + 128 + 64}")
        for r in range(8): b(f"v_mul_f32 v{d+r}, v{d+r}, v{T+6}")
        for k in range(4): b(cvt(d + k, d + 2*k))
        b(st(2 + tt))
    for i in range(2):
        d = ACC + 32 + 8*i
        for tt in range(2):
            m = (ACC + 8, ACC)[tt]
            for r in range(4): b(f"v_fma_f32 v{d+4*tt+r}, -v{m+r}, v{CV+i}, v{d+4*tt+r}")
            for r in range(4): b(f"v_mul_f32 v{d+4*tt+r}, v{d+4*tt+r}, v{m+4+r}")
        for k in range(4): b(cvt(d + k, d + 2*k))
        b(st(4 + i))
    CQ = (ACC + 20, ACC + 28)
    ex = [None]*8
    for f in (2, 3, 4, 5): ex += [f"ds_write_b128 v4, {v(ACC+8*f,4)} offset:{(f//2)*8192 + (f%2)*1024}"] + [None]*8
    for i in range(2): ex += [f"ds_read_b128 {v(CQ[i],4)}, v{T+7} offset:{L_CS + 64*i}"] + [None]*8
    prof(b, 2)
    gemm("Q", ex)
    prof(b, 3)
    b(f"s_lshl_b32 s{S_T1}, s{S_LAY}, 6\ns_add_u32 s{S_T1}, s{S_T1}, s{S_PS}\ns_add_u32 s{S_T1}, s{S_T1}, 1")
    for tt in range(2):
        d = ACC + 8*tt
        for r in range(8): b(f"v_fma_f32 v{d+r}, -v{MR+2*tt}, v{CQ[r//4] + r%4}, v{d+r}")
        for r in range(8): b(f"v_mul_f32 v{d+r}, v{d+r}, v{MR+2*tt+1}")
        for k in range(4): b(cvt(d + k, d + 2*k))
        b(f"ds_write_b128 v4, {v(d,4)} offset:{tt*1024}")
    signal(b, S_PA, S_T1, 4, 5)
    prof(b, 4)
    b(f"""
    s_add_u32 s{S_PS}, s{S_PS}, {R}
    s_add_u32 s{S_PSL}, s{S_PSL}, {SLOT}
    s_cmp_eq_u32 s{S_PSL}, {L_RING + NSLOT*SLOT}
    s_cselect_b32 s{S_PSL}, {L_RING}, s{S_PSL}
    """)

def stage_f(b):
    L = uid("hf")
    mem_addr(b)
    b(f"s_cmp_lg_u32 s{S_MPF}, 0\ns_cbranch_scc1 {L}")
    b("v_mov_b32 v4, v5")
    wait_words(b, 4, S_T0, S_NEED, 5, 1, code=3, scale=False)
    prof(b, 5)
    b(f"""
    s_call_b64 s[{S_RET}:{S_RET+1}], L_hw_mreq
    {L}:
    s_mov_b32 s{S_MPF}, 0
    s_mov_b32 s{S_PEND}, s{S_NEED}
    s_cmp_lt_u32 s{S_PS}, 64
    s_cbranch_scc1 {L}p
    s_waitcnt vmcnt(0)
    s_branch {L}q
    {L}p:
    s_call_b64 s[{S_RET}:{S_RET+1}], L_hw_pre
    s_waitcnt vmcnt(9)
    {L}q:
    s_barrier
    """)
    b.vm = []
    rd = lambda kk: f"ds_read_b128 {v(FB + 4*(kk%4),4)}, v{MA} offset:{kk*512}"
    NB = ACC + 16
    def unperm(kk):
        x, y = FB + 4*(kk%4), NB + 4*(kk%2)
        return [f"v_perm_b32 v{y+k}, v{x + 2*(k//2) + 1}, v{x + 2*(k//2)}, s{(S_SL, S_SH)[k%2]}" for k in range(4)]
    prof(b, 6)
    for kk in range(4): b(rd(kk))
    for x in unperm(0): b(x)
    for kk in range(18):
        x = v(NB + 4*(kk%2), 4)
        up = unperm(kk + 1) if kk < 17 else []
        for n, (X, i) in enumerate([('K',0),('K',1),('V',0),('V',1)]):
            d = ACC + 4*n; wf = wfrag(X, i, kk)
            A, B = (wf, x) if X == 'K' else (x, wf)
            b(f"v_mfma_f32_16x16x32_bf16 {v(d,4)}, {A}, {B}, {'0' if kk == 0 else v(d,4)}")
            if n == 0 and kk + 4 < 18: b(rd(kk + 4))
            drip(b, up, 2)
    prof(b, 7)
    QF, S0, KF = 40, 56, 8
    b(f"""
    s_and_b32 s{S_T0}, s{S_WAVE}, 1
    s_lshl_b32 s{S_T0}, s{S_T0}, 10
    s_add_u32 s{S_T0}, s{S_T0}, s{S_FSL}
    v_add_u32 v4, s{S_T0}, v{A1}
    v_add_u32 v5, s{S_FSL}, v{A1}
    s_lshl_b32 s{S_T0}, s{S_WAVE}, 10
    v_add_u32 v6, s{S_T0}, v{A1}
    """)
    for wq in range(4): b(f"ds_read_b128 {v(QF+4*wq,4)}, v4 offset:{wq*2048}")
    for r in range(8): b(f"v_mul_f32 v{ACC+r}, s{S_C}, v{ACC+r}")
    for k in range(4): b(cvt(ACC + k, ACC + 2*k))
    for k in range(4): b(cvt(ACC + 8 + k, ACC + 8 + 2*k))
    b(f"ds_write_b128 v6, {v(ACC,4)} offset:{L_KM}\nds_write_b128 v6, {v(ACC+8,4)} offset:{L_VM}")
    for n in range(2):
        for wq in range(4): b(f"ds_read_b128 {v((KF if n == 0 else ACC)+4*wq,4)}, v5 offset:{8192 + wq*2048 + n*1024}")
    for n in range(2):
        for wq in range(4):
            d = S0 + 4*n
            b(f"v_mfma_f32_16x16x32_bf16 {v(d,4)}, {v((KF if n == 0 else ACC)+4*wq,4)}, {v(QF+4*wq,4)}, {'0' if wq == 0 else v(d,4)}")
    b("s_waitcnt lgkmcnt(0)\ns_barrier")
    prof(b, 8)
    for wq in range(4): b(f"ds_read_b128 {v(KF+4*wq,4)}, v{A1} offset:{L_KM + wq*1024}")
    b(f"""
    s_lshr_b32 s{S_T0}, s{S_WAVE}, 1
    s_lshl_b32 s{S_T1}, s{S_T0}, 12
    v_add_u32 v5, s{S_T1}, v5
    s_lshl_b32 s{S_T1}, s{S_T0}, 11
    v_add_u32 v6, s{S_T1}, v{A1}
    """)
    for k in range(4): b(f"ds_read_b128 {v(ACC+4*k,4)}, v5 offset:{16384 + k*1024}")
    for wq in range(4):
        d = S0 + 8
        b(f"v_mfma_f32_16x16x32_bf16 {v(d,4)}, {v(KF+4*wq,4)}, {v(QF+4*wq,4)}, {'0' if wq == 0 else v(d,4)}")
    for k in range(2): b(f"ds_read_b128 {v(KF+4*k,4)}, v6 offset:{L_VM + k*1024}")
    b(f"v_mov_b32 v7, 0xff800000")
    for n in range(2):
        for r in range(4):
            b(f"v_cmp_le_i32 vcc, {16*n + r}, v{MD}\nv_cndmask_b32 v{S0+4*n+r}, v7, v{S0+4*n+r}, vcc")
    b(f"v_cmp_gt_u32 vcc, 512, v{A1}")
    for r in range(4): b(f"v_cndmask_b32 v{S0+8+r}, v7, v{S0+8+r}, vcc")
    M = T
    b(f"v_max3_f32 v{M}, v{S0}, v{S0+1}, v{S0+2}")
    for r in range(3, 11, 2): b(f"v_max3_f32 v{M}, v{M}, v{S0+r}, v{S0+r+1}")
    b(f"v_max_f32 v{M}, v{M}, v{S0+11}")
    for sw in ("16", "32"):
        b(f"v_mov_b32 v{M+1}, v{M}\nv_permlane{sw}_swap_b32 v{M}, v{M+1}\nv_max_f32 v{M}, v{M}, v{M+1}")
    for r in range(12): b(f"v_sub_f32 v{S0+r}, v{S0+r}, v{M}")
    for r in range(12): b(f"v_exp_f32 v{S0+r}, v{S0+r}")
    b(f"v_add_f32 v{M}, v{S0}, v{S0+1}")
    for r in range(2, 12): b(f"v_add_f32 v{M}, v{M}, v{S0+r}")
    for sw in ("16", "32"):
        b(f"v_mov_b32 v{M+1}, v{M}\nv_permlane{sw}_swap_b32 v{M}, v{M+1}\nv_add_f32 v{M}, v{M}, v{M+1}")
    b(f"v_rcp_f32 v{M}, v{M}")
    for r in range(12): b(f"v_mul_f32 v{S0+r}, v{S0+r}, v{M}")
    for k in range(6): b(cvt(S0 + k, S0 + 2*k))
    OD = QF
    for k in range(4): b(f"v_mfma_f32_16x16x32_bf16 {v(OD+4*k,4)}, {v(ACC+4*k,4)}, {v(S0,4)}, 0")
    for k in range(4): b(f"v_mfma_f32_16x16x16_bf16 {v(OD+4*k,4)}, {v(KF+2*k,2)}, {v(S0+4,2)}, {v(OD+4*k,4)}")
    b(f"""
    s_lshl_b32 s{S_T0}, s{S_FS}, 1
    s_and_b32 s{S_T1}, s{S_WAVE}, 1
    s_add_u32 s{S_T0}, s{S_T0}, s{S_T1}
    s_lshl_b32 s{S_T0}, s{S_T0}, 5
    s_add_u32 s{S_T0}, s{S_T0}, s{S_H}
    s_lshl_b32 s{S_T0}, s{S_T0}, 12
    s_lshr_b32 s{S_T1}, s{S_WAVE}, 1
    s_lshl_b32 s{S_T1}, s{S_T1}, 11
    s_add_u32 s{S_T0}, s{S_T0}, s{S_T1}
    s_mul_i32 s{S_T1}, s{S_LAY}, {W.O_L}
    s_add_u32 s{S_T0}, s{S_T0}, s{S_T1}
    s_add_u32 s{S_T0}, s{S_T0}, {W.O}
    """)
    for f in range(2):
        d = OD + 8*f
        for k in range(4): b(cvt(d + k, d + 2*k))
        b(f"buffer_store_dwordx4 {v(d,4)}, v{A1}, s[{S_WS}:{S_WS+3}], s{S_T0} offen offset:{f*1024} sc1")
    prof(b, 9)
    b(f"s_cmp_lt_u32 s{S_PS}, 64\ns_cbranch_scc1 {L}z")
    signal(b, S_PB, S_PEND, 4, 5, code=4)
    b(f"s_mov_b32 s{S_PEND}, 0")
    b.label(L + "z")
    b.vm = []
    b(f"""
    s_add_u32 s{S_FS}, s{S_FS}, {R}
    s_add_u32 s{S_FSL}, s{S_FSL}, {SLOT}
    s_cmp_eq_u32 s{S_FSL}, {L_RING + NSLOT*SLOT}
    s_cselect_b32 s{S_FSL}, {L_RING}, s{S_FSL}
    """)

def emit(b, nlayers):
    b.reset()
    b.label("L_hw")
    b(f"""
    s_and_b32 s{S_H}, s{S_ID}, 31
    s_lshr_b32 s{S_R}, s{S_ID}, 5
    s_lshl_b32 s{S_PA}, s{S_ID}, 2
    s_lshl_b32 s{S_PA}, s{S_PA}, {PSH}
    s_add_u32 s{S_PB}, s{S_PA}, {W.PROG + P_HWF}
    s_add_u32 s{S_PA}, s{S_PA}, {W.PROG + P_HWP}
    s_mov_b32 s{S_C}, {fhex(128**-0.5 * math.log2(math.e))}
    """)
    load_weights(b)
    colsums(b)
    b(f"""
    v_and_b32 v24, 63, v0
    v_lshlrev_b32 v{A1}, 4, v24
    v_and_b32 v25, 15, v24
    v_lshrrev_b32 v26, 4, v24
    s_and_b32 s{S_T0}, s{S_WAVE}, 1
    s_lshl_b32 s{S_T0}, s{S_T0}, 4
    v_add_u32 v27, s{S_T0}, v25
    v_lshlrev_b32 v28, 2, v26
    v_sub_u32 v{MD}, v27, v28
    v_and_b32 v27, 7, v25
    v_lshlrev_b32 v27, 5, v27
    v_lshrrev_b32 v28, 1, v26
    v_lshl_add_u32 v27, v28, 8, v27
    v_and_b32 v28, 1, v26
    v_lshl_add_u32 v27, v28, 4, v27
    v_add_u32 v{MA}, {L_MT}, v27
    s_mov_b32 s{S_LAY}, 0
    """)
    row_addr(b, XA, 24, 27)
    b(f"s_mov_b32 s{S_PEND}, 0\ns_mov_b32 s{S_MPF}, 0\ns_mov_b32 s{S_SL}, 0x05040100\ns_mov_b32 s{S_SH}, 0x07060302")
    srd(b, S_XI, PT['X'], XB)
    wait_init(b, 4, 5)
    b.label("L_hw_layer")
    b(f"s_mov_b32 s{S_PS}, s{S_R}\ns_mov_b32 s{S_FS}, s{S_R}\ns_mov_b32 s{S_PSL}, {L_RING}\ns_mov_b32 s{S_FSL}, {L_RING}")
    b.label("L_hw_first")
    b(f"s_call_b64 s[{S_RET}:{S_RET+1}], L_hw_pre")
    b.label("L_hw_loop")
    b(f"s_cmp_ge_u32 s{S_PS}, 64\ns_cbranch_scc1 L_hw_f")
    stage_p(b)
    b(f"s_sub_u32 s{S_T0}, s{S_PS}, s{S_FS}\ns_cmp_lt_u32 s{S_T0}, {NSLOT*R}\ns_cbranch_scc1 L_hw_first")
    b.label("L_hw_f")
    stage_f(b)
    b(f"s_cmp_lt_u32 s{S_FS}, 64\ns_cbranch_scc1 L_hw_loop")
    b(f"s_add_u32 s{S_LAY}, s{S_LAY}, 1\ns_cmp_ge_u32 s{S_LAY}, {nlayers}\ns_cbranch_scc1 L_end")
    srd(b, S_XI, PT['WS'], XB, W.X2)
    b("s_branch L_hw_layer")
    b.reset()
    b.label("L_hw_pre")
    prefetch(b)
    b(f"s_setpc_b64 s[{S_RET}:{S_RET+1}]")
    mem_request(b)
```

```python
from common import *
S_GRP, S_TT, S_CG, S_PA, S_OO = 40, 41, 42, 43, 44
A1, XA, RA = 0, 1, 2
ACC, FB = 8, 24
NF = 24
def wfrag(kk, i):
    r = 4*(kk*3 + i)
    return a(r, 4) if r < 256 else v(128 + r - 256, 4)

def row96_addr(b, dst, rowf, col_s):
    for q in range(3):
        b(f"""
        v_and_b32 v4, 63, v0
        v_add_u32 v4, {64*q}, v4
        v_mul_u32_u24 v5, 10923, v4
        v_lshrrev_b32 v5, 16, v5
        v_mul_u32_u24 v6, 6, v5
        v_sub_u32 v4, v4, v6
        """)
        rowf(5)
        b(f"v_mul_u32_u24 v5, 1152, v5\nv_lshl_add_u32 v5, v4, 4, v5\nv_add_u32 v{dst+q}, s{col_s}, v5")

def load96(b, steps, frag, rd):
    b(f"""
    s_mul_i32 s{S_T2}, s{S_WAVE}, 36864
    v_and_b32 v4, 63, v0
    v_lshrrev_b32 v5, 2, v4
    v_mul_u32_u24 v5, 96, v5
    v_and_b32 v4, 3, v4
    v_lshl_add_u32 v5, v4, 3, v5
    v_add_u32 v{rd}, s{S_T2}, v5
    """)
    n = len(steps)
    def dma(t):
        ad, so = steps[t]
        b(f"s_mov_b32 s{S_T0}, {so}")
        for q in range(3):
            b(f"s_add_u32 m0, s{S_T2}, {(t % 12)*3072 + q*1024}")
            b(f"buffer_load_dwordx4 v{ad+q}, s[{S_WG}:{S_WG+3}], s{S_T0} offen lds")
    for t in range(min(12, n)): dma(t)
    for t in range(n):
        issued = min(n, max(12, t + 11))
        b(f"s_waitcnt vmcnt({3*(issued - t - 1)}) lgkmcnt(0)")
        if t >= 1 and t + 11 < n: dma(t + 11)
        for i in range(3):
            f = frag(t, i); k, r = f[0], int(f[2:f.index(':')])
            for aa in range(2):
                b(f"ds_read_b64_tr_b16 {k}[{r+2*aa}:{r+2*aa+1}], v{rd} offset:{(t % 12)*3072 + aa*1536 + i*32}")
    b("s_waitcnt lgkmcnt(0)\ns_barrier")

def emit(b, nlayers):
    b.reset()
    b.label("L_ow")
    b(f"""
    s_cmp_ge_u32 s{S_ID}, 24
    s_cselect_b32 s{S_GRP}, 1, 0
    s_mul_i32 s{S_T0}, s{S_GRP}, 24
    s_sub_u32 s{S_T0}, s{S_ID}, s{S_T0}
    s_lshl_b32 s{S_PA}, s{S_GRP}, 5
    s_add_u32 s{S_PA}, s{S_PA}, s{S_T0}
    s_lshl_b32 s{S_PA}, s{S_PA}, 2
    s_lshl_b32 s{S_PA}, s{S_PA}, {PSH}
    s_add_u32 s{S_PA}, s{S_PA}, {W.PROG + P_OW}
    s_cmp_ge_u32 s{S_T0}, 12
    s_cselect_b32 s{S_TT}, 1, 0
    s_mul_i32 s{S_T1}, s{S_TT}, 12
    s_sub_u32 s{S_CG}, s{S_T0}, s{S_T1}
    s_mul_i32 s{S_T1}, s{S_CG}, 96
    s_mul_i32 s{S_T0}, s{S_WAVE}, {1024*1152}
    s_add_u32 s{S_T1}, s{S_T1}, s{S_T0}
    """)
    srd(b, S_WG, PT['O'], 4096*1152)
    row96_addr(b, 8, lambda r: None, S_T1)
    load96(b, [(8, kk*32*1152) for kk in range(32)], wfrag, 12)
    b(f"""
    v_mul_u32_u24 v5, 10923, v0
    v_lshrrev_b32 v5, 16, v5
    v_mul_u32_u24 v6, 6, v5
    v_sub_u32 v4, v0, v6
    v_lshrrev_b32 v6, 1, v4
    v_lshlrev_b32 v6, 10, v6
    v_and_b32 v7, 1, v4
    v_lshl_add_u32 v6, v7, 9, v6
    v_lshl_add_u32 v{RA}, v5, 4, v6
    s_lshl_b32 s{S_T0}, s{S_TT}, 4
    v_add_u32 v5, s{S_T0}, v5
    v_mul_u32_u24 v5, 1152, v5
    v_lshl_add_u32 v5, v4, 4, v5
    s_mul_i32 s{S_T0}, s{S_CG}, 96
    v_add_u32 v5, s{S_T0}, v5
    v_mov_b32 v6, {OOB}
    v_cmp_gt_u32 vcc, 96, v0
    v_cndmask_b32 v{XA}, v6, v5, vcc
    v_and_b32 v4, 63, v0
    v_lshlrev_b32 v{A1}, 4, v4
    s_mov_b32 s{S_LAY}, 0
    """)
    srd(b, S_XI, PT['X'], XB); srd(b, S_XO, PT['WS'], XB, W.X1)
    wait_init(b, 4, 5)
    b.label("L_ow_layer")
    b(f"s_mov_b32 s{S_SEG}, s{S_GRP}")
    b.label("L_ow_loop")
    b(f"""
    s_lshl_b32 s{S_NEED}, s{S_LAY}, 6
    s_add_u32 s{S_NEED}, s{S_NEED}, s{S_SEG}
    s_lshl_b32 s{S_OO}, s{S_NEED}, 1
    s_add_u32 s{S_OO}, s{S_OO}, s{S_TT}
    s_lshl_b32 s{S_OO}, s{S_OO}, 2
    s_add_u32 s{S_OO}, s{S_OO}, s{S_WAVE}
    s_lshl_b32 s{S_OO}, s{S_OO}, 15
    s_add_u32 s{S_OO}, s{S_OO}, {W.O}
    s_add_u32 s{S_NEED}, s{S_NEED}, 1
    s_mul_i32 s{S_T0}, s{S_SEG}, 21846
    s_lshr_b32 s{S_T0}, s{S_T0}, 16
    s_mul_i32 s{S_T0}, s{S_T0}, 3
    s_sub_u32 s{S_T0}, s{S_SEG}, s{S_T0}
    s_lshl_b32 s{S_T0}, s{S_T0}, 7
    s_lshl_b32 s{S_T1}, s{S_WAVE}, 5
    s_add_u32 s{S_T0}, s{S_T0}, s{S_T1}
    s_lshl_b32 s{S_T0}, s{S_T0}, {PSH}
    s_add_u32 s{S_T0}, s{S_T0}, {W.PROG + P_HWF}
    v_lshrrev_b32 v4, 2, v{A1}
    v_and_b32 v4, 31, v4
    """)
    wait_words(b, 4, S_T0, S_NEED, 5, 1)
    prof(b, 0)
    def ld(kk):
        if kk and kk % 4 == 0: b(f"s_add_u32 s{S_OO}, s{S_OO}, 4096")
        b(f"buffer_load_dwordx4 {v(FB + 4*(kk % NF),4)}, v{A1}, s[{S_WS}:{S_WS+3}], s{S_OO} offen offset:{(kk % 4)*1024} sc1")
    for kk in range(NF): ld(kk)
    prof(b, 1)
    for kk in range(32):
        for i in range(3):
            d = ACC + 4*i
            b(f"v_mfma_f32_16x16x32_bf16 {v(d,4)}, {wfrag(kk,i)}, {v(FB + 4*(kk % NF),4)}, {'0' if kk == 0 else v(d,4)}")
        if kk + NF < 32: ld(kk + NF)
        if kk == 8:
            b(f"s_mul_i32 s{S_T1}, s{S_SEG}, 36864")
            b(f"buffer_load_dwordx4 v[20:23], v{XA}, s[{S_XI}:{S_XI+3}], s{S_T1} offen sc1")
    prof(b, 2)
    b(f"s_mul_i32 s{S_T0}, s{S_WAVE}, 3072\nv_add_u32 v4, s{S_T0}, v{A1}")
    for i in range(3): b(f"ds_write_b128 v4, {v(ACC+4*i,4)} offset:{i*1024}")
    b("s_waitcnt lgkmcnt(0)\ns_barrier")
    b(f"s_cmp_ge_u32 s{S_WAVE}, 2\ns_cbranch_scc1 L_ow_sig")
    for w in range(4):
        for hf in range(2): b(f"ds_read_b128 {v(FB + 8*w + 4*hf,4)}, v{RA} offset:{w*3072 + hf*256}")
    for k in range(4):
        b(f"v_lshlrev_b32 v{ACC+2*k}, 16, v{20+k}\nv_and_b32 v{ACC+2*k+1}, 0xffff0000, v{20+k}")
    for w in range(1, 4):
        for r in range(8): b(f"v_add_f32 v{FB+r}, v{FB+r}, v{FB+8*w+r}")
    for r in range(8): b(f"v_add_f32 v{FB+r}, v{FB+r}, v{ACC+r}")
    for k in range(4): b(cvt(FB + k, FB + 2*k))
    b(f"buffer_store_dwordx4 {v(FB,4)}, v{XA}, s[{S_XO}:{S_XO+3}], s{S_T1} offen sc1")
    b.label("L_ow_sig")
    prof(b, 3)
    signal(b, S_PA, S_NEED, 4, 5)
    prof(b, 4)
    b(f"s_add_u32 s{S_SEG}, s{S_SEG}, 2\ns_cmp_lt_u32 s{S_SEG}, 64\ns_cbranch_scc1 L_ow_loop")
    b(f"s_add_u32 s{S_LAY}, s{S_LAY}, 1\ns_cmp_ge_u32 s{S_LAY}, {nlayers}\ns_cbranch_scc1 L_end")
    srd(b, S_XI, PT['WS'], XB, W.X2); srd(b, S_XO, PT['WS'], XB, W.X3)
    b("s_branch L_ow_layer")
```

```python
from common import *
S_GRP, S_HH, S_PA, S_C, S_FO = 40, 41, 42, 43, 44
A1, XA, VA, EA, EM, WA, RA = 0, 1, 2, 3, 6, 7, 8
FB, ACC, T, EX = 12, 28, 72, 80
C0, C1, SA, SB, SC, PA, MN, RS, MR = 160, 176, 60, 61, 62, 63, 192, 208, 64
L_XT, L_ST = 0, 36864
def wfrag(m, kk):
    r = 4*(m*36 + kk)
    return a(r, 4) if r < 256 else v(128 + r - 256, 4)

def emit(b, nlayers):
    b.reset()
    b.label("L_qw")
    b(f"""
    s_lshr_b32 s{S_GRP}, s{S_ID}, 3
    s_and_b32 s{S_T0}, s{S_ID}, 7
    s_lshl_b32 s{S_PA}, s{S_GRP}, 5
    s_add_u32 s{S_PA}, s{S_PA}, s{S_T0}
    s_lshl_b32 s{S_PA}, s{S_PA}, 2
    s_lshl_b32 s{S_PA}, s{S_PA}, {PSH}
    s_add_u32 s{S_PA}, s{S_PA}, {W.PROG + P_QW}
    s_lshl_b32 s{S_HH}, s{S_T0}, 2
    s_add_u32 s{S_HH}, s{S_HH}, s{S_WAVE}
    s_mov_b32 s{S_C}, {fhex(18**-0.5 * math.log2(math.e))}
    v_and_b32 v24, 63, v0
    v_lshrrev_b32 v25, 4, v24
    v_mul_u32_u24 v25, 3456, v25
    s_mul_i32 s{S_T0}, s{S_HH}, 36
    v_add_u32 v25, s{S_T0}, v25
    v_and_b32 v26, 7, v24
    v_lshl_add_u32 v27, v26, 2, v25
    v_bfe_u32 v26, v24, 3, 1
    v_mul_u32_u24 v26, 1152, v26
    v_add_u32 v20, v27, v26
    v_and_b32 v26, 15, v24
    v_lshlrev_b32 v27, 2, v26
    v_add_u32 v27, 2304, v27
    v_cmp_eq_u32 vcc, 9, v26
    v_cndmask_b32 v27, v27, 32, vcc
    v_mov_b32 v28, {1152 + 32}
    v_cmp_eq_u32 vcc, 10, v26
    v_cndmask_b32 v27, v27, v28, vcc
    v_add_u32 v27, v27, v25
    v_mov_b32 v28, {OOB}
    v_cmp_gt_u32 vcc, 11, v26
    v_cndmask_b32 v21, v28, v27, vcc
    v_bfe_u32 v25, v24, 2, 2
    v_lshrrev_b32 v26, 5, v24
    v_lshl_add_u32 v25, v26, 3, v25
    v_lshlrev_b32 v25, 6, v25
    v_bfe_u32 v26, v24, 4, 1
    v_lshl_add_u32 v25, v26, 5, v25
    v_and_b32 v26, 3, v24
    v_lshl_add_u32 v25, v26, 3, v25
    s_lshl_b32 s{S_T2}, s{S_WAVE}, 14
    v_add_u32 v22, s{S_T2}, v25
    """)
    srd(b, S_WG, PT['WQKV'], 576*3456)
    seq = [(m, kk) for kk in range(36) for m in range(2)]
    n, D = len(seq), 15
    def dma(t):
        m, kk = seq[t]
        for q in range(4):
            b(f"s_mov_b32 s{S_T0}, {(16*kk + 4*q)*3456}")
            b(f"s_add_u32 m0, s{S_T2}, {(t % 16)*1024 + q*256}")
            b(f"buffer_load_dword v{20+m}, s[{S_WG}:{S_WG+3}], s{S_T0} offen lds")
    for t in range(D): dma(t)
    for t in range(n):
        issued = min(n, t + D)
        b(f"s_waitcnt vmcnt({4*(issued - t - 1)}) lgkmcnt(0)")
        if t + D < n: dma(t + D)
        f = wfrag(*seq[t]); k, r = f[0], int(f[2:f.index(':')])
        for aa in range(2): b(f"ds_read_b64_tr_b16 {k}[{r+2*aa}:{r+2*aa+1}], v22 offset:{(t % 16)*1024 + aa*256}")
    b("s_waitcnt lgkmcnt(0)\ns_barrier")
    row_addr(b, XA, 24, 27, True)
    for r in range(4): b(f"v_mov_b32 v{FB+r}, s{S_ONE}")
    for kk in range(36):
        b(f"v_mfma_f32_32x32x16_bf16 {v(C0,16)}, {wfrag(0,kk)}, {v(FB,4)}, {'0' if kk == 0 else v(C0,16)}")
        b(f"v_mfma_f32_32x32x16_bf16 {v(C1,16)}, {v(FB,4)}, {wfrag(1,kk)}, {'0' if kk == 0 else v(C1,16)}")
    b(f"""
    v_lshlrev_b32 v{A1}, 4, v24
    v_and_b32 v25, 31, v24
    v_lshrrev_b32 v26, 5, v24
    v_mul_u32_u24 v27, 18, v26
    v_add_u32 v27, v27, v25
    v_lshlrev_b32 v27, 4, v27
    v_mov_b32 v28, {OOB}
    v_cmp_gt_u32 vcc, 18, v25
    v_cndmask_b32 v{VA}, v28, v27, vcc
    v_lshlrev_b32 v27, 4, v26
    v_add_u32 v29, 3328, v27
    v_add_u32 v27, 1024, v27
    v_cmp_eq_u32 vcc, 20, v25
    v_cndmask_b32 v28, v28, v27, vcc
    v_cmp_eq_u32 vcc, 18, v25
    v_cndmask_b32 v{EA}, v28, v29, vcc
    v_mov_b32 v27, s{S_C}
    v_cndmask_b32 v{EM}, 1.0, v27, vcc
    v_and_b32 v27, 7, v24
    v_xor_b32 v28, v27, v26
    v_bfe_u32 v29, v24, 4, 1
    v_xor_b32 v28, v28, v29
    v_lshlrev_b32 v28, 4, v28
    v_lshl_add_u32 v28, v27, 7, v28
    v_lshrrev_b32 v27, 3, v25
    v_mul_u32_u24 v27, 9216, v27
    v_add_u32 v{RA}, v28, v27
    s_mul_i32 s{S_T0}, s{S_WAVE}, 9216
    v_add_u32 v{WA}, s{S_T0}, v{A1}
    v_lshrrev_b32 v27, 3, v24
    s_lshl_b32 s{S_T0}, s{S_WAVE}, 5
    s_add_u32 s{S_T0}, s{S_T0}, {L_ST}
    v_lshl_add_u32 v{SA}, v27, 2, s{S_T0}
    v_lshlrev_b32 v27, 2, v25
    v_add_u32 v{SB}, {L_ST}, v27
    v_lshlrev_b32 v{SC}, 4, v26
    v_min_u32 v27, 11, v24
    v_lshlrev_b32 v{PA}, {2 + PSH}, v27
    v_xor_b32 v{RA+1}, 32, v{RA}
    v_xor_b32 v{RA+2}, 64, v{RA}
    v_xor_b32 v{RA+3}, 96, v{RA}
    s_mov_b32 s{S_LAY}, 0
    """)
    srd(b, S_XI, PT['WS'], XB, W.X1)
    wait_init(b, 4, 5)
    b(f"""
    s_lshl_b32 s{S_FO}, s{S_GRP}, 7
    s_lshr_b32 s{S_T1}, s{S_WAVE}, 1
    s_mul_i32 s{S_T1}, s{S_T1}, 48
    s_add_u32 s{S_FO}, s{S_FO}, s{S_T1}
    s_lshl_b32 s{S_FO}, s{S_FO}, {PSH}
    s_add_u32 s{S_FO}, s{S_FO}, {W.PROG + P_OW}
    """)
    b.label("L_qw_layer")
    b(f"s_mov_b32 s{S_SEG}, s{S_GRP}\nv_mov_b32 v{MR}, 0")
    b.label("L_qw_loop")
    b(f"""
    s_lshl_b32 s{S_NEED}, s{S_LAY}, 6
    s_add_u32 s{S_NEED}, s{S_NEED}, s{S_SEG}
    s_add_u32 s{S_NEED}, s{S_NEED}, 1
    v_cmp_gt_u32 vcc, s{S_NEED}, v{MR}
    s_cbranch_vccz L_qw_go
    v_mov_b32 v4, v{PA}
    """)
    wait_words(b, 4, S_FO, S_NEED, 5, 1, scale=False)
    b.label("L_qw_go")
    prof(b, 0)
    b(f"s_mul_i32 s{S_T0}, s{S_SEG}, 36864\ns_mul_i32 s{S_T1}, s{S_WAVE}, 9216")
    for i in range(9):
        b(f"s_add_u32 m0, s{S_T1}, {L_XT + i*1024 - i*128}")
        b(f"buffer_load_dwordx4 v{XA}, s[{S_XI}:{S_XI+3}], s{S_T0} offen offset:{128*i} sc1 lds")
    b(f"""
    s_sub_u32 s{S_T0}, s{S_NEED}, 1
    s_lshl_b32 s{S_T0}, s{S_T0}, 5
    s_add_u32 s{S_T0}, s{S_T0}, s{S_HH}
    s_mul_i32 s{S_T0}, s{S_T0}, 3584
    s_add_u32 s{S_T0}, s{S_T0}, {W.QB}
    s_waitcnt vmcnt(0)
    s_barrier
    """)
    rd = lambda kk: f"ds_read_b128 {v(FB + 4*(kk%4),4)}, v{RA + kk%4} offset:{L_XT + (kk//4)*1024}"
    ex = stats_stream(WA, EX, T, SA) + [None]*10 + ["s_waitcnt lgkmcnt(0)", "s_barrier", f"ds_read2_b32 {v(MR,2)}, v{SB} offset0:0 offset1:32"]
    for m in range(4):
        ex += [None]*4 + [f"ds_read_b128 {v(MN+4*m,4)}, v{SC} offset:{L_ST + 32*m}"] + [None]*4 + [f"ds_read_b128 {v(RS+4*m,4)}, v{SC} offset:{L_ST + 128 + 32*m}"]
    prof(b, 1)
    for kk in range(3): b(rd(kk))
    for kk in range(36):
        x = v(FB + 4*(kk%4), 4)
        for m in range(2):
            d = ACC + 16*m
            A, B = (wfrag(m, kk), x) if m == 0 else (x, wfrag(m, kk))
            b(f"v_mfma_f32_32x32x16_bf16 {v(d,16)}, {A}, {B}, {'0' if kk == 0 else v(d,16)}")
            if m == 0 and kk + 3 < 36: b(rd(kk + 3))
            drip(b, ex, 5)
    assert not ex
    prof(b, 2)
    st = lambda r, ad, off: f"buffer_store_dwordx4 {v(r,4)}, v{ad}, s[{S_WS}:{S_WS+3}], s{S_T0} offen offset:{off} sc1"
    b(f"v_mul_f32 v{T}, s{S_C}, v{MR+1}")
    for base, sc, off in ((8, MR+1, 0), (0, T, 2304)):
        for r in range(base, base + 8): b(f"v_fma_f32 v{ACC+r}, -v{MR}, v{C0+r}, v{ACC+r}")
        for r in range(base, base + 8): b(f"v_mul_f32 v{ACC+r}, v{ACC+r}, v{sc}")
        for k in range(4): b(cvt(ACC + base + k, ACC + base + 2*k))
        b(st(ACC + base, A1, off))
    V = ACC + 16
    for r in range(16): b(f"v_fma_f32 v{V+r}, -v{MN+r}, v{C1}, v{V+r}")
    for r in range(16): b(f"v_mul_f32 v{V+r}, v{V+r}, v{RS+r}")
    for k in range(8): b(cvt(EX + 16 + k, V + 2*k))
    b(st(EX+16, VA, 1152)); b(st(EX+20, VA, 1728))
    for m in range(4):
        for r in range(4*m, 4*m + 4):
            b(f"v_mul_f32_dpp v{EX+r}, v{V+r}, v{EM} quad_perm:[1,1,3,3] row_mask:0xf bank_mask:0xf")
            b(f"v_mul_f32 v{V+r}, v{V+r}, v{EM}")
            b(f"v_cvt_pk_bf16_f32 v{EX+r}, v{V+r}, v{EX+r}")
        b(st(EX + 4*m, EA, 32*m))
    prof(b, 3)
    b(f"buffer_load_dword v{MR}, v{PA}, s[{S_WS}:{S_WS+3}], s{S_FO} offen sc1")
    signal(b, S_PA, S_NEED, 4, 5)
    prof(b, 4)
    b(f"s_add_u32 s{S_SEG}, s{S_SEG}, 2\ns_cmp_lt_u32 s{S_SEG}, 64\ns_cbranch_scc1 L_qw_loop")
    b(f"s_add_u32 s{S_LAY}, s{S_LAY}, 1\ns_cmp_ge_u32 s{S_LAY}, {nlayers}\ns_cbranch_scc1 L_end")
    srd(b, S_XI, PT['WS'], XB, W.X3)
    b("s_branch L_qw_layer")
```

```python
from asmb import Asm
import common as C

PART_BYTES = 5*4*32*512
MEMX_SLOT = 9216
class Lay:
    PART = 0
    MEMX = PART_BYTES
    FLAG = MEMX + 3*MEMX_SLOT
    END = FLAG + 4096
assert Lay.END <= C.W.PROG
KV_BYTES = 64*32*16384

L_MEM = 0
L_SX = 9216
L_SM = 13312
L_O = 14336
L_DUMMY = 163840
L_W = 16384
PIECE = 36864
LDS_BYTES = 163840

CH = (0,1,2,3,8,4,5,6,7)
POS = {c: k for k, c in enumerate(CH)}
ORDER = ["Q0","K0","Q1","K1","Q2","K2","Q3","K3","Q8","K8","Q4","Q5","Q6","Q7","K4","K5","K6","K7",
         "V4","V5","V6","V7","V0","V1","V2","V3","V8"] + ["O%d" % i for i in (0,1,2,3,8,4,5,6,7)]
LDS_STAGES = ["Q0","Q2","K3","Q6","K6","V8","O0","O8","O7"]
REG_STAGES = [s for s in ORDER if s not in LDS_STAGES]
def wreg(n):
    if n < 32: return "a[%d:%d]" % (8*n, 8*n+7), ('a', 8*n)
    b = 80 + 8*(n-32)
    return "v[%d:%d]" % (b, b+7), ('v', b)
WOP = {}
for i, s in enumerate(REG_STAGES):
    WOP[(s,0)] = wreg(2*i); WOP[(s,1)] = wreg(2*i+1)
for s in LDS_STAGES:
    WOP[(s,0)] = ("v[8:15]", ('v', 8)); WOP[(s,1)] = ("v[16:23]", ('v', 16))

A1, A2, IDX, TMP, SEL, AD0, AD1 = 0, 1, 2, 3, 4, 6, 7
RING, VX, QA, KA, KX, T1, T2 = 24, 40, 48, 56, 64, 72, 76
PR, FA = T1, T1+2
def v(b, n=1): return "v%d" % b if n == 1 else "v[%d:%d]" % (b, b+n-1)

S_WS, S_KV = 12, 16
S_WAVE, S_HEAD = 20, 21
S_STEP, S_TAG = 22, 23
S_PST = 24
S_NEED = 25
S_PS2 = 26
S_RLD = 27
S_RST = 28
S_MNEXT, S_MCUR = 29, 30
S_KVO = 31
S_C = 32
S_H288 = 33
S_XM = 58
S_FB = 52
S_QM = 56
S_PG = 8
S_PT = 48
S_LAY, S_BARN = 9, 10
S_GF = 11
S_AR = 44
S_T0, S_T1, S_T2 = 34, 35, 36
S_TO = 37
S_BND = 38
S_ONE = 39
S_FL = 40
NREP = 1
S_W = 40
TIMEOUT = 400000
import struct, math
SCALE_HEX = hex(struct.unpack('<I', struct.pack('<f', 128**-0.5 * math.log2(math.e)))[0])

def prologue_weights(b, ptr_regs):
    LANE = 24
    b(f"v_and_b32 v{LANE}, 63, v0")
    b(f"""
    v_lshrrev_b32 v25, 4, v{LANE}
    s_lshl_b32 s{S_T0}, s{S_WAVE}, 4
    v_add_u32 v26, s{S_T0}, v25
    v_lshlrev_b32 v26, 13, v26
    s_lshl_b32 s{S_T0}, s{S_HEAD}, 8
    v_add_u32 v26, s{S_T0}, v26
    v_and_b32 v27, 2, v25
    v_and_b32 v40, 15, v{LANE}
    v_xor_b32 v27, v27, v40
    """)
    for q in range(4):
        b(f"""
        v_xor_b32 v41, {4*q}, v27
        v_lshlrev_b32 v41, 4, v41
        v_add_u32 v41, v41, v26
        v_add_u32 v{28+q}, {4*q*8192}, v41
        """)
    b(f"""
    v_lshrrev_b32 v25, 3, v{LANE}
    s_lshl_b32 s{S_T0}, s{S_WAVE}, 5
    v_add_u32 v26, s{S_T0}, v25
    v_mul_u32_u24 v26, 1152, v26
    s_mul_i32 s{S_T0}, s{S_HEAD}, 147456
    v_add_u32 v26, s{S_T0}, v26
    v_lshrrev_b32 v27, 5, v{LANE}
    v_lshlrev_b32 v27, 1, v27
    v_and_b32 v40, 7, v{LANE}
    v_xor_b32 v27, v27, v40
    """)
    for q in range(4):
        b(f"""
        v_xor_b32 v41, {4*(q>>1)}, v27
        v_lshlrev_b32 v41, 4, v41
        v_add_u32 v41, v41, v26
        v_add_u32 v{32+q}, {8*q*1152}, v41
        """)
    b(f"""
    v_bfe_u32 v40, v{LANE}, 2, 1       ; rp&1
    v_bfe_u32 v41, v{LANE}, 3, 1       ; rp>>1
    v_bfe_u32 v42, v{LANE}, 4, 1       ; gb&1
    v_bfe_u32 v43, v{LANE}, 5, 1       ; gb>>1
    v_and_b32 v44, 3, v{LANE}          ; cc
    v_lshlrev_b32 v44, 3, v44
    v_add_u32 v44, {L_W}, v44
    v_lshl_add_u32 v46, v42, 1, v40
    v_lshl_add_u32 v46, v41, 2, v46
    v_lshl_add_u32 v45, v46, 9, v44
    v_mul_u32_u24 v47, {PIECE}, v43
    v_add_u32 v45, v45, v47
    s_lshl_b32 s{S_T0}, s{S_WAVE}, 1
    v_xor_b32 v46, s{S_T0}, v46
    v_lshl_add_u32 v48, v46, 5, v45    ; (i=0,hb=0)
    v_xor_b32 v46, 1, v46
    v_lshl_add_u32 v50, v46, 5, v45    ; (i=1,hb=0)
    v_add_u32 v49, {2*PIECE}, v48
    v_add_u32 v51, {2*PIECE}, v50
    v_lshlrev_b32 v45, 4, v42
    v_lshl_add_u32 v45, v43, 3, v45
    v_lshl_add_u32 v45, v41, 2, v45
    v_add_u32 v45, v45, v40
    v_lshl_add_u32 v45, v45, 7, v44
    v_lshl_add_u32 v46, v42, 1, v41
    v_xor_b32 v46, s{S_WAVE}, v46
    v_lshl_add_u32 v52, v46, 5, v45    ; (kappa=0,hb=0)
    v_add_u32 v53, {PIECE}, v52
    v_add_u32 v54, {2*PIECE}, v52
    v_add_u32 v55, {3*PIECE}, v52
    s_mul_i32 s{S_T2}, s{S_WAVE}, {PIECE}
    s_add_u32 s{S_T2}, s{S_T2}, {L_W}
    v_lshlrev_b32 v{A2}, 4, v{LANE}
    v_add_u32 v{A2}, s{S_T2}, v{A2}
    s_mov_b32 s{S_W+2}, {576*8192}
    s_mov_b32 s{S_W+3}, 0x20000
    """)
    seq = REG_STAGES + LDS_STAGES
    cur = [None]
    def dma(t):
        s = seq[t]; X, j = s[0], int(s[1]); reg = t % 9
        if cur[0] != X:
            b(f"s_mov_b32 s{S_W}, s{ptr_regs[X]}\ns_mov_b32 s{S_W+1}, s{ptr_regs[X]+1}"); cur[0] = X
        b(f"s_mov_b32 s{S_T0}, {j*64*8192 if X != 'O' else j*128}")
        for q in range(4):
            b(f"s_add_u32 m0, s{S_T2}, {reg*4096 + q*1024}")
            b(f"buffer_load_dwordx4 v{(28 if X != 'O' else 32)+q}, s[{S_W}:{S_W+3}], s{S_T0} offen lds")
    def wb(t):
        reg = t % 9; base = 56 if t % 2 == 0 else 8
        for k in range(4):
            b(f"ds_write_b128 v{A2}, v[{base+4*k}:{base+4*k+3}] offset:{reg*4096 + k*1024}")
    for t in range(9): dma(t)
    for t in range(36):
        s = seq[t]; X = s[0]; reg = t % 9
        issued = min(36, max(9, t + 8))
        b(f"s_waitcnt vmcnt({4*(issued - t - 1)}) lgkmcnt(0)")
        b("s_barrier")
        if t >= 1 and t + 8 < 36: dma(t + 8)
        if t - 1 >= 27: wb(t - 1)
        for op in range(2):
            if t < 27: kind, base = WOP[(s, op)][1]
            else: kind, base = 'v', (56 if t % 2 == 0 else 8) + 8*op
            for hb in range(2):
                for a in range(2):
                    r = base + 4*hb + 2*a
                    if X != 'O': ad, off = 48 + 2*op + hb, reg*4096 + a*256
                    else: ad, off = 52 + 2*op + hb, reg*4096 + a*256
                    b(f"ds_read_b64_tr_b16 {kind}[{r}:{r+1}], v{ad} offset:{off}")
    b("s_waitcnt lgkmcnt(0)\ns_barrier")
    wb(35)
    b("s_waitcnt lgkmcnt(0)")

def consts(b):
    b(f"""
    v_and_b32 v24, 63, v0
    v_lshlrev_b32 v{A1}, 4, v24
    v_and_b32 v25, 1, v24
    v_mov_b32 v{IDX}, 0x4444
    v_mov_b32 v26, 0xeeee
    v_cmp_eq_u32 vcc, 1, v25
    v_cndmask_b32 v{IDX}, v{IDX}, v26, vcc
    ; Sel16
    v_bfe_u32 v26, v24, 2, 2
    v_lshrrev_b32 v27, 4, v24
    v_cmp_eq_u32 vcc, v26, v27
    v_mov_b32 v28, 0x3f803f80
    v_cndmask_b32 v28, 0, v28, vcc
    v_cmp_eq_u32 vcc, 1, v25
    v_cndmask_b32 v{SEL}, v28, 0, vcc
    v_cndmask_b32 v{SEL+1}, 0, v28, vcc
    v_and_b32 v{AD0}, 0xffffffdf, v{A1}
    v_lshlrev_b32 v28, 6, v26
    v_lshl_add_u32 v28, v25, 5, v28
    v_bfe_u32 v29, v24, 4, 1
    v_lshl_add_u32 v28, v29, 4, v28
    v_bfe_u32 v29, v24, 5, 1
    v_lshl_add_u32 v28, v29, 8, v28
    s_lshl_b32 s{S_T0}, s{S_WAVE}, 9
    s_add_u32 s{S_T0}, s{S_T0}, {L_O}
    v_add_u32 v29, s{S_T0}, v28
    v_add_u32 v28, {L_DUMMY}, v28
    v_bfe_u32 v30, v24, 1, 1
    v_cmp_eq_u32 vcc, 1, v30
    v_cndmask_b32 v{AD1}, v29, v28, vcc
    """)

def set_lds_stages(lst):
    global LDS_STAGES, REG_STAGES
    LDS_STAGES = list(lst)
    assert [x for x in ORDER if x in LDS_STAGES] == LDS_STAGES and len(LDS_STAGES) == 9
    REG_STAGES = [x for x in ORDER if x not in LDS_STAGES]
    WOP.clear()
    for i, x in enumerate(REG_STAGES):
        WOP[(x,0)] = wreg(2*i); WOP[(x,1)] = wreg(2*i+1)
    for x in LDS_STAGES:
        WOP[(x,0)] = ("v[8:15]", ('v', 8)); WOP[(x,1)] = ("v[16:23]", ('v', 16))

class Loop:
    def __init__(self, b, w, st, P):
        self.b, self.w, self.st, self.P = b, w, st, P
        self.slow = []
        self.bg = []
        self.sfx = f"_{P['name']}_w{w}"
    def slot(self, shadow):
        if self.bg and not any(x.startswith("ds_") for x in shadow):
            self.b(self.bg.pop(0))
        for x in shadow: self.b(x)
    def smf(self, stage, op, acc, mem, *shadow):
        if stage in LDS_STAGES:
            assert not any(f"v[{8+8*op}:" in x or f"v[{12+8*op}:" in x for x in self.bg), (stage, self.bg)
        assert not any(x.startswith(f"ds_read_b128 v[{mem}:") for x in self.bg), (stage, self.bg)
        self.b(f"v_smfmac_f32_16x16x64_bf16 {v(acc,4)}, {v(mem,4)}, {WOP[(stage,op)][0]}, v{IDX}")
        if stage in LDS_STAGES:
            nx = (LDS_STAGES.index(stage) + 1) % 9
            self.bg += [self.wread(nx, op, hf) for hf in range(2)]
        self.slot(shadow)
    def mf(self, text, *shadow):
        self.b(text); self.slot(shadow)
    def wread(self, st, op, hf):
        off = st*4096 + op*2048 + hf*1024
        if self.w == 0: return f"ds_read_b128 {v(8+8*op+4*hf,4)}, v{A1} offset:{L_W + off}"
        return f"ds_read_b128 {v(8+8*op+4*hf,4)}, v{A2} offset:{off}"
    def memreg(self, j, vphase=False):
        j = POS[j]
        if vphase and j < 5: return RING + 4*((j + 1) % 4)
        return RING + 4*(j % 4)
    def rdmem(self, j, vphase=False):
        return f"ds_read_b128 {v(self.memreg(j, vphase),4)}, v{A1} offset:{L_MEM + j*1024}"
    def dma_group(self, b, g):
        b(f"s_mov_b32 m0, {L_MEM + g*4096}")
        b(f"s_add_u32 s{S_T0}, s{S_MNEXT}, {g*4096}")
        for n in range(4 if g < 2 else 1):
            b(f"buffer_load_dwordx4 v{A1}, s[{S_WS}:{S_WS+3}], s{S_T0} offen offset:{n*1024} sc1 lds")
    def stamp(self, i):
        if self.P.get("dump") == i:
            b = self.b
            b.join()
            b(f"s_lshl_b32 s{S_T0}, s{S_HEAD}, 2\ns_add_u32 s{S_T0}, s{S_T0}, s{S_WAVE}\ns_mul_i32 s{S_T0}, s{S_T0}, 20480")
            b(f"s_add_u32 s{S_T0}, s{S_T0}, {32*16384*8}")
            for r in range(20):
                b(f"buffer_store_dwordx4 {v(4*r,4)}, v{A1}, s[{S_KV}:{S_KV+3}], s{S_T0} offen")
                b(f"s_add_u32 s{S_T0}, s{S_T0}, 1024")
            b(f"s_branch {self.P['exit']}")
        if self.P.get("stamp"):
            sl = self.P.get("stamps", [0,1,2,3,4,5,6,7,8])
            if i in sl:
                k = sl.index(i)
                self.b.raw(f"    {'s_memrealtime' if self.P.get('rt') else 's_memtime'} s[{64+2*k}:{65+2*k}]")
    def kvstep(self):
        b, P = self.b, self.P
        b(f"s_add_u32 s{S_KVO}, s{S_KVO}, {32*16384}")
        if P.get("kvfix"): b(f"s_and_b32 s{S_KVO}, s{S_KVO}, {32*16384-1}")
    def kvload(self, i):
        return f"buffer_load_dwordx4 {v((KX, KX+4, VX, VX+4)[i],4)}, v{A1}, s[{S_KV}:{S_KV+3}], s{S_KVO} offen offset:{1024*i} sc1"
    def probe(self, b, g):
        if not self.P.get("nocomm") and not self.P.get("noprobe"):
            b(f"buffer_load_dword v{PR+g}, v{FA+g}, s[{S_WS}:{S_WS+3}], s{S_MNEXT} offen sc1")
    def round(self, b, g):
        self.probe(b, g)
        self.dma_group(b, g)
        if g == 0: self.dma_group(b, 2)
    def probe_check(self, g):
        if self.P.get("nocomm") or self.P.get("noprobe") or self.w != 3: return [], []
        lab = f"L_pr{g}{self.sfx}"
        def slow(sb):
            sb.label(lab + "_slow")
            self.round(sb, g)
            sb(f"""
            s_add_u32 s63, s63, {1 << (16*g)}
            s_add_u32 s{S_TO}, s{S_TO}, 1
            s_cmp_gt_u32 s{S_TO}, {TIMEOUT}
            s_cbranch_scc1 {lab}_ok
            v_cmp_eq_u32 vcc, -1, v{PR+g}
            s_cbranch_vccnz {lab}_slow
            """)
            if g: sb("s_waitcnt vmcnt(0)")
            sb(f"s_branch {lab}_ok")
        self.slow.append(slow)
        return [f"v_cmp_eq_u32 vcc, -1, v{PR+g}"], [f"s_cbranch_vccnz {lab}_slow", lab + "_ok:"]
    def head(self):
        b, w, P = self.b, self.w, self.P
        self.kvstep()
        if P.get("light"):
            b(f"s_cmp_eq_u32 s{S_STEP}, 3\ns_cbranch_scc1 L_st{self.sfx}\nL_stb{self.sfx}:")
            def st(sb):
                sb.label(f"L_st{self.sfx}")
                sb(f"s_memrealtime s[92:93]\ns_memtime s[94:95]\ns_mov_b32 s60, 0\ns_mov_b32 s61, 0\ns_mov_b32 s62, 0\ns_mov_b32 s63, 0\ns_waitcnt lgkmcnt(0)\ns_branch L_stb{self.sfx}")
            self.slow.append(st)
        z = [f"v_mov_b64 {v(QA+2*i,2)}, 0" for i in range(8)]
        nc = P.get("nocomm")
        if w == 3:
            for x in z: b(x)
            if not nc:
                NP = P.get("npoll", 4)
                lab = f"L_pl{self.sfx}"
                GA = RING + 8
                b(f"v_mov_b32 v{GA+1}, s{S_TAG}")
                b.nop(P["d2"][0] // 4)
                b(f"buffer_store_dword v{GA+1}, v{A1}, s[{S_FL}:{S_FL+3}], 0 offen {self.st}")
                b(f"""
                v_lshrrev_b32 v{GA}, 2, v{A1}
                v_and_b32 v{GA}, 127, v{GA}
                v_and_b32 v{FA}, 0xf0, v{A1}
                v_lshlrev_b32 v{FA}, 2, v{FA}
                v_add_u32 v{GA+3}, {8192 + 60}, v{FA}
                v_bfe_u32 v{GA+2}, v{A1}, 8, 1
                v_lshl_add_u32 v{FA}, v{GA+2}, 11, v{FA}
                v_cmp_gt_u32 vcc, 512, v{A1}
                v_add_u32 v{FA+1}, {4096 + 1024 + 60}, v{FA}
                v_add_u32 v{FA}, {1024 + 60}, v{FA}
                v_cndmask_b32 v{FA}, v{GA+3}, v{FA}, vcc
                """)
                b.nop(P.get("lead", 0) // 4)
                ld = lambda i: f"    buffer_load_dword v{RING+i}, v{GA}, s[{S_WS}:{S_WS+3}], s{S_GF} offen sc1"
                for i in range(NP):
                    b.raw(ld(i))
                    if i < NP - 1: b.nop(P.get("pgap", 8))
                b.label(lab)
                for i in range(NP):
                    b.raw(f"    s_waitcnt vmcnt({NP-1})")
                    b.raw(f"    v_cmp_gt_u32 vcc, s{S_TAG}, v{RING+i}")
                    b.raw(ld(i))
                    b.raw(f"    s_cbranch_vccz {lab}_o")
                b(f"s_add_u32 s60, s60, 1\ns_add_u32 s{S_TO}, s{S_TO}, 1\ns_cmp_lt_u32 s{S_TO}, {TIMEOUT}\ns_cbranch_scc1 {lab}")
                b.raw(".p2align 3")
                b.label(lab + "_o")
                b.vm = []
            self.stamp(9)
            self.round(b, 0)
            c, br = self.probe_check(0)
            for x in c + br: b(x)
            b(f"s_mov_b32 m0, {L_MEM + (4+w)*1024}\ns_add_u32 s{S_T0}, s{S_MNEXT}, {(4+w)*1024}")
            b(f"s_waitcnt vmcnt({3 if P.get('split') else 0})")
        else:
            b("s_waitcnt vmcnt(0)")
            if w == 0 and P.get("mega"):
                if not P.get("light"): C.trace(b, 6, RING, check=False)
                b(f"v_cmp_gt_u32 vcc, s{S_NEED}, v{A2}")
            for x in z: b(x)
            if w == 0 and P.get("mega"):
                lab = f"L_kw{self.sfx}"
                b(f"s_cbranch_vccnz {lab}")
                b.label(lab + "_ok")
                if not P.get("light"): C.trace(b, 7, RING, check=False)
                b(f"s_add_u32 s{S_PG}, s{S_PG}, {128 << C.PSH}\ns_sub_u32 s{S_T0}, s{S_PG}, {384 << C.PSH}\ns_cmp_ge_u32 s{S_T0}, {C.W.PROG + C.P_HWP}\ns_cselect_b32 s{S_PG}, s{S_T0}, s{S_PG}")
                def slow(sb):
                    sb.label(lab)
                    sb(f"""
                    buffer_load_dword v{A2}, off, s[{S_WS}:{S_WS+3}], s{S_PG} sc1
                    s_add_u32 s63, s63, 1
                    s_add_u32 s{S_TO}, s{S_TO}, 1
                    s_cmp_gt_u32 s{S_TO}, {TIMEOUT}
                    s_waitcnt vmcnt(0)
                    s_cbranch_scc1 {lab}_ok
                    v_cmp_gt_u32 vcc, s{S_NEED}, v{A2}
                    s_cbranch_vccnz {lab}
                    s_branch {lab}_ok
                    """)
                self.slow.append(slow)
            b(f"s_mov_b32 m0, {L_MEM + (4+w)*1024}\ns_add_u32 s{S_T0}, s{S_MNEXT}, {(4+w)*1024}")
        self.stamp(8)
        b("s_waitcnt lgkmcnt(0)\ns_barrier")
    def body(self):
        b, w, P = self.b, self.w, self.P
        smf, mr, rd = self.smf, self.memreg, self.rdmem
        sfx = self.sfx
        b.label(f"L_pa{sfx}")
        self.stamp(0)
        mf = self.mf
        b(rd(0))
        if w == 3: self.probe(b, 1)
        b(rd(1))
        b(f"buffer_load_dwordx4 v{A1}, s[{S_WS}:{S_WS+3}], s{S_T0} offen sc1 lds")
        kv = self.kvload
        nc = 1 if P.get("nocomm") else 0
        cvt = lambda d, a: f"v_cvt_pk_bf16_f32 v{d}, v{a}, v{a+1}"
        seq = [(X, j, op) for X, j in [(x[0], int(x[1])) for x in ORDER[:14]] for op in range(2)]
        sh = [[] for _ in seq]
        pb1 = P.get("pb1", 15)
        kvs = [P.get("kv0", 1) + 4*i + w for i in range(4)]
        for i in range(4): sh[kvs[i]].append(kv(i))
        c, br = self.probe_check(1)
        sh[pb1-2] += c; sh[pb1-1] += br
        sh[pb1] += [f"s_waitcnt vmcnt({sum(k <= pb1 for k in kvs)})", "s_barrier"]
        if P.get("split"):
            p0 = P["split"]
            if w == 3: sh[p0] += [f"s_waitcnt vmcnt({(1 if nc or P.get('noprobe') else 2) + sum(k <= p0 for k in kvs)})"]
            sh[p0] += ["s_barrier"]
            sh[p0+1].insert(0, rd(2)); sh[p0+3].insert(0, rd(3)); sh[p0+4].insert(0, rd(8))
        else:
            sh[2].insert(0, rd(2)); sh[5].insert(0, rd(3)); sh[7].insert(0, rd(8))
        sh[pb1+1].insert(0, rd(4)); sh[pb1+3].insert(0, rd(5)); sh[pb1+5].insert(0, rd(6)); sh[pb1+7].insert(0, rd(7))
        if w == 0 and P.get("touch", 1):
            t = kvs[3] + 4
            sh[t] += [f"s_add_u32 s{S_T1}, s{S_KVO}, {32*16384*P.get('touch',1)}", f"v_lshlrev_b32 v{A2}, 3, v{A1}"]
            sh[t+1] += [f"buffer_load_dword v{A2}, v{A2}, s[{S_KV}:{S_KV+3}], s{S_T1} offen ; nowait"]
            sh[t+2] += [f"s_add_u32 s{S_T1}, s{S_T1}, 8192"]
            sh[t+3] += [f"buffer_load_dword v{A2}, v{A2}, s[{S_KV}:{S_KV+3}], s{S_T1} offen ; nowait"]
            if P.get("mega"): sh[t+5] += [f"buffer_load_dword v{A2}, off, s[{S_WS}:{S_WS+3}], s{S_PG} sc1 ; nowait"]
            if P.get("tlat"):
                sh[t] = ["s_memtime s[4:5]"] + sh[t]
                sh[t+6] += [f"s_waitcnt vmcnt({P['tlat']-1})", "s_memtime s[6:7]", "s_waitcnt lgkmcnt(0)", "s_sub_u32 s6, s6, s4", "s_add_u32 s63, s63, s6", "s_max_u32 s62, s62, s6"]
        if w == 3 and P.get("mega"):
            sh[22] += [f"s_sub_u32 s{S_T1}, s{S_NEED}, 1"]
            sh[23] += [f"v_mov_b32 v{T2}, s{S_T1}"]
            sh[24] += [f"buffer_store_dword v{T2}, v{A1}, s[{S_PT}:{S_PT+3}], 0 offen sc1"]
        for (X, j, op), shd in zip(seq, sh):
            smf(f"{X}{j}", op, (QA if X == 'Q' else KA) + 4*op, mr(j), *shd)
        self.stamp(14)
        K = [(f"K{j}", op, KA + 4*op, mr(j)) for j in CH[5:] for op in range(2)]
        def k1(*sh): smf(*K.pop(0), *sh)
        k1(cvt(T1, QA))
        k1(cvt(T1+1, QA+2))
        mf(f"v_mfma_f32_16x16x16_bf16 {v(QA,4)}, {v(T1,2)}, {v(SEL,2)}, 0", cvt(T1+2, QA+4), cvt(T1+3, QA+6))
        k1()
        mf(f"v_mfma_f32_16x16x16_bf16 {v(QA+4,4)}, {v(T1+2,2)}, {v(SEL,2)}, 0",
           *([f"ds_read_b128 {v(T1,4)}, v{TMP} offset:{L_MEM}"] if w == 3 else []), cvt(T2, QA), cvt(T2+1, QA+2))
        k1(f"v_cmp_u_f32 vcc, v{QA}, v{QA}")
        k1(cvt(T2+2, QA+4))
        k1(*([] if nc else [f"s_cbranch_vccnz L_redo{sfx}"]), f"L_noredo{sfx}:", cvt(T2+3, QA+6))
        k1(f"s_cmp_eq_u32 s{S_STEP}, {P['nstep']}", f"v_mov_b64 {v(QA,2)}, 0")
        k1(*([f"buffer_store_dwordx4 {v(T1,4)}, v{A1}, s[{S_AR}:{S_AR+3}], 0 offen sc1"] if w == 3 else []), f"s_cbranch_scc1 {P['exit']}", f"v_mov_b64 {v(QA+2,2)}, 0")
        assert not K
        mf(f"v_mfma_f32_16x16x32_bf16 {v(KX,4)}, {v(KX,4)}, {v(T2,4)}, 0", cvt(T1, KA), cvt(T1+1, KA+2))
        mf(f"v_mfma_f32_16x16x32_bf16 {v(KX+4,4)}, {v(KX+4,4)}, {v(T2,4)}, 0", cvt(T1+2, KA+4), cvt(T1+3, KA+6))
        def redo(sb):
            sb.label(f"L_redo{sfx}")
            sb(f"""
            s_add_u32 s61, s61, 1
            s_add_u32 s{S_TO}, s{S_TO}, 64
            s_cmp_gt_u32 s{S_TO}, {TIMEOUT}
            s_cbranch_scc1 L_noredo{sfx}
            s_waitcnt vmcnt(0) lgkmcnt(0)
            s_barrier
            """)
            if w < 3: self.dma_group(sb, w)
            if w == 3: sb(f"v_mov_b32 v{FA+1}, 4096")
            sb(f"s_mov_b32 m0, {L_MEM + (4+w)*1024}\ns_add_u32 s{S_T0}, s{S_MNEXT}, {(4+w)*1024}")
            sb.nop(8)
            for i in range(8): sb(f"v_mov_b64 {v(QA+2*i,2)}, 0")
            for op in range(2):
                for hf in range(2):
                    sb(self.wread(0, op, hf))
            sb(f"s_waitcnt vmcnt(0) lgkmcnt(0)\ns_barrier\ns_branch L_pa{sfx}")
        self.slow.append(redo)
        self.stamp(1)
        V = [(f"V{j}", op, QA + 4*op, mr(j, True)) for j in CH[5:] + CH[:5] for op in range(2)]
        nv = [0]
        def v1(*sh):
            nv[0] += 1
            x = V.pop(0)
            b(f"v_smfmac_f32_16x16x64_bf16 {v(x[2],4)}, {v(x[3],4)}, {WOP[(x[0],x[1])][0]}, v{IDX}")
            assert not any(y.startswith(f"ds_read_b128 v[{x[3]}:") for y in self.bg), (x, self.bg)
            if x[0] in LDS_STAGES:
                self.bg += [self.wread((LDS_STAGES.index(x[0]) + 1) % 9, x[1], hf) for hf in range(2)]
            if nv[0] in (2, 4, 6, 8, 10): self.bg.insert(0 if not self.bg or "v[8" in self.bg[0] else len(self.bg), rd(CH[nv[0]//2 - 1], True))
            self.slot(sh)
        sel = lambda r: f"v_cndmask_b32 v{KX+r}, v{KX+r}, v{KX+4+r}, s[{S_XM}:{S_XM+1}]"
        mf(f"v_mfma_f32_16x16x16_bf16 {v(KA,4)}, {v(T1,2)}, {v(SEL,2)}, 0", f"v_mov_b64 {v(QA+4,2)}, 0", f"v_mov_b64 {v(QA+6,2)}, 0")
        mf(f"v_mfma_f32_16x16x16_bf16 {v(KA+4,4)}, {v(T1+2,2)}, {v(SEL,2)}, 0", sel(0), sel(1))
        b(sel(2)); b(sel(3))
        v1(f"ds_write_b128 v{A1}, {v(KX,4)} offset:{L_SX + w*1024}", cvt(T1, KA), cvt(T1+1, KA+2), cvt(T1+2, KA+4), cvt(T1+3, KA+6))
        v1(f"s_mov_b32 s{S_MCUR}, s{S_MNEXT}", f"s_add_u32 s{S_MNEXT}, s{S_MNEXT}, {MEMX_SLOT}")
        mf(f"v_mfma_f32_16x16x32_bf16 {v(KA,4)}, {v(T1,4)}, {v(T2,4)}, 0", f"s_add_u32 s{S_STEP}, s{S_STEP}, 1", f"s_add_u32 s{S_TAG}, s{S_TAG}, 1", f"s_add_u32 s{S_NEED}, s{S_NEED}, 1")
        v1(f"s_cmp_eq_u32 s{S_MNEXT}, {Lay.MEMX + 3*MEMX_SLOT}", f"s_cselect_b32 s{S_MNEXT}, {Lay.MEMX}, s{S_MNEXT}")
        v1(f"ds_write_b64 v{AD0}, {v(KA,2)} offset:{L_SM + (w>>1)*32 + (w&1)*8}")
        b(f"s_waitcnt lgkmcnt(2)\ns_barrier")
        others = [KA+4, T1, T2]
        X = [KX if i == w else others.pop(0) for i in range(4)]
        xr = [f"ds_read_b128 {v(X[i],4)}, v{A1} offset:{L_SX + i*1024}" for i in range(4)]
        own = xr.pop(w)
        MR = [KX+4, KA]
        mrd = [f"ds_read_b128 {v(MR[i],4)}, v{AD0} offset:{L_SM + i*32}" for i in range(2)]
        SX, SM = X[0], MR[0]
        addx = [f"v_add_f32 v{X[0]+r}, v{X[0]+r}, v{X[1]+r}" for r in range(4)] + \
               [f"v_add_f32 v{X[2]+r}, v{X[2]+r}, v{X[3]+r}" for r in range(4)] + \
               [f"v_add_f32 v{X[0]+r}, v{X[0]+r}, v{X[2]+r}" for r in range(4)]
        addm = [f"v_add_f32 v{SM+r}, v{SM+r}, v{MR[1]+r}" for r in range(4)] + \
               [f"v_add_f32 v{SM+r}, v{SM+r}, v{SM+2+r}" for r in range(2)] + \
               [f"v_mul_f32 v{SM+r}, s{S_C}, v{SM+r}" for r in range(2)]
        v1(xr[0]); v1(xr[1]); v1(xr[2])
        for _ in range(P.get("vb", 1)): v1()
        b(f"s_waitcnt lgkmcnt({b.lg_after('ds_write')})\ns_barrier")
        self.stamp(2)
        b(mrd[0])
        MX = X[1]
        val = addx + [f"v_max3_f32 v{MX}, abs(v{SX}), abs(v{SX+1}), abs(v{SX+2})"] + addm + \
              [f"v_max3_f32 v{MX}, v{MX}, abs(v{SX+3}), abs(v{SM})", f"v_max_f32 v{MX}, v{MX}, abs(v{SM+1})",
               f"v_cmp_lt_f32 vcc, s{S_BND}, v{MX}"]
        per = P.get("per", 2)
        first = [[mrd[1]]] + ([[f"s_add_u32 s{S_AR}, s{S_AR}, 9216"], [f"s_addc_u32 s{S_AR+1}, s{S_AR+1}, 0"]] if w == 3 else [])
        while V:
            v1(*(first.pop(0) if first else []), *val[:per]); val = val[per:]
        for x in val: b(x)
        ex = [SX, SX+1, SX+2, SX+3, SM, SM+1]
        for r in ex:
            b(f"v_exp_f32 v{r}, v{r}")
            if self.bg: b(self.bg.pop(0))
        b(f"s_cbranch_vccnz L_max{sfx}")
        b.label(f"L_maxback{sfx}")
        def truemax(sb):
            sb.label(f"L_max{sfx}")
            for x in xr + [own] + mrd + addx + addm: sb(x)
            M, M2 = MX, MX+1
            sb(f"""
            v_max3_f32 v{M}, v{SX}, v{SX+1}, v{SX+2}
            v_max3_f32 v{M2}, v{SX+3}, v{SM}, v{SM+1}
            v_max_f32 v{M}, v{M}, v{M2}
            v_max_f32_dpp v{M}, v{M}, v{M} quad_perm:[2,3,0,1] row_mask:0xf bank_mask:0xf
            v_mov_b32 v{M2}, v{M}
            v_permlane16_swap_b32 v{M}, v{M2}
            v_max_f32 v{M}, v{M}, v{M2}
            v_mov_b32 v{M2}, v{M}
            v_permlane32_swap_b32 v{M}, v{M2}
            v_max_f32 v{M}, v{M}, v{M2}
            """)
            for r in ex: sb(f"v_sub_f32 v{r}, v{r}, v{M}")
            for r in ex: sb(f"v_exp_f32 v{r}, v{r}")
            sb(f"s_add_u32 s62, s62, 1\ns_waitcnt lgkmcnt(0)\ns_branch L_maxback{sfx}")
        self.slow.append(truemax)
        b(cvt(T1, SX)); b(cvt(T1+1, SX+2))
        b(f"v_cvt_pk_bf16_f32 v{T2}, v{SM}, v{SM}")
        b(f"v_mov_b32_dpp v{T1+2}, v{T1} quad_perm:[2,3,0,1] row_mask:0xf bank_mask:0xf")
        b(f"v_mov_b32_dpp v{T1+3}, v{T1+1} quad_perm:[2,3,0,1] row_mask:0xf bank_mask:0xf")
        b(f"v_cvt_pk_bf16_f32 v{T2+1}, v{SM+1}, v{SM+1}")
        assert not self.bg
        VM, ONE, ONEM, LS = RING, RING+4, RING+8, 60
        b(cvt(VM, QA))
        self.stamp(3)
        b(f"v_mfma_f32_16x16x32_bf16 {v(KA,4)}, {v(VX,4)}, {v(T1,4)}, 0")
        b(cvt(VM+1, QA+2)); b(cvt(VM+2, QA+4))
        b(f"v_mfma_f32_16x16x32_bf16 {v(KA+4,4)}, {v(VX+4,4)}, {v(T1,4)}, 0")
        b(cvt(VM+3, QA+6)); b(f"v_mov_b32 v{ONE}, s{S_ONE}")
        b(f"v_mfma_f32_16x16x16_bf16 {v(KA,4)}, {v(VM,2)}, {v(T2,2)}, {v(KA,4)}")
        b(f"v_mov_b32 v{ONE+1}, s{S_ONE}\nv_mov_b32 v{ONE+2}, s{S_ONE}")
        b(f"v_mfma_f32_16x16x16_bf16 {v(KA+4,4)}, {v(VM+2,2)}, {v(T2,2)}, {v(KA+4,4)}")
        b(f"v_mov_b32 v{ONE+3}, s{S_ONE}\nv_mov_b32 v{ONEM}, 0x3f80\nv_mov_b32 v{ONEM+1}, 0x3f80")
        for i in range(4): b(cvt(QA+i, KA+2*i))
        b(f"ds_write_b128 v{AD1}, {v(QA,4)}")
        OA = 24
        b(f"v_mfma_f32_16x16x32_bf16 {v(LS,4)}, {v(T1,4)}, {v(ONE,4)}, 0")
        gb = w == 3 and not nc and P.get("gb", 1)
        zz = [f"v_mov_b64 {v(OA+2*i,2)}, 0" for i in range(5, 5 + P.get("z1", 9))]
        if gb:
            zz = [f"v_mov_b32 v{T2+2}, s{S_TAG}"] + zz + [f"v_lshrrev_b32 v{T2+3}, 2, v{A1}", f"v_and_b32 v{T2+3}, 127, v{T2+3}"]
        gprobe = lambda i, a=T2+3: f"buffer_load_dword v{RING+i}, v{a}, s[{S_WS}:{S_WS+3}], s{S_GF} offen offset:128 sc1"
        for x in zz: b(x)
        for _ in range(P.get("f0", 0)): b(f"v_mov_b32 v{T2+2}, 0")
        b(f"v_mfma_f32_16x16x16_bf16 {v(LS,4)}, {v(T2,2)}, {v(ONEM,2)}, {v(LS,4)}")
        b("s_waitcnt lgkmcnt(0)\ns_barrier")
        self.stamp(4)
        b(f"ds_read_b128 {v(KX,4)}, v{A1} offset:{L_O}")
        b(f"v_mov_b64 {v(OA,2)}, 0")
        b(f"ds_read_b128 {v(KX+4,4)}, v{A1} offset:{L_O+1024}")
        for i in list(range(1, 5)) + list(range(5 + P.get("z1", 9), 18)): b(f"v_mov_b64 {v(OA+2*i,2)}, 0")
        PM, PA = LS+2, LS+3
        b(f"v_cndmask_b32 v{PM}, 0, 1, s[{S_QM}:{S_QM+1}]")
        b(f"v_lshrrev_b32 v{PA}, 1, v{A1}")
        b(f"v_rcp_f32 v{LS}, v{LS}\nv_rcp_f32 v{LS+1}, v{LS+1}")
        RL, RD, SEL32, RA, RS = 24, 40, 44, TMP, 65
        TL = (0,1,2,3,8,4,5,6,7)
        def post(m):
            n = TL[m]; a = OA + 4*m; d = T1 + n % 8
            r = [f"v_add_f32 v{a}, v{a}, v{a+1}", f"v_add_f32 v{a+2}, v{a+2}, v{a+3}",
                 f"v_mul_f32 v{a}, v{a}, v{LS}", f"v_mul_f32 v{a+2}, v{a+2}, v{LS+1}"]
            if n % 2: return r + [f"v_cvt_pk_bf16_f32 v{d}, v{a}, v{a+2}"]
            return r + [f"v_cvt_pk_bf16_f32 v{a}, v{a}, v{a+2}", f"v_bfi_b32 v{d}, v{PM}, s{S_TAG}, v{a}"]
        def store(k):
            so = S_PST if k == 0 else S_PS2
            nxt = {0: 1, 1: 4, 4: 2, 2: 3}.get(k)
            return [f"buffer_store_dwordx2 {v(T1 + (2*k if k < 4 else 0), 2)}, v{PA}, s[{S_WS}:{S_WS+3}], s{so} offen {self.st}"] + \
                   ([f"s_add_u32 s{S_PS2}, s{S_PST}, {65536*nxt}"] if nxt else [])
        rload = lambda n, R=RL: f"buffer_load_dwordx4 {v(R+4*n,4)}, v{RA}, s[{S_WS}:{S_WS+3}], s{S_RLD} offen offset:{n*512} sc1"
        O = [(f"O{TL[m]}", op, OA + 4*m, KX + 4*op) for m in range(9) for op in range(2)]
        p = [post(m) for m in range(9)]
        sh = [[] for _ in range(18)]
        sp = P.get("sp", 3)
        stg = P.get("stg", [0, 0, 1, 1])[w]
        for m in range(7):
            sh[2*m+3] += p[m][:sp]; sh[2*m+4] += p[m][sp:]
        for k, pos in ((0, 7), (1, 11), (4, 13), (2, 17)):
            pos = min(17, pos + stg); sh[pos] = store(k) + sh[pos]
        if gb:
            gp = P.get("gp", [10, 13, 16])
            sh[P.get("gf", 5)].insert(0, f"buffer_store_dword v{T2+2}, v{A1}, s[{S_FB}:{S_FB+3}], 0 offen {self.st}")
            for i in range(3): sh[gp[i]].insert(0, gprobe(i))
            sh[17] += p[7] + [f"v_cmp_gt_u32 vcc, s{S_TAG}, v{RING}"] + p[8] + store(3) + [f"s_cbranch_vccnz L_gb{sfx}", f"L_gbok{sfx}:"]
            after = lambda i: sum(x.startswith("buffer_") for k in range(gp[i], 18) for x in sh[k]) - 1
            def gslow(sb):
                GA = RING + 4
                sb.label(f"L_gb{sfx}")
                sb(f"v_lshrrev_b32 v{GA}, 2, v{A1}\nv_and_b32 v{GA}, 127, v{GA}")
                sb.raw("    " + gprobe(0, GA))
                sb(f"s_add_u32 s62, s62, 65536\ns_waitcnt vmcnt({after(1) + 1})\nv_cmp_gt_u32 vcc, s{S_TAG}, v{RING+1}")
                sb.raw("    " + gprobe(1, GA))
                sb(f"s_cbranch_vccz L_gbok{sfx}")
                sb(f"s_add_u32 s62, s62, 65536\ns_waitcnt vmcnt({after(2) + 2})\nv_cmp_gt_u32 vcc, s{S_TAG}, v{RING+2}")
                sb.raw("    " + gprobe(2, GA))
                sb(f"s_cbranch_vccz L_gbok{sfx}")
                sb.label(f"L_gbl{sfx}")
                for i in range(3):
                    sb(f"s_add_u32 s62, s62, 65536\ns_waitcnt vmcnt(2)\nv_cmp_gt_u32 vcc, s{S_TAG}, v{RING+i}")
                    sb.raw("    " + gprobe(i, GA))
                    sb(f"s_cbranch_vccz L_gbok{sfx}")
                sb(f"s_add_u32 s{S_TO}, s{S_TO}, 1\ns_cmp_lt_u32 s{S_TO}, {TIMEOUT}\ns_cbranch_scc1 L_gbl{sfx}\ns_branch L_gbok{sfx}")
            self.slow.append(gslow)
        else:
            sh[17] += p[7] + p[8] + store(3)
        r0 = P.get("r0s", [18, 18, 18, 18])[w]
        if r0 < 18 and not nc:
            for n in range(4): sh[min(17, r0 + n)].insert(0, rload(n))
        for i in range(18):
            smf(*O[i], *sh[i])
            self.stamp(20 + i)
        if not nc and P.get("gb", 1): b("s_barrier")
        tailbg, self.bg = self.bg, []
        if nc or w == 3:
            for x in tailbg: b(x)
        self.stamp(5)
        if P.get("nocomm") or w == 3:
            self.stamp(7)
            return
        if w < 3:
            def setup():
                if w != 2:
                    for x in tailbg: b(x)
                b(f"""
                v_bfe_u32 v66, v{A1}, 4, 4
                v_mov_b32 v67, 0x3f80
                v_and_b32 v69, 1, v66
                v_lshlrev_b32 v70, 4, v69
                v_lshlrev_b32 v67, v70, v67
                v_lshrrev_b32 v68, 1, v66
                v_cmp_eq_u32 vcc, 0, v68
                v_cmp_eq_u32 s[{S_T0}:{S_T0+1}], 1, v68
                v_bfe_u32 v70, v66, 1, 1
                v_cndmask_b32 v{SEL32}, 0, v67, vcc
                v_cndmask_b32 v{SEL32+1}, 0, v67, s[{S_T0}:{S_T0+1}]
                v_cmp_eq_u32 vcc, 2, v68
                v_cmp_eq_u32 s[{S_T0}:{S_T0+1}], 3, v68
                v_lshlrev_b32 v70, 10, v70
                v_cndmask_b32 v{SEL32+2}, 0, v67, vcc
                v_cndmask_b32 v{SEL32+3}, 0, v67, s[{S_T0}:{S_T0+1}]
                v_lshl_add_u32 v70, v69, 5, v70
                v_and_b32 v69, {10 if w == 2 else 8}, v66
                v_cmp_eq_u32 vcc, 0, v69
                v_and_b32 v69, 4, v66
                v_add_u32 v70, v70, v69
                v_bfe_u32 v69, v{A1}, 8, 1
                v_lshl_add_u32 v68, v69, 4, v70
                v_lshrrev_b32 v69, 9, v{A1}
                v_lshl_add_u32 v68, v69, 3, v68
                v_mov_b32 v69, 0x40000000
                v_cndmask_b32 v{RS}, v69, v68, vcc
                v_mov_b32 v70, -1
                v_mov_b32 v64, s{S_TAG}
                s_add_u32 s{S_T0}, s{S_RST}, s{S_MNEXT}
                s_add_u32 s{S_T1}, s{S_RST}, s{S_MCUR}
                """)
            flag = f"buffer_store_byte v64, v71, s[{S_FL}:{S_FL+3}], 0 offen {self.st}"
            if w == 2:
                for x in tailbg: b(x)
            if w == 2: b(f"s_cmp_ge_u32 s{S_HEAD}, 16\ns_cbranch_scc1 L_redend{sfx}")
            pre = P.get("pre", [0, 1, 0])[w]
            two = P.get("two", [0, 1, 0])[w]
            if pre: setup()
            if r0 >= 18:
                b.nop(P["d1"][w] // 4)
                for n in range(4): b(rload(n))
            if not pre: setup()
            def check(b, R, nafter):
                mm = lambda n: f"v_mfma_f32_16x16x32_bf16 {v(RD,4)}, {v(R+4*n,4)}, {v(SEL32,4)}, {'0' if n == 0 else v(RD,4)}"
                for n in range(4):
                    if nafter is not None:
                        b.vm = []
                        b(f"s_waitcnt vmcnt({3 - n + nafter})")
                    b(mm(n))
                    if b is self.b and n in (0, 3): self.stamp(50 + n)
                    b(f"v_xor_b32 v66, v64, v{R}" if n == 0 else f"v_bitop3_b32 v66, v66, v64, v{R+4*n} bitop3:0xf6")
                b(f"v_and_b32 v66, 1, v66")
                b(f"v_cmp_ne_u32 vcc, 0, v66")
            if two:
                b.nop(P.get("rgap", 80) // 4)
                for n in range(4): b(rload(n, QA))
            check(b, RL, None)
            b(f"s_cbranch_vccnz L_redslow{sfx}")
            b.label(f"L_redgo{sfx}")
            def slow(sb):
                sb.label(f"L_redslow{sfx}")
                for n in range(4): sb(rload(n))
                sb(f"s_add_u32 s60, s60, 1\ns_add_u32 s{S_TO}, s{S_TO}, 1\ns_cmp_gt_u32 s{S_TO}, {TIMEOUT}\ns_cbranch_scc1 L_redgo{sfx}")
                if two:
                    check(sb, QA, 4)
                    sb(f"s_cbranch_vccz L_redgo{sfx}")
                    for n in range(4): sb(rload(n, QA))
                    sb("s_add_u32 s60, s60, 1\ns_nop 3")
                check(sb, RL, 4*two)
                sb(f"s_cbranch_vccnz L_redslow{sfx}\ns_branch L_redgo{sfx}")
            self.slow.append(slow)
            b.vm = []
            b(f"v_permlane32_swap_b32 v{RD}, v{RD+2}\nv_permlane32_swap_b32 v{RD+1}, v{RD+3}")
            b(f"v_add_f32 v{RD}, v{RD}, v{RD+2}\nv_add_f32 v{RD+1}, v{RD+1}, v{RD+3}")
            b(f"v_cvt_pk_bf16_f32 v{RD}, v{RD}, v{RD+1}")
            b(f"buffer_store_dword v{RD}, v{RS}, s[{S_WS}:{S_WS+3}], s{S_T0} offen {self.st}")
            b(f"buffer_store_dword v70, v{RS}, s[{S_WS}:{S_WS+3}], s{S_T1} offen {self.st}")
            b.label(f"L_redend{sfx}")
        self.stamp(7)
    def emit(self):
        b = self.b
        b.vm, b.lg, b.hist = [], [], []
        b.raw(".p2align 6")
        b.label(f"L_loop{self.sfx}")
        self.head()
        n0 = len(b.out)
        self.body()
        if self.P.get("at") is not None:
            idx = [k for k in range(n0, len(b.out)) if ("mfma" in b.out[k] or "s_barrier" in b.out[k] or "v_exp" in b.out[k])]
            k = idx[self.P["at"]]
            self.P["at_text"] = b.out[k]
            b.out.insert(k, "    s_memtime s[66:67]")
        if self.P.get("stamp"):
            b("s_waitcnt lgkmcnt(0)")
            if self.P.get("trace"):
                b.raw("    s_memrealtime s[80:81]\n    s_memtime s[78:79]\n    s_waitcnt lgkmcnt(0)")
                for i, r in enumerate([80, 78, 64, 66, 68, 70, 72, 74]): b(f"v_mov_b32 v{T1+i}, s{r}")
                b(f"s_lshl_b32 s{S_T2}, s{S_HEAD}, 2\ns_add_u32 s{S_T2}, s{S_T2}, {self.w}\ns_lshl_b32 s{S_T2}, s{S_T2}, 6\ns_add_u32 s{S_T2}, s{S_T2}, s{S_STEP}\ns_lshl_b32 s{S_T2}, s{S_T2}, 5\ns_add_u32 s{S_T2}, s{S_T2}, 8192")
                b(f"v_mov_b32 v{KX}, s{S_T2}\ns_mov_b64 exec, 1")
                b(f"global_store_dwordx4 v{KX}, {v(T1,4)}, s[4:5]\nglobal_store_dwordx4 v{KX}, {v(T2,4)}, s[4:5] offset:16\ns_mov_b64 exec, -1\ns_nop 1")
            elif self.P.get("rt"):
                b(f"s_cmp_eq_u32 s{S_STEP}, {self.P['rt']}")
                for i in range(0, 8): b(f"s_cselect_b32 s{84+i}, s{64+2*i}, s{84+i}")
            else:
              for i in range(1, 9):
                if i >= len(self.P.get("stamps", range(9))): break
                b(f"s_sub_u32 s{S_T2}, s{64+2*i}, s64\ns_cmp_gt_u32 s{S_STEP}, 3\ns_cselect_b32 s{S_T2}, s{S_T2}, 0\ns_add_u32 s{83+i}, s{83+i}, s{S_T2}")
        b(f"s_branch L_loop{self.sfx}")
        for f in self.slow:
            b.vm, b.lg, b.hist = [], [], []
            f(b)

def team_static(b, ptr):
    C.srd(b, S_WS, ptr['WS'], C.W.ARCH)
    b(f"""
    s_lshl_b32 s{S_T0}, s{S_WAVE}, 14
    s_lshl_b32 s{S_T1}, s{S_HEAD}, 9
    s_add_u32 s{S_PST}, s{S_T0}, s{S_T1}
    s_lshl_b32 s{S_T0}, s{S_WAVE}, 5
    s_add_u32 s{S_T0}, s{S_T0}, s{S_HEAD}
    s_lshr_b32 s{S_RLD}, s{S_T0}, 2
    s_lshl_b32 s{S_RLD}, s{S_RLD}, 14
    s_and_b32 s{S_T1}, s{S_T0}, 3
    s_lshl_b32 s{S_T1}, s{S_T1}, 7
    s_add_u32 s{S_RLD}, s{S_RLD}, s{S_T1}
    s_lshr_b32 s{S_RST}, s{S_T0}, 4
    s_lshl_b32 s{S_RST}, s{S_RST}, 11
    s_and_b32 s{S_T1}, s{S_T0}, 15
    s_lshl_b32 s{S_T1}, s{S_T1}, 6
    s_add_u32 s{S_RST}, s{S_RST}, s{S_T1}
    s_mov_b32 s{S_C}, {SCALE_HEX}
    s_mul_i32 s{S_H288}, s{S_HEAD}, 288
    s_mov_b32 s{S_LAY}, 0
    s_mov_b32 s{S_BARN}, 0
    s_lshl_b32 s{S_T0}, s{S_HEAD}, {2 + C.PSH}
    s_add_u32 s{S_T0}, s{S_T0}, {C.W.PROG + C.P_TEAM}
    s_add_u32 s{S_PT}, s{ptr['WS']}, s{S_T0}
    s_addc_u32 s{S_PT+1}, s{ptr['WS']+1}, 0
    s_mov_b32 s{S_PT+2}, 4
    s_mov_b32 s{S_PT+3}, 0x20000
    """)

def team_arrive(b, ptr):
    L = C.uid("ta")
    b(f"""
    s_waitcnt vmcnt(0)
    s_barrier
    s_add_u32 s{S_BARN}, s{S_BARN}, 32
    s_cmp_lg_u32 s{S_WAVE}, 0
    s_cbranch_scc1 {L}
    v_mov_b32 v26, {C.D_TB}
    v_mov_b32 v27, 1
    s_mov_b64 exec, 1
    global_atomic_add v26, v27, s[{ptr['DBG']}:{ptr['DBG']+1}]
    s_mov_b64 exec, -1
    s_waitcnt vmcnt(0)
    {L}:
    """)
def team_wait(b, ptr):
    L = C.uid("tw")
    b(f"v_mov_b32 v26, {C.D_TB}")
    b.label(L)
    b(f"""
    global_load_dword v27, v26, s[{ptr['DBG']}:{ptr['DBG']+1}] sc1
    s_add_u32 s{S_TO}, s{S_TO}, 1
    s_cmp_gt_u32 s{S_TO}, {TIMEOUT}
    s_waitcnt vmcnt(0)
    s_cbranch_scc1 {L}_d
    v_cmp_gt_u32 vcc, s{S_BARN}, v27
    s_cbranch_vccnz {L}
    {L}_d:
    """)

def team_layer_init(b, ptr, tid, kv_in_ws=True):
    st = "sc1"
    if kv_in_ws:
        b(f"s_mul_i32 s{S_T0}, s{S_LAY}, {C.W.KV_L}\ns_add_u32 s{S_T0}, s{S_T0}, {C.W.KV}")
        C.srd(b, S_KV, ptr['WS'], KV_BYTES, f"s{S_T0}")
    else:
        C.srd(b, S_KV, ptr['KV'], KV_BYTES)
    b(f"s_mul_i32 s{S_T0}, s{S_LAY}, {64*9216}\ns_add_u32 s{S_T0}, s{S_T0}, s{S_H288}\ns_add_u32 s{S_T0}, s{S_T0}, {C.W.ARCH}")
    C.srd(b, S_AR, ptr['WS'], 288, f"s{S_T0}")
    b(f"""
    s_mov_b32 s{S_MNEXT}, {Lay.MEMX}
    s_mov_b32 s{S_MCUR}, {Lay.MEMX}
    s_lshl_b32 s{S_KVO}, s{S_HEAD}, 14
    s_lshl_b32 s{S_T0}, s{S_WAVE}, 12
    s_add_u32 s{S_KVO}, s{S_KVO}, s{S_T0}
    s_sub_u32 s{S_KVO}, s{S_KVO}, {32*16384}
    s_mov_b32 s{S_STEP}, 0
    s_mov_b32 s{S_TAG}, 0
    s_lshl_b32 s{S_NEED}, s{S_LAY}, 6
    s_add_u32 s{S_NEED}, s{S_NEED}, 1
    s_lshl_b32 s{S_PG}, s{S_HEAD}, {2 + C.PSH}
    s_add_u32 s{S_PG}, s{S_PG}, {C.W.PROG + C.P_HWP}
    v_and_b32 v25, 63, v{tid}
    v_lshlrev_b32 v25, 3, v25
    v_mov_b32 v28, 0
    v_mov_b32 v29, 0
    s_mov_b32 s{S_PS2}, s{S_PST}
    """)
    for n in range(5):
        b(f"buffer_store_dwordx2 v[28:29], v25, s[{S_WS}:{S_WS+3}], s{S_PS2} offen {st}\ns_add_u32 s{S_PS2}, s{S_PS2}, 65536")
    b(f"""
    ; clear own gate flags
    v_lshlrev_b32 v26, 7, v{tid}
    s_lshl_b32 s{S_T0}, s{S_HEAD}, 2
    s_add_u32 s{S_T0}, s{S_T0}, {Lay.FLAG}
    v_mov_b32 v32, 0x40000000
    v_cmp_gt_u32 vcc, 2, v{tid}
    v_cndmask_b32 v26, v32, v26, vcc
    buffer_store_dword v28, v26, s[{S_WS}:{S_WS+3}], s{S_T0} offen {st}
    s_mul_i32 s{S_T0}, s{S_HEAD}, 18
    v_add_u32 v26, s{S_T0}, v{tid}
    v_bfe_u32 v27, v26, 1, 3
    v_mul_u32_u24 v27, 1152, v27
    v_lshrrev_b32 v32, 4, v26
    v_lshl_add_u32 v27, v32, 5, v27
    v_and_b32 v32, 1, v26
    v_lshl_add_u32 v27, v32, 4, v27
    v_lshlrev_b32 v26, 4, v26
    v_mov_b32 v32, 0x40000000
    v_cmp_gt_u32 vcc, 18, v{tid}
    v_cndmask_b32 v26, v32, v26, vcc
    v_cndmask_b32 v27, v32, v27, vcc
    s_mov_b32 s{S_W}, s{ptr['MEM0']}
    s_mov_b32 s{S_W+1}, s{ptr['MEM0']+1}
    s_mov_b32 s{S_W+2}, 9216
    s_mov_b32 s{S_W+3}, 0x20000
    buffer_load_dwordx4 v[36:39], v27, s[{S_W}:{S_W+3}], 0 offen
    v_mov_b64 v[32:33], -1
    v_mov_b64 v[34:35], -1
    s_mov_b32 s{S_T0}, {Lay.MEMX + MEMX_SLOT}
    s_mov_b32 s{S_T1}, {Lay.MEMX + 2*MEMX_SLOT}
    buffer_store_dwordx4 v[32:35], v26, s[{S_WS}:{S_WS+3}], s{S_T0} offen {st}
    buffer_store_dwordx4 v[32:35], v26, s[{S_WS}:{S_WS+3}], s{S_T1} offen {st}
    s_mov_b32 s{S_T0}, 0x05040100
    s_mov_b32 s{S_T1}, 0x07060302
    v_perm_b32 v40, v37, v36, s{S_T0}
    v_perm_b32 v41, v37, v36, s{S_T1}
    v_perm_b32 v42, v39, v38, s{S_T0}
    v_perm_b32 v43, v39, v38, s{S_T1}
    buffer_store_dwordx4 v[40:43], v26, s[{S_WS}:{S_WS+3}], s{S_MNEXT} offen {st}
    """)
    team_arrive(b, ptr)

def team_consts(b, ptr, bound=0x42200000):
    consts(b)
    L = C.uid("tc")
    b(f"""
    v_lshrrev_b32 v26, 7, v{A1}
    v_lshlrev_b32 v26, 11, v26
    v_and_b32 v27, 127, v{A1}
    v_add_u32 v{TMP}, v26, v27
    s_cmp_eq_u32 s{S_WAVE}, 3
    s_cbranch_scc0 {L}
    v_add_u32 v{TMP}, s{S_H288}, v{A1}
    {L}:
    s_mov_b32 s{S_GF}, {Lay.FLAG}
    s_mov_b32 s{S_BND}, {bound}
    s_mov_b32 s{S_ONE}, 0x3f803f80
    s_mov_b32 s{S_QM}, 0x55555555
    s_mov_b32 s{S_QM+1}, 0x55555555
    s_mov_b32 s{S_XM}, 0xcccccccc
    s_mov_b32 s{S_XM+1}, 0xcccccccc
    """)

def team_go(b, ptr, names):
    b(f"s_lshl_b32 s{S_T0}, s{S_HEAD}, 2\ns_add_u32 s{S_T0}, s{S_T0}, {Lay.FLAG}")
    C.srd(b, S_FL, ptr['WS'], 4, f"s{S_T0}")
    C.srd(b, S_FB, S_FL, 4, 128)
    b(f"s_mul_i32 s{S_T0}, s{S_WAVE}, {PIECE}\ns_add_u32 s{S_T0}, s{S_T0}, {L_W}\nv_add_u32 v{A2}, s{S_T0}, v{A1}")
    for op in range(2):
        for hf in range(2):
            b(f"ds_read_b128 {v(8+8*op+4*hf,4)}, v{A2} offset:{op*2048 + hf*1024}")
    team_wait(b, ptr)
    L = C.uid("tg")
    if len(names) > 1:
        b(f"""
        v_mov_b32 v26, {C.D_SLOW}
        global_load_dword v27, v26, s[{ptr['DBG']}:{ptr['DBG']+1}] sc1
        s_waitcnt vmcnt(0)
        v_cmp_ne_u32 vcc, 0, v27
        """)
    b("s_waitcnt vmcnt(0) lgkmcnt(0)")
    if len(names) > 1: b(f"s_cbranch_vccnz {L}")
    for k, name in enumerate(names):
        if k: b.label(L)
        for w in range(1, 4):
            b(f"s_cmp_eq_u32 s{S_WAVE}, {w}\ns_cbranch_scc1 L_loop_{name}_w{w}")
        b(f"v_mov_b32 v{A2}, 0\ns_branch L_loop_{name}_w0")

DEFAULTS = dict(nstep=63, stamp=0, d1=[0,60,0], d2=[120], z1=11, two=[0,0,0], npoll=6, pgap=10, gp=[9,12,15], gf=4, noprobe=1)

def emit(b, nlayers, **kw):
    ptr = C.PT
    b.reset()
    b.label("L_team")
    for r in (60, 61, 62, 63): b(f"s_mov_b32 s{r}, 0")
    team_static(b, ptr)
    team_layer_init(b, ptr, 0)
    prologue_weights(b, ptr)
    team_consts(b, ptr)
    C.wait_init(b, 26, 27, False)
    b.label("L_team_go")
    team_go(b, ptr, ["f", "s"])
    for name, st in (("f", ""), ("s", "sc1")):
        P = dict(DEFAULTS, name=name, exit="L_team_exit", mega=1); P.update(kw)
        for w in range(4): Loop(b, w, st, P).emit()
    b.reset()
    b.label("L_team_exit")
    if kw.get("light"):
        b(f"""
        s_waitcnt vmcnt(0) lgkmcnt(0)
        s_memrealtime s[100:101]
        s_memtime s[4:5]
        s_waitcnt lgkmcnt(0)
        s_sub_u32 s100, s100, s92
        s_sub_u32 s4, s4, s94
        v_mov_b32 v24, s100
        v_mov_b32 v25, s4
        v_mov_b32 v26, s60
        v_mov_b32 v27, s61
        v_mov_b32 v28, s62
        v_mov_b32 v29, s63
        s_lshl_b32 s4, s{S_LAY}, 2
        s_add_u32 s4, s4, s{S_WAVE}
        s_lshl_b32 s4, s4, 5
        s_add_u32 s5, s{S_HEAD}, 224
        s_lshl_b32 s5, s5, 13
        s_add_u32 s4, s4, s5
        s_add_u32 s4, s4, 4096
        buffer_store_dwordx4 v[24:27], off, s[96:99], s4
        buffer_store_dwordx2 v[28:29], off, s[96:99], s4 offset:16
        """)
    b(f"""
    s_waitcnt vmcnt(0) lgkmcnt(0)
    s_cmp_lg_u32 s{S_WAVE}, 3
    s_cbranch_scc1 L_team_x2
    v_mov_b32 v26, s{S_NEED}
    buffer_store_dword v26, v{A1}, s[{S_PT}:{S_PT+3}], 0 offen sc1
    L_team_x2:
    s_add_u32 s{S_LAY}, s{S_LAY}, 1
    s_cmp_ge_u32 s{S_LAY}, {nlayers}
    s_cbranch_scc1 L_end
    """)
    team_arrive(b, ptr); team_wait(b, ptr)
    b(f"v_lshrrev_b32 v24, 4, v{A1}\ns_lshl_b32 s{S_T0}, s{S_WAVE}, 6\nv_add_u32 v24, s{S_T0}, v24")
    team_layer_init(b, ptr, 24)
    b("s_branch L_team_go")
```

```python
import sys, os
sys.path.insert(0, os.path.dirname(os.path.abspath(__file__)))
from asmb import Asm
from common import *
import team, hw, ow, qw
NAME = "interleave_layers__memory_aug_recurrent_mem_tr__softmax_full_mha__prompt"

def body(nlayers=2, roles=("hw", "ow", "qw", "bw"), force_slow=False, team_kw={}, bw_kw={}, tr=False):
    TRACE_ON[0] = tr
    b = Asm()
    b(f"""
    s_cmp_ge_u32 s2, 256
    s_cbranch_scc1 L_end0
    s_load_dwordx16 s[64:79], s[0:1], 0
    s_load_dwordx8 s[80:87], s[0:1], 64
    s_load_dwordx2 s[88:89], s[0:1], 96
    s_getreg_b32 s4, hwreg(HW_REG_XCC_ID)
    s_and_b32 s4, s4, 15
    s_getreg_b32 s5, hwreg(HW_REG_HW_ID, 4, 2)
    v_lshrrev_b32 v1, 6, v0
    v_readfirstlane_b32 s{S_WAVE}, v1
    v_lshlrev_b32 v1, 2, v1
    s_lshl_b32 s6, 1, s5
    v_mov_b32 v2, s6
    ds_write_b32 v1, v2 offset:16
    s_mov_b32 s{S_TO}, 0
    s_mov_b32 s{S_ONE}, 0x3f803f80
    s_waitcnt lgkmcnt(0)
    """)
    srd(b, S_WS, PT['WS'], W.END)
    D = PT['DBG']
    b(f"""
    s_cmp_lg_u32 s{S_WAVE}, 0
    s_cbranch_scc1 L_e_bar
    s_mov_b64 exec, 1
    v_mov_b64 v[2:3], 0
    s_lshl_b32 s6, s2, {3 + PSH}
    s_add_u32 s6, s6, {W.PROG}
    buffer_store_dword v2, off, s[{S_WS}:{S_WS+3}], s6 sc1
    buffer_store_dword v2, off, s[{S_WS}:{S_WS+3}], s6 offset:{4 << PSH} sc1
    v_mov_b32 v4, 1
    s_waitcnt vmcnt(0)
    s_cmp_lg_u32 s4, {15 if force_slow else 0}
    s_cbranch_scc1 L_e_worker
    global_atomic_add v5, v2, v4, s[{D}:{D+1}] offset:{D_T0} sc0
    s_waitcnt vmcnt(0)
    v_readfirstlane_b32 s6, v5
    s_add_u32 s7, s6, 224
    s_cmp_lt_u32 s6, 32
    s_cbranch_scc1 L_e_got
    L_e_worker:
    global_atomic_add v5, v2, v4, s[{D}:{D+1}] offset:{D_TW} sc0
    s_waitcnt vmcnt(0)
    v_readfirstlane_b32 s7, v5
    s_cmp_lt_u32 s7, 224
    s_cbranch_scc1 L_e_got
    s_sub_u32 s7, {255 + 224}, s7
    global_atomic_add v2, v4, s[{D}:{D+1}] offset:{D_SLOW}
    L_e_got:
    s_waitcnt vmcnt(0)
    v_mov_b32 v5, s7
    ds_write_b32 v2, v5
    s_waitcnt lgkmcnt(0)
    s_mov_b64 exec, -1
    L_e_bar:
    s_barrier
    v_mov_b32 v2, 0
    ds_read_b32 v3, v2
    ds_read_b128 v[4:7], v2 offset:16
    s_waitcnt lgkmcnt(0)
    v_or3_b32 v4, v4, v5, v6
    v_or_b32 v4, v4, v7
    v_readfirstlane_b32 s{S_ID}, v3
    v_readfirstlane_b32 s6, v4
    s_barrier
    s_cmp_eq_u32 s6, 15
    s_cselect_b32 s{S_WAVE}, s5, s{S_WAVE}
    s_lshl_b32 s6, s{S_WAVE}, 6
    v_and_b32 v0, 63, v0
    v_or_b32 v0, s6, v0
    """)
    trace_init(b, S_ID); trace(b, 8, 2)
    for nm, n in (("hw", N_HW), ("ow", N_OW), ("qw", N_QW), ("bw", N_BW)):
        b(f"s_cmp_lt_u32 s{S_ID}, {n}\ns_cbranch_scc1 {'L_j_' + nm if nm in roles else 'L_end0'}\ns_sub_u32 s{S_ID}, s{S_ID}, {n}")
    b(f"s_and_b32 s{S_ID}, s{S_ID}, 31\ns_branch L_team")
    b.label("L_end0")
    b("s_endpgm")
    for nm in roles: b(f"L_j_{nm}:\ns_branch L_{nm}")
    team.emit(b, nlayers, **team_kw)
    if "hw" in roles: hw.emit(b, nlayers)
    if "ow" in roles: ow.emit(b, nlayers)
    if "qw" in roles: qw.emit(b, nlayers)
    if "bw" in roles:
        import bw
        bw.emit(b, nlayers, **bw_kw)
    b.reset()
    b.label("L_end")
    prof_dump(b)
    b("s_waitcnt vmcnt(0)")
    return b.finish()

def full(**kw):
    ref = open(os.path.join(os.path.dirname(os.path.abspath(__file__)), "..", "cdna_kernels", NAME + ".s.ref")).read()
    head = [l for l in ref.split("\n") if l.startswith(";") and "@launch" not in l and "Override launch" not in l and "grid=ceil" not in l]
    out = "\n".join(head) + f"\n; @launch grid=(256,1,1) block=(256,1,1) lds={LDS_BYTES}\n"
    out += f""".amdgcn_target "amdgcn-amd-amdhsa--gfx950"
.text
.globl {NAME}_kernel
.p2align 8
.type {NAME}_kernel,@function
{NAME}_kernel:
"""
    out += body(**kw)
    out += f"""s_endpgm
.section .rodata,"a"
.p2align 6
.amdhsa_kernel {NAME}_kernel
  .amdhsa_next_free_vgpr 512
  .amdhsa_next_free_sgpr 102
  .amdhsa_accum_offset 256
  .amdhsa_group_segment_fixed_size 0
  .amdhsa_kernarg_size 104
  .amdhsa_user_sgpr_count 2
  .amdhsa_user_sgpr_kernarg_segment_ptr 1
  .amdhsa_system_sgpr_workgroup_id_x 1
.end_amdhsa_kernel
"""
    return out
if __name__ == "__main__":
    open(os.path.join(os.path.dirname(os.path.abspath(__file__)), "..", "cdna_kernels", NAME + ".s"), "w").write(full())
```

```python
import re

REG_RE = re.compile(r'\b([vas])(\d+)\b|\b([vas])\[(\d+):(\d+)\]')
TRANS = ("v_exp_", "v_log_", "v_rcp_", "v_rsq_", "v_sqrt_", "v_sin_", "v_cos_")

def regs_of(op):
    out = []
    for m in REG_RE.finditer(op):
        if m.group(1):
            out.append((m.group(1), int(m.group(2))))
        else:
            out += [(m.group(3), i) for i in range(int(m.group(4)), int(m.group(5)) + 1)]
    if re.search(r'\bvcc\b', op): out += [('s', 106), ('s', 107)]
    if re.search(r'\bvcc_lo\b', op): out += [('s', 106)]
    if re.search(r'\bvcc_hi\b', op): out += [('s', 107)]
    if re.search(r'\bexec\b', op): out += [('s', 126), ('s', 127)]
    if re.search(r'\bm0\b', op): out += [('s', 124)]
    return out

def split_ops(rest):
    ops, depth, cur = [], 0, ''
    for ch in rest:
        if ch in '[(': depth += 1
        if ch in '])': depth -= 1
        if ch == ',' and depth == 0:
            ops.append(cur.strip()); cur = ''
        else:
            cur += ch
    if cur.strip(): ops.append(cur.strip())
    return ops

class Ins:
    __slots__ = ("text", "mn", "kind", "rd", "wr", "srcc", "srcab", "passes", "dpp", "lds_dma", "wide_store", "data")
    def __init__(self, text):
        self.text = text
        t = text.split(';')[0].strip()
        parts = t.split(None, 1)
        mn = self.mn = parts[0]
        ops = split_ops(parts[1]) if len(parts) > 1 else []
        self.rd, self.wr, self.srcc, self.srcab, self.data = set(), set(), set(), set(), set()
        self.passes = 0; self.dpp = False; self.lds_dma = False; self.wide_store = False
        R = lambda i: set(regs_of(ops[i])) if i < len(ops) else set()
        allr = lambda a=0: set(r for o in ops[a:] for r in regs_of(o))
        if mn.startswith("v_mfma") or mn.startswith("v_smfmac"):
            self.kind = "mfma"
            self.wr = R(0); self.srcab = R(1) | R(2)
            if mn.startswith("v_smfmac"):
                self.srcc = R(0); self.srcab |= R(3)
            else:
                self.srcc = R(3)
            self.rd = self.srcab | self.srcc
            self.passes = 8 if "32x32" in mn else 4
            assert "f64" not in mn and not mn.endswith("_f32") and "f8f6f4" not in mn and "4x4" not in mn, mn
        elif mn.startswith("v_"):
            self.kind = "valu"
            self.dpp = ("dpp" in mn) or ("quad_perm" in t) or ("row_" in t)
            if mn.startswith("v_nop"):
                pass
            elif mn.startswith("v_permlane") and "swap" in mn:
                self.wr = R(0) | R(1); self.rd = R(0) | R(1)
            elif mn.startswith("v_swap"):
                self.wr = R(0) | R(1); self.rd = R(0) | R(1)
            elif mn.startswith("v_cmpx"):
                self.wr = R(0) | {('s', 126), ('s', 127)}; self.rd = allr(1)
            elif re.match(r'v_(add|sub|subrev|addc|subb|subbrev)_co_', mn) or mn.startswith("v_div_scale") or mn.startswith("v_mad_u64"):
                self.wr = R(0) | R(1); self.rd = allr(2)
            else:
                self.wr = R(0); self.rd = allr(1)
                if mn.startswith("v_dot"): self.srcab = R(1) | R(2)
                if mn.startswith(("v_fmac", "v_pk_fmac", "v_dot2c", "v_writelane")) or self.dpp or ("op_sel" in t and not mn.startswith("v_pk")) or "sdwa" in mn:
                    self.rd |= R(0)
        elif mn.startswith("ds_"):
            self.kind = "ds"
            if mn.startswith(("ds_read", "ds_bpermute", "ds_permute", "ds_swizzle")) or "_rtn" in mn:
                self.wr = R(0); self.rd = allr(1)
            else:
                self.rd = allr(0)
        elif mn.startswith(("buffer_", "global_")):
            self.kind = "vmem"
            lds = bool(re.search(r'\blds\b', t)) or "_lds_" in mn
            if mn.startswith(("buffer_wbl2", "buffer_inv")):
                pass
            elif lds:
                self.lds_dma = True; self.rd = allr(0) | {('s', 124)}
            elif "_load" in mn:
                self.wr = R(0); self.rd = allr(1)
            elif "atomic" in mn:
                if re.search(r'\bsc0\b', t):
                    self.wr = R(0); self.rd = allr(0) if mn.startswith("buffer") else allr(1)
                else:
                    self.rd = allr(0)
            else:
                self.rd = allr(0)
                self.data = R(0) if mn.startswith("buffer") else R(1)
                self.wide_store = mn.endswith(("x3", "x4"))
        elif mn.startswith(("s_load", "s_buffer_load", "s_memtime", "s_memrealtime", "s_atomic")):
            self.kind = "smem"
            self.wr = R(0); self.rd = allr(1)
        elif mn.startswith("s_"):
            self.kind = "salu"
            if mn.startswith(("s_cmp", "s_cbranch", "s_branch", "s_nop", "s_waitcnt", "s_barrier", "s_endpgm", "s_setprio", "s_sleep", "s_bitcmp", "s_setpc")):
                self.rd = allr(0) if not mn.startswith(("s_cbranch", "s_branch", "s_waitcnt")) else set()
                if "vcc" in mn: self.rd = {('s', 106), ('s', 107)}
            elif "saveexec" in mn:
                self.wr = R(0) | {('s', 126), ('s', 127)}; self.rd = allr(1)
            else:
                self.wr = R(0); self.rd = allr(1)
        else:
            raise ValueError("unknown instruction: " + text)

def isv(r): return r[0] in 'va'

def need(p, c):
    n = 0
    if p.kind == "valu":
        vw = {r for r in p.wr if isv(r)}; sw = {r for r in p.wr if r[0] == 's'}
        if c.kind == "mfma" and vw & c.rd: n = max(n, 2)
        if c.kind == "mfma" and ('s', 126) in sw: n = max(n, 4)
        if c.kind == "valu":
            if c.dpp and vw & c.rd: n = max(n, 2)
            if c.dpp and ('s', 126) in sw: n = max(n, 5)
            if c.mn.startswith("v_permlane") and vw & c.rd: n = max(n, 2)
            if c.mn.startswith("v_permlane") and ('s', 126) in sw: n = max(n, 4)
            if c.mn.startswith(("v_readlane", "v_readfirstlane")) and vw & c.rd: n = max(n, 1)
            if c.mn.startswith(("v_readlane", "v_readfirstlane", "v_writelane")) and (sw & c.rd or ('s', 126) in sw): n = max(n, 4)
            if sw & c.rd: n = max(n, 2)
            if c.mn.startswith("v_div_fmas") and ('s', 106) in sw: n = max(n, 4)
            if p.mn.startswith(TRANS) and vw & c.rd: n = max(n, 1)
            if ("op_sel" in p.text or "sdwa" in p.mn) and not p.mn.startswith("v_pk") and vw & (c.rd | c.wr): n = max(n, 1)
        if p.mn.startswith("v_dot") and vw & (c.rd | c.wr):
            if not (c.mn == p.mn and not (vw & c.srcab)): n = max(n, 3)
        if c.kind == "vmem" and sw & c.rd: n = max(n, 5)
        if c.kind in ("salu", "smem") and sw & c.rd: n = max(n, 1)
    elif p.kind == "mfma":
        big = {4: 8, 8: 12}[p.passes]
        if c.kind == "mfma":
            if p.wr & c.srcab: n = max(n, big)
            if p.wr & c.srcc:
                if not (p.wr == c.srcc and p.mn == c.mn): n = max(n, {4: 6, 8: 10}[p.passes])
            elif p.wr & c.wr: n = max(n, {4: 6, 8: 10}[p.passes])
        elif c.kind in ("valu", "ds", "vmem"):
            if p.wr & (c.rd | c.wr): n = max(n, big)
            if c.kind == "valu" and p.srcc & c.wr: n = max(n, {4: 3, 8: 7}[p.passes])
    elif p.kind == "vmem":
        if p.wide_store and p.data & c.wr: n = max(n, 2)
    elif p.kind == "salu":
        if ('s', 124) in p.wr and (c.lds_dma or "addtid" in c.mn): n = max(n, 1)
    return n

def states(i):
    if i.mn == "s_nop": return int(i.text.split()[1], 0) + 1
    return 1

class Asm:
    def __init__(self, auto_wait=True, timed=True):
        self.timed = timed
        self.out = []
        self.hist = []
        self.vm = []
        self.lg = []
        self.auto_wait = auto_wait
        self.nops = 0
    def raw(self, line):
        self.out.append(line)
    def label(self, name):
        self.out.append(name + ":")
    def comment(self, s):
        self.out.append("    ; " + s)
    def _emit(self, ins):
        self.out.append("    " + ins.text)
        self.hist.append(ins)
        if len(self.hist) > 24: self.hist.pop(0)
    def _apply_wait(self, text):
        m = re.search(r'vmcnt\((\d+)\)', text)
        if m:
            n = int(m.group(1)); self.vm = self.vm[len(self.vm) - n:] if n < len(self.vm) and n > 0 else ([] if n == 0 else self.vm)
        m = re.search(r'lgkmcnt\((\d+)\)', text)
        if m:
            n = int(m.group(1))
            if n == 0: self.lg = []
            elif not any(x.kind == "smem" for x in self.lg) and n < len(self.lg): self.lg = self.lg[len(self.lg) - n:]
    def __call__(self, text):
        for line in text.strip().split("\n"):
            line = line.strip()
            if not line or line.startswith(";"): continue
            if line.endswith(":"):
                self.label(line[:-1]); continue
            if line.startswith("."):
                self.raw(line); continue
            self.ins(line)
    def ins(self, line):
        c = Ins(line)
        if c.mn == "s_waitcnt":
            self._apply_wait(line); self._emit(c); return
        nowait = 'nowait' in line
        if self.auto_wait and not nowait:
            touched = c.rd | c.wr
            w = []
            k = max([i for i, p in enumerate(self.vm) if p.wr & touched], default=-1)
            if k >= 0:
                n = len(self.vm) - 1 - k
                assert n <= 63
                w.append("vmcnt(%d)" % n)
            k = max([i for i, p in enumerate(self.lg) if p.wr & touched], default=-1)
            if k >= 0:
                n = len(self.lg) - 1 - k
                if any(x.kind == "smem" for x in self.lg): n = 0
                n = min(n, 15)
                w.append("lgkmcnt(%d)" % n)
            if w:
                t = "s_waitcnt " + " ".join(w)
                self._apply_wait(t); self._emit(Ins(t))
        pad = 0
        H = self.hist
        for k in range(len(H)):
            nd = need(H[k], c)
            if nd == 0: continue
            t, lastm = 0, None
            if H[k].kind == "mfma": lastm = (0, H[k].passes)
            prev = H[k]
            for x in H[k+1:] + [c]:
                t += states(prev) + (1 if self.timed and prev.mn.startswith(TRANS) and prev is not H[k] else 0); t_plain = t
                if x.kind == "mfma" and self.timed:
                    if lastm is not None: t = max(t, lastm[0] + lastm[1])
                    lastm = (t, x.passes)
                prev = x
            if t < nd + 1: pad = max(pad, nd + 1 - t_plain)
        while pad > 0:
            n = min(pad, 16)
            self._emit(Ins("s_nop %d" % (n - 1))); self.nops += n; pad -= n
        self._emit(c)
        if c.kind == "vmem": self.vm.append(c)
        if c.kind in ("ds", "smem"): self.lg.append(c)
    def nop(self, n):
        while n > 0:
            k = min(n, 16); self._emit(Ins("s_nop %d" % (k - 1))); n -= k
    def wait_vm_for(self, regs_text):
        t = set(regs_of(regs_text))
        k = max([i for i, p in enumerate(self.vm) if p.wr & t], default=-1)
        if k >= 0: self.ins("s_waitcnt vmcnt(%d)" % (len(self.vm) - 1 - k))
    def wait_lg_for(self, regs_text):
        t = set(regs_of(regs_text))
        k = max([i for i, p in enumerate(self.lg) if p.wr & t], default=-1)
        if k >= 0: self.ins("s_waitcnt lgkmcnt(%d)" % min(15, len(self.lg) - 1 - k))
    def lg_after(self, prefix):
        k = max([i for i, p in enumerate(self.lg) if p.mn.startswith(prefix)], default=-1)
        return min(15, len(self.lg) - 1 - k)
    def join(self):
        self.ins("s_waitcnt vmcnt(0) lgkmcnt(0)")
        self.nop(12)
    def reset(self):
        self.vm, self.lg, self.hist = [], [], []
    def snapshot(self):
        return (list(self.hist), list(self.vm), list(self.lg))
    def restore(self, s):
        self.hist, self.vm, self.lg = list(s[0]), list(s[1]), list(s[2])
    def finish(self):
        return "\n".join(self.out) + "\n"
```

```python
from common import *
import ow
S_H, S_PAR, S_PA, S_PW, S_NU, S_NN, S_OWN, S_QO, S_SG, S_CG, S_RET, S_LO, S_HI, S_NX, S_FO = 40, 41, 42, 43, 44, 45, 46, 47, 48, 49, 50, 52, 53, 54, 55
S_DE, S_FX, S_MRG, S_U0 = 22, 100, 101, 3
S_OS, S_OD, S_ON, S_AN, S_CNT, S_QQ, S_RA, S_RET2, S_PD, S_PE = 64, 65, 66, 67, 68, 69, 70, 72, 74, 75
A1, K2B, VB, VS, KA, K2A, VA, K1B = 0, 1, 2, 3, 4, 5, 6, 7
SS, SC, TN, QN1, QN2 = (8, 24), 40, 64, 80, 84
K1, K2, VFA, VFB, K1N, K2N = 56, 60, 108, 112, 116, 62
T, OBX, IX, EL, EG, DM, DX, VS8, PF = 86, 92, 93, 94, 98, 102, 103, 104, 105
L_ONE = 147456
L_EX = (148480, 151552, 157696)
L_XT, L_ET = (0, 32768), 20480
def wfrag(kk, i):
    r = 4*(kk*3 + i)
    return a(176 + r, 4) if r < 80 else v(120 + r - 80, 4)
S1 = lambda d, q, k=K1: f"v_mfma_f32_32x32x16_bf16 {v(d,16)}, {v(k,4)}, {q}, 0"
S2 = lambda d, q, k=K2: f"v_mfma_f32_32x32x8_bf16 {v(d,16)}, {v(k,2)}, {q}, {v(d,16)}"
PV = lambda o, h, p: f"v_smfmac_f32_32x32x32_bf16 {o}, {v((VFA, VFB)[h],4)}, {v(p+8*h,8)}, v{IX}"
def ex(b, cur, lo, hi):
    for r in range(lo, hi): b(f"v_exp_f32 v{cur+r}, v{cur+r}")
def kv_addr(b, sreg):
    b(f"""
    s_mul_i32 s{S_T0}, s{sreg}, 2304
    v_add_u32 v{KA}, s{S_T0}, v{K1B}
    v_add_u32 v{K2A}, s{S_T0}, v{K2B}
    v_mad_u32_u24 v{VA}, s{sreg}, v{VS}, v{VB}
    """)
rK1 = lambda off=0, r=K1: f"ds_read_b128 {v(r,4)}, v{KA} offset:{off}"
rK2 = lambda off=0, r=K2: f"ds_read_b32 v{r}, v{K2A} offset:{off}"
rV = lambda h, off=0: f"ds_read_b128 {v((VFA, VFB)[h],4)}, v{VA} offset:{576*h + off}"

def seg_addr(b):
    b(f"""
    s_lshl_b32 s{S_NEED}, s{S_LAY}, 6
    s_add_u32 s{S_NEED}, s{S_NEED}, s{S_NX}
    s_lshl_b32 s{S_QO}, s{S_NEED}, 5
    s_add_u32 s{S_QO}, s{S_QO}, s{S_H}
    s_mul_i32 s{S_QO}, s{S_QO}, 3584
    s_add_u32 s{S_QO}, s{S_QO}, {W.QB}
    s_add_u32 s{S_NEED}, s{S_NEED}, 1
    s_and_b32 s{S_FO}, s{S_H}, 28
    s_lshl_b32 s{S_FO}, s{S_FO}, {PSH}
    s_add_u32 s{S_FO}, s{S_FO}, {W.PROG + P_QW}
    s_lshl_b32 s{S_FX}, s{S_FO}, 1
    s_add_u32 s{S_FX}, s{S_FX}, {128 << PSH}
    s_and_b32 s{S_T0}, s{S_NX}, 1
    s_lshl_b32 s{S_T0}, s{S_T0}, {7 + PSH}
    s_add_u32 s{S_FO}, s{S_FO}, s{S_T0}
    """)
def request(b):
    b.reset()
    b.label("L_bw_req")
    b(f"""
    s_lshl_b32 s{S_T0}, s{S_WAVE}, 10
    s_mul_i32 s{S_T1}, s{S_NX}, 2304
    s_cmp_eq_u32 s{S_WAVE}, 3
    s_cbranch_scc1 L_bw_nd
    s_add_u32 m0, s{S_T0}, s{S_T1}
    s_add_u32 s{S_T0}, s{S_T0}, s{S_QO}
    s_mov_b64 exec, s[{S_DE}:{S_DE+1}]
    buffer_load_dwordx4 v{A1}, s[{S_WS}:{S_WS+3}], s{S_T0} offen sc1 lds
    s_mov_b64 exec, -1
    L_bw_nd:
    s_cmp_lg_u32 s{S_NX}, s{S_RA}
    s_cbranch_scc1 L_bw_nq
    buffer_load_dwordx4 {v(QN1,4)}, v{A1}, s[{S_WS}:{S_WS+3}], s{S_QQ} offen offset:2304 sc1
    buffer_load_dword v{QN2}, v{OBX}, s[{S_WS}:{S_WS+3}], s{S_QQ} offen offset:3328 sc1
    s_mul_i32 s{S_T0}, s{S_OD}, {32*3584}
    s_add_u32 s{S_QQ}, s{S_QQ}, s{S_T0}
    s_add_u32 s{S_RA}, s{S_RA}, 2
    L_bw_nq:
    s_add_u32 s{S_NX}, s{S_NX}, 1
    s_add_u32 s{S_NEED}, s{S_NEED}, 1
    s_add_u32 s{S_QO}, s{S_QO}, {32*3584}
    s_sub_u32 s{S_FO}, s{S_FX}, s{S_FO}
    s_setpc_b64 s[{S_RET}:{S_RET+1}]
    """)

def bulk(b):
    b.reset()
    b.label("L_bw_bulk")
    b(f"""
    s_lshl_b32 s{S_NEED}, s{S_LAY}, 6
    s_add_u32 s{S_NEED}, s{S_NEED}, s{S_NX}
    s_sub_u32 s{S_NEED}, s{S_NEED}, 1
    s_and_b32 s{S_FO}, s{S_H}, 28
    s_lshl_b32 s{S_FO}, s{S_FO}, {PSH}
    s_add_u32 s{S_FO}, s{S_FO}, {W.PROG + P_QW}
    v_and_b32 v{T}, 16, v{A1}
    v_lshlrev_b32 v{T}, {3 + PSH}, v{T}
    """)
    wait_words(b, T, S_FO, S_NEED, T+1, 1, scale=False, code=6)
    b(f"""
    s_add_u32 s{S_SEG}, s{S_SEG}, s{S_WAVE}
    s_lshl_b32 s{S_QO}, s{S_LAY}, 6
    s_add_u32 s{S_QO}, s{S_QO}, s{S_SEG}
    s_lshl_b32 s{S_QO}, s{S_QO}, 5
    s_add_u32 s{S_QO}, s{S_QO}, s{S_H}
    s_mul_i32 s{S_QO}, s{S_QO}, 3584
    s_add_u32 s{S_QO}, s{S_QO}, {W.QB}
    L_bw_bl:
    s_cmp_ge_u32 s{S_SEG}, s{S_NX}
    s_cbranch_scc1 L_bw_be
    s_mul_i32 m0, s{S_SEG}, 2304
    s_add_u32 s{S_SEG}, s{S_SEG}, 4
    buffer_load_dwordx4 v{A1}, s[{S_WS}:{S_WS+3}], s{S_QO} offen sc1 lds
    buffer_load_dwordx4 v{A1}, s[{S_WS}:{S_WS+3}], s{S_QO} offen offset:1024 sc1 lds
    s_mov_b64 exec, 0xffff
    buffer_load_dwordx4 v{A1}, s[{S_WS}:{S_WS+3}], s{S_QO} offen offset:2048 sc1 lds
    s_mov_b64 exec, -1
    s_add_u32 s{S_QO}, s{S_QO}, {4*32*3584}
    s_branch L_bw_bl
    L_bw_be:
    s_mov_b32 s{S_SEG}, s{S_NX}
    s_setpc_b64 s[{S_RET}:{S_RET+1}]
    """)

def merge(b):
    b.reset()
    b.label("L_bw_mrg")
    b(f"v_add_u32 v{T}, {L_EX[0]}, v{A1}")
    for i in range(9): b(f"ds_read_b128 {v(8+4*i,4)}, v{T} offset:{L_EX[i//3] - L_EX[0] + (i%3)*1024}")
    b(f"s_mov_b32 s{S_MRG}, 0\ns_sub_u32 s{S_T0}, s{S_CNT}, 1\ns_lshr_b32 s{S_T0}, s{S_T0}, 2")
    for k in range(7): b(f"s_cmp_eq_u32 s{S_T0}, {k}\ns_cbranch_scc1 L_bw_o{k}")
    snap = b.snapshot()
    for k in [7] + list(range(7)):
        b.restore(snap)
        if k < 7: b.label(f"L_bw_o{k}")
        for r in range(4): b(f"v_accvgpr_write_b32 a{128+4*k+r}, v{QN1+r}")
        b(f"v_accvgpr_write_b32 a{160+2*k}, v{QN2}")
        for j in range(3):
            for r in range(0, 12, 2): b(f"v_pk_add_f32 {v(TN+r,2)}, {v(TN+r,2)}, {v(8+12*j+r,2)}")
        for r in range(11): b(f"v_accvgpr_write_b32 a{16*k+r}, v{TN+r}")
        b(f"s_setpc_b64 s[{S_RET}:{S_RET+1}]")

def segment(b):
    b(f"s_cmp_gt_u32 s{S_NX}, s{S_SEG}\ns_cbranch_scc0 L_bw_block")
    b.label("L_bw_have")
    b(f"""
    s_add_u32 s{S_NU}, s{S_CNT}, s{S_U0}
    s_lshr_b32 s{S_NU}, s{S_NU}, 2
    s_sub_u32 s{S_OWN}, s{S_WAVE}, s{S_CNT}
    s_add_u32 s{S_OWN}, s{S_OWN}, 3
    s_and_b32 s{S_OWN}, s{S_OWN}, 3
    """)
    kv_addr(b, S_SEG)
    b(f"s_cmp_lg_u32 s{S_MRG}, 0\ns_waitcnt vmcnt(0) lgkmcnt(0)\ns_barrier")
    prof(b, 0)
    b(rK1()); b(rK2()); b(rV(0)); b(rV(1))
    b(f"buffer_load_dword v{PF}, off, s[{S_WS}:{S_WS+3}], s{S_FO} sc1")
    if TRACE_ON[0] == 3: b(f"s_cmp_lg_u32 s{S_MRG}, 0")
    b(f"s_cbranch_scc0 L_bw_nm\ns_call_b64 s[{S_RET}:{S_RET+1}], L_bw_mrg\nL_bw_nm:")
    q1 = lambda k: a(128 + 4*k, 4); q2 = lambda k: a(160 + 2*k, 2); st = lambda k: a(16*k, 16)
    qa, qb, tn = v(QN1, 4), v(QN2, 2), v(TN, 16)
    UB = (SS[0], SC)
    kv_addr(b, S_OWN)
    b(rK1(0, K1N)); b(rK2(0, K2N))
    for i in range(6): b(f"v_mov_b64 {v(TN+2*i,2)}, 0")
    b(S1(UB[0], q1(0))); b(S1(SS[1], qa, K1N)); b(rK1(9216, K1N))
    b(S2(UB[0], q2(0))); b(S2(SS[1], qb, K2N)); b(rK2(9216, K2N))
    b(f"s_cmp_eq_u32 s{S_NU}, 0\ns_cbranch_scc1 L_bw_u")
    for k in range(8):
        cur, nxt = UB[k % 2], UB[(k + 1) % 2]
        ex(b, cur, 0, 2)
        if k > 0: b(PV(st(k-1), 1, nxt))
        if k == 3: b(f"v_cmp_gt_u32 vcc, s{S_NEED}, v{PF}")
        ex(b, cur, 2, 5)
        if k < 7: b(S1(nxt, q1(k+1)))
        if k == 3:
            b(f"s_cbranch_vccnz L_bw_np\ns_call_b64 s[{S_RET}:{S_RET+1}], L_bw_req\nL_bw_np:")
        ex(b, cur, 5, 10)
        if k < 7: b(S2(nxt, q2(k+1)))
        ex(b, cur, 10, 13)
        b(PV(st(k), 0, cur))
        if k < 7: b(f"s_cmp_eq_u32 s{S_NU}, {k+1}")
        ex(b, cur, 13, 16)
        if k < 7: b(f"s_cbranch_scc1 L_bw_u{k}")
    b(PV(st(7), 1, UB[1]))
    b.label("L_bw_n")
    prof(b, 1)
    b(f"""
    s_cmp_lg_u32 s{S_SEG}, s{S_AN}
    s_cbranch_scc1 L_bw_next
    s_add_u32 s{S_CNT}, s{S_CNT}, 1
    s_add_u32 s{S_AN}, s{S_AN}, 2
    s_cmp_eq_u32 s{S_CNT}, s{S_ON}
    s_cselect_b32 s{S_AN}, 64, s{S_AN}
    s_cselect_b32 s{S_RA}, 65, s{S_RA}
    s_sub_u32 s{S_NN}, s{S_SEG}, s{S_OWN}
    s_cbranch_scc1 L_bw_x
    s_lshr_b32 s{S_NN}, s{S_NN}, 2
    """)
    b.reset()
    b.auto_wait = False
    ex(b, SS[1], 0, 2)
    b.label("L_bw_nl")
    for u in range(4):
        e = u % 2
        cur, nxt = SS[1 - e], SS[e]
        b(rV(1, 9216*e)); b(rV(0, 9216*e))
        if e: b(f"v_add_u32 v{VA}, v{VA}, v{VS8}")
        ex(b, cur, 2, 5)
        b("s_waitcnt lgkmcnt(2)")
        b(S1(nxt, qa, K1N)); b(rK1(18432 + 9216*u, K1N))
        ex(b, cur, 5, 10)
        b(S2(nxt, qb, K2N)); b("s_waitcnt lgkmcnt(1)")
        ex(b, cur, 10, 13)
        b(PV(tn, 0, cur)); b(rK2(18432 + 9216*u, K2N)); b(f"s_sub_u32 s{S_NN}, s{S_NN}, 1")
        if u == 3: b(f"v_add_u32 v{KA}, 36864, v{KA}\nv_add_u32 v{K2A}, 36864, v{K2A}")
        ex(b, cur, 13, 16)
        b(f"s_cbranch_scc1 L_bw_ne{e}")
        ex(b, nxt, 0, 2)
        b(PV(tn, 1, cur))
    b("s_branch L_bw_nl")
    b.auto_wait = True
    b.reset()
    b.label("L_bw_ne1")
    b("s_nop 0"); b(PV(tn, 1, SS[0])); b("s_branch L_bw_x")
    b.label("L_bw_ne0")
    b("s_nop 0"); b(PV(tn, 1, SS[1]))
    b.label("L_bw_x")
    prof(b, 2)
    b(f"""
    s_cmp_eq_u32 s{S_OWN}, 3
    s_cselect_b32 s{S_MRG}, 1, 0
    s_cbranch_scc1 L_bw_next
    s_mul_i32 s{S_T1}, s{S_OWN}, 3072
    s_add_u32 s{S_T1}, s{S_T1}, {L_EX[0]}
    s_cmp_eq_u32 s{S_OWN}, 2
    s_cselect_b32 s{S_T0}, {L_EX[2]}, s{S_T1}
    v_add_u32 v{T}, s{S_T0}, v{A1}
    """)
    for i in range(3): b(f"ds_write_b128 v{T}, {v(TN+4*i,4)} offset:{i*1024}")
    b("s_branch L_bw_next")
    for k in range(7):
        b.reset(); b.label(f"L_bw_u{k}")
        b("s_nop 0"); b(PV(st(k), 1, UB[k % 2])); b("s_branch L_bw_n")
    b.label("L_bw_u")
    b.nop(10); b("s_branch L_bw_n")
    b.reset()
    b.label("L_bw_block")
    b(f"v_mov_b32 v{T}, 0")
    wait_words(b, T, S_FO, S_NEED, T+1, 1, scale=False)
    b(f"s_call_b64 s[{S_RET}:{S_RET+1}], L_bw_req\ns_branch L_bw_have")

def truemax(b):
    b.reset()
    b.label("L_bw_tm")
    qa, qb, tn, S0, M = v(QN1, 4), v(QN2, 2), v(TN, 16), SC, T+2
    b(f"v_mov_b32 v{M}, 0xff800000\ns_mov_b32 s{S_NN}, 0")
    b.label("L_bw_tm1")
    kv_addr(b, S_NN)
    b(rK1()); b(rK2()); b(S1(S0, qa)); b(S2(S0, qb))
    for r in range(0, 16, 2): b(f"v_max3_f32 v{M}, v{M}, v{S0+r}, v{S0+r+1}")
    b(f"s_add_u32 s{S_NN}, s{S_NN}, 1\ns_cmp_lt_u32 s{S_NN}, 64\ns_cbranch_scc1 L_bw_tm1")
    b(f"v_mov_b32 v{M+1}, v{M}\nv_permlane32_swap_b32 v{M}, v{M+1}\nv_max_f32 v{M}, v{M}, v{M+1}\ns_mov_b32 s{S_NN}, 0")
    for i in range(8): b(f"v_mov_b64 {v(TN+2*i,2)}, 0")
    b.label("L_bw_tm2")
    kv_addr(b, S_NN)
    b(rK1()); b(rK2()); b(rV(0)); b(rV(1)); b(S1(S0, qa)); b(S2(S0, qb))
    for r in range(16): b(f"v_sub_f32 v{S0+r}, v{S0+r}, v{M}")
    ex(b, S0, 0, 16)
    b(PV(tn, 0, S0)); b(PV(tn, 1, S0))
    b.nop(8)
    b(f"s_add_u32 s{S_NN}, s{S_NN}, 1\ns_cmp_lt_u32 s{S_NN}, 64\ns_cbranch_scc1 L_bw_tm2")
    b.nop(12)
    b(f"v_mov_b32 v{T}, v{TN+10}\nv_permlane32_swap_b32 v{TN+10}, v{T}\ns_setpc_b64 s[{S_RET}:{S_RET+1}]")

def finish(b):
    b(f"s_waitcnt lgkmcnt(0)\ns_barrier\ns_nop 9\ns_cmp_lg_u32 s{S_MRG}, 0\ns_cbranch_scc0 L_bw_fm\ns_call_b64 s[{S_RET}:{S_RET+1}], L_bw_mrg\nL_bw_fm:")
    b(f"""
    s_add_u32 s{S_NU}, s{S_CNT}, s{S_U0}
    s_lshr_b32 s{S_NU}, s{S_NU}, 2
    s_lshl_b32 s{S_NEED}, s{S_LAY}, 6
    s_add_u32 s{S_NEED}, s{S_NEED}, s{S_OS}
    s_mul_i32 s{S_T0}, s{S_WAVE}, s{S_OD}
    s_add_u32 s{S_T0}, s{S_T0}, s{S_NEED}
    s_lshl_b32 s{S_T0}, s{S_T0}, 5
    s_add_u32 s{S_T0}, s{S_T0}, s{S_H}
    s_mul_i32 s{S_QO}, s{S_T0}, 1152
    s_add_u32 s{S_QO}, s{S_QO}, {W.OB}
    s_mul_i32 s{S_FX}, s{S_OD}, {4*32*1152}
    """)
    for k in range(8):
        b(f"s_cmp_eq_u32 s{S_NU}, {k}\ns_cbranch_scc1 L_bw_fe")
        for r in range(11): b(f"v_accvgpr_read_b32 v{TN+r}, a{16*k+r}")
        b(f"""
        v_mov_b32 v{T}, v{TN+10}
        v_permlane32_swap_b32 v{TN+10}, v{T}
        v_cmp_nlt_f32 vcc, s{S_LO}, v{TN+10}
        v_cmp_ngt_f32 s[{S_T0}:{S_T0+1}], s{S_HI}, v{TN+10}
        v_rcp_f32 v{T}, v{TN+10}
        s_or_b64 vcc, vcc, s[{S_T0}:{S_T0+1}]
        s_cbranch_scc1 L_bw_g{k}
        L_bw_f{k}:
        """)
        for r in range(10): b(f"v_mul_f32 v{TN+r}, v{TN+r}, v{T}")
        d = 8 + 8*(k % 2)
        for i in range(5): b(cvt(d + i, TN + 2*i))
        b(f"buffer_store_dwordx4 {v(d,4)}, v{A1}, s[{S_WS}:{S_WS+3}], s{S_QO} offen sc1")
        b(f"buffer_store_dword v{d+4}, v{OBX}, s[{S_WS}:{S_WS+3}], s{S_QO} offen offset:1024 sc1")
        b(f"s_add_u32 s{S_QO}, s{S_QO}, s{S_FX}")
        if k == 6:
            b(f"s_lshl_b32 s{S_T1}, s{S_OD}, 3\ns_add_u32 s{S_T1}, s{S_T1}, s{S_NEED}\ns_waitcnt vmcnt(10)\ns_barrier")
            signal(b, S_PA, S_T1, T, T+1, barrier=False)
    b.label("L_bw_fe")
    b(f"s_mul_i32 s{S_T1}, s{S_OD}, s{S_ON}\ns_add_u32 s{S_T1}, s{S_T1}, s{S_NEED}")
    signal(b, S_PA, S_T1, T, T+1)
    b(f"s_setpc_b64 s[{S_RET2}:{S_RET2+1}]")
    for k in range(8):
        b.reset(); b.label(f"L_bw_g{k}")
        for r in range(4): b(f"v_accvgpr_read_b32 v{QN1+r}, a{128+4*k+r}")
        b(f"v_accvgpr_read_b32 v{QN2}, a{160+2*k}")
        b(f"s_call_b64 s[{S_RET}:{S_RET+1}], L_bw_tm\nv_rcp_f32 v{T}, v{TN+10}\ns_branch L_bw_f{k}")

def attention(b):
    b.reset()
    b.label("L_bw_pass")
    seg_addr(b)
    b(f"""
    s_mov_b32 s{S_CNT}, 0
    s_mov_b32 s{S_RA}, s{S_AN}
    s_lshl_b32 s{S_QQ}, s{S_LAY}, 6
    s_add_u32 s{S_QQ}, s{S_QQ}, s{S_OS}
    s_lshl_b32 s{S_QQ}, s{S_QQ}, 5
    s_add_u32 s{S_QQ}, s{S_QQ}, s{S_H}
    s_mul_i32 s{S_QQ}, s{S_QQ}, 3584
    s_add_u32 s{S_QQ}, s{S_QQ}, {W.QB}
    """)
    b.label("L_bw_loop")
    segment(b)
    b.reset()
    b.label("L_bw_next")
    trace(b, 5, T)
    prof(b, 3)
    b(f"s_add_u32 s{S_SEG}, s{S_SEG}, 1\ns_cmp_lt_u32 s{S_SEG}, 64\ns_cbranch_scc1 L_bw_loop")
    finish(b)

def pnext_addr(b):
    L = uid("pa")
    b(f"""
    s_lshr_b32 s{S_T0}, s{S_NX}, 1
    s_lshl_b32 s{S_NEED}, s{S_LAY}, 6
    s_add_u32 s{S_NEED}, s{S_NEED}, s{S_T0}
    s_mul_i32 s{S_QO}, s{S_NEED}, 36864
    s_add_u32 s{S_QO}, s{S_QO}, {W.OB}
    s_add_u32 s{S_NEED}, s{S_NEED}, 1
    s_and_b32 s{S_FO}, s{S_T0}, 1
    s_lshl_b32 s{S_FO}, s{S_FO}, {7 + PSH}
    s_add_u32 s{S_FO}, s{S_FO}, {W.PROG + P_BW}
    s_cmp_le_u32 s{S_NEED}, {64 + LATE1}
    s_cbranch_scc1 {L}
    s_sub_u32 s{S_T0}, s{S_T0}, {LATE1}
    s_sub_u32 s{S_T1}, s{S_T0}, 3
    s_cselect_b32 s{S_FO}, s{S_T0}, s{S_T1}
    s_lshl_b32 s{S_FO}, s{S_FO}, {7 + PSH}
    s_add_u32 s{S_FO}, s{S_FO}, {W.PROG + P_HL}
    {L}:
    s_cmp_ge_u32 s{S_NX}, s{S_PE}
    s_cselect_b32 s{S_NEED}, -1, s{S_NEED}
    s_cselect_b32 s{S_FO}, {W.PROG}, s{S_FO}
    """)
def prequest(b):
    b.reset()
    b.label("L_bw_preq")
    b(f"""
    s_and_b32 s{S_FX}, s{S_NX}, 1
    s_lshl_b32 s{S_T1}, s{S_FX}, 8
    s_mul_i32 s{S_T0}, s{S_WAVE}, 9216
    s_add_u32 s{S_T0}, s{S_T0}, s{S_T1}
    s_add_u32 s{S_T0}, s{S_T0}, s{S_QO}
    s_lshl_b32 s{S_T2}, s{S_WAVE}, 12
    s_add_u32 s{S_T2}, s{S_T2}, s{S_NU}
    """)
    for kk in range(4):
        b(f"s_add_u32 m0, s{S_T2}, {kk*1024}\ns_add_u32 s{S_T1}, s{S_T0}, {kk*2304}")
        b(f"buffer_load_dwordx4 v{DM}, s[{S_WS}:{S_WS+3}], s{S_T1} offen sc1 lds")
    b(f"""
    s_lshl_b32 s{S_T1}, s{S_FX}, 6
    s_mul_i32 s{S_T0}, s{S_WAVE}, 4608
    s_add_u32 s{S_T0}, s{S_T0}, s{S_T1}
    s_add_u32 s{S_T0}, s{S_T0}, s{S_QO}
    s_lshl_b32 s{S_T2}, s{S_WAVE}, 8
    s_add_u32 s{S_T2}, s{S_T2}, s{S_NU}
    """)
    for e in range(2):
        b(f"s_add_u32 m0, s{S_T2}, {(16+e)*1024}\ns_add_u32 s{S_T1}, s{S_T0}, {e*16*1152}")
        b(f"buffer_load_dword v{DX}, s[{S_WS}:{S_WS+3}], s{S_T1} offen sc1 lds")
    b(f"s_add_u32 s{S_NX}, s{S_NX}, s{S_PD}\ns_xor_b32 s{S_NU}, s{S_NU}, {L_XT[0] ^ L_XT[1]}\ns_setpc_b64 s[{S_RET}:{S_RET+1}]")

def project(b):
    RES, ACC, FB, FA, XR = 64, 8, 32, 76, 77
    b.reset()
    b.label("L_bw_proj")
    b(f"""
    s_mov_b32 s{S_NX}, s{S_SG}
    s_mov_b32 s{S_NU}, {L_XT[0]}
    v_lshlrev_b32 v{FA}, 3, v{A1}
    v_and_b32 v{FA}, 4095, v{FA}
    v_add_u32 v{XR}, {L_XT[0]}, v{A1}
    L_bw_pl:
    s_cmp_ge_u32 s{S_SG}, s{S_PE}
    s_cbranch_scc1 L_bw_pe
    s_cmp_gt_u32 s{S_NX}, s{S_SG}
    s_cbranch_scc1 L_bw_ph
    """)
    pnext_addr(b)
    b(f"v_mov_b32 v{T}, v{FA}")
    wait_words(b, T, S_FO, S_NEED, T+1, 1, code=3, scale=False)
    b(f"s_call_b64 s[{S_RET}:{S_RET+1}], L_bw_preq\ns_waitcnt vmcnt(0)")
    b.label("L_bw_ph")
    pnext_addr(b)
    b(f"s_mul_i32 s{S_OWN}, s{S_SG}, 18432\ns_waitcnt vmcnt(2)\ns_barrier")
    rd = lambda kk: f"ds_read_b128 {v(FB + 4*(kk%4),4)}, v{XR} offset:{kk*1024}"
    for kk in range(3): b(rd(kk))
    b(f"buffer_load_dword v{PF}, v{FA}, s[{S_WS}:{S_WS+3}], s{S_FO} offen sc1")
    for n in range(2): b(f"buffer_load_dwordx4 {v(RES+4*n,4)}, v{EG+n}, s[{S_XI}:{S_XI+3}], s{S_OWN} offen sc1")
    for kk in range(18):
        for i in range(3):
            d = ACC + 4*i
            b(f"v_mfma_f32_16x16x32_bf16 {v(d,4)}, {wfrag(kk,i)}, {v(FB + 4*(kk%4),4)}, {'0' if kk == 0 else v(d,4)}")
            if kk + 3 < 18 and i == 0: b(rd(kk + 3))
            if kk == 11 and i == 1: b(f"v_cmp_gt_u32 vcc, s{S_NEED}, v{PF}")
            if kk == 11 and i == 2: b(f"s_waitcnt vmcnt(0)\ns_cbranch_vccnz L_bw_pn\ns_call_b64 s[{S_RET}:{S_RET+1}], L_bw_preq\nL_bw_pn:")
    b(f"s_mul_i32 s{S_T0}, s{S_WAVE}, 3072\nv_add_u32 v{T}, s{S_T0}, v{A1}\nv_xor_b32 v{XR}, {L_XT[0] ^ L_XT[1]}, v{XR}")
    for n in range(3): b(f"ds_write_b128 v{T}, {v(ACC+4*n,4)} offset:{L_ET + n*1024}")
    for n in range(2):
        for k in range(4): b(f"v_lshlrev_b32 v{FB+8*n+2*k}, 16, v{RES+4*n+k}\nv_and_b32 v{FB+8*n+2*k+1}, 0xffff0000, v{RES+4*n+k}")
    b("s_waitcnt lgkmcnt(0)\ns_barrier")
    for n in range(2):
        for hf in range(2): b(f"ds_read_b128 {v(8 + 8*n + 4*hf,4)}, v{EL+n} offset:{hf*256}")
    for n in range(2):
        for k in range(4):
            b(f"v_pk_add_f32 {v(8+8*n+2*k,2)}, {v(8+8*n+2*k,2)}, {v(FB+8*n+2*k,2)}")
            b(cvt(RES + 4*n + k, 8 + 8*n + 2*k))
        b(f"buffer_store_dwordx4 {v(RES+4*n,4)}, v{EG+n}, s[{S_XO}:{S_XO+3}], s{S_OWN} offen sc1")
    b(f"s_add_u32 s{S_NN}, s{S_SG}, 1\ns_add_u32 s{S_SG}, s{S_SG}, s{S_PD}\ns_cmp_lg_u32 s{S_LAY}, 0\ns_cbranch_scc1 L_bw_pl")
    signal(b, S_PW, S_NN, T, T+1, code=4)
    b("s_branch L_bw_pl")
    b.label("L_bw_pe")
    trace(b, 7, T)
    b(f"s_setpc_b64 s[{S_RET2}:{S_RET2+1}]")

def init_proj(b):
    b.reset()
    b.label("L_bw_ip")
    b(f"""
    s_mul_i32 s{S_SG}, s{S_ID}, 21846
    s_lshr_b32 s{S_SG}, s{S_SG}, 16
    s_mul_i32 s{S_T0}, s{S_SG}, 3
    s_sub_u32 s{S_CG}, s{S_ID}, s{S_T0}
    s_mul_i32 s{S_T1}, s{S_CG}, 384
    s_mul_i32 s{S_T0}, s{S_WAVE}, 96
    s_add_u32 s{S_T1}, s{S_T1}, s{S_T0}
    """)
    srd(b, S_WG, PT['WO'], 576*1152)
    def main_row(r):
        b(f"v_bfe_u32 v6, v{r}, 3, 1\nv_mul_u32_u24 v6, 18, v6\nv_lshrrev_b32 v7, 4, v{r}\nv_lshl_add_u32 v6, v7, 3, v6\nv_and_b32 v{r}, 7, v{r}\nv_add_u32 v{r}, v{r}, v6")
    def extra_row(r):
        b(f"v_and_b32 v6, 12, v{r}\nv_lshrrev_b32 v7, 4, v{r}\nv_lshl_add_u32 v6, v7, 1, v6\nv_bfe_u32 v7, v{r}, 1, 1\nv_add_u32 v6, v6, v7\nv_mul_u32_u24 v6, 18, v6\nv_and_b32 v{r}, 1, v{r}\nv_add3_u32 v{r}, v{r}, v6, 16")
    ow.row96_addr(b, 8, main_row, S_T1)
    ow.row96_addr(b, 12, extra_row, S_T1)
    ow.load96(b, [(8, kk*36*1152) for kk in range(16)] + [(12, e*16*18*1152) for e in range(2)], wfrag, 16)
    for n in range(2):
        b(f"""
        v_add_u32 v8, {256*n}, v0
        v_mul_u32_u24 v9, 2731, v8
        v_lshrrev_b32 v9, 16, v9
        v_mul_u32_u24 v10, 24, v9
        v_sub_u32 v8, v8, v10
        v_mul_u32_u24 v10, 1152, v9
        v_lshl_add_u32 v10, v8, 4, v10
        s_mul_i32 s{S_T0}, s{S_CG}, 384
        v_add_u32 v10, s{S_T0}, v10
        v_mov_b32 v11, {OOB}
        v_cmp_gt_u32 vcc, 16, v9
        v_cndmask_b32 v{EG+n}, v11, v10, vcc
        v_lshlrev_b32 v10, 9, v8
        v_and_b32 v9, 15, v9
        v_lshl_add_u32 v10, v9, 4, v10
        v_add_u32 v{EL+n}, {L_ET}, v10
        """)
    b(f"""
    v_and_b32 v8, 63, v0
    v_lshrrev_b32 v10, 5, v8
    v_mul_u32_u24 v11, 1152, v10
    v_bfe_u32 v13, v8, 4, 1
    v_lshl_add_u32 v11, v13, 9, v11
    v_and_b32 v13, 15, v8
    v_lshl_add_u32 v{DM}, v13, 4, v11
    v_and_b32 v11, 3, v8
    v_mul_u32_u24 v11, 1152, v11
    v_and_b32 v13, 60, v8
    v_add_u32 v11, v11, v13
    v_add_u32 v{DX}, 1024, v11
    v_lshlrev_b32 v{A1}, 4, v8
    s_setpc_b64 s[{S_RET2}:{S_RET2+1}]
    """)

def init_att(b, lo, hi):
    b.reset()
    b.label("L_bw_ia")
    b(f"""
    v_lshrrev_b32 v8, 4, v{A1}
    v_and_b32 v9, 31, v8
    v_lshrrev_b32 v10, 5, v8
    v_lshlrev_b32 v11, 2, v9
    v_and_b32 v14, 0x33, v8
    v_bfe_u32 v15, v8, 2, 1
    v_lshl_add_u32 v14, v15, 3, v14
    v_bfe_u32 v15, v8, 3, 1
    v_lshl_add_u32 v14, v15, 2, v14
    v_lshlrev_b32 v{K1B}, 4, v14
    v_and_b32 v14, 31, v14
    v_lshlrev_b32 v14, 2, v14
    v_add_u32 v{K2B}, 1024, v14
    v_mov_b32 v{IX}, 0xdddd
    s_cmp_eq_u32 s{S_WAVE}, 2
    s_cselect_b64 s[{S_DE}:{S_DE+1}], 0xffff, -1
    s_sub_u32 s{S_U0}, 3, s{S_WAVE}
    s_mov_b32 s{S_MRG}, 0
    s_mov_b32 s{S_LO}, {fhex(lo)}
    s_mov_b32 s{S_HI}, {fhex(hi)}
    v_mov_b32 v12, {OOB}
    v_cmp_gt_u32 vcc, 32, v8
    v_cndmask_b32 v{OBX}, v12, v11, vcc
    v_mul_u32_u24 v11, 18, v10
    v_add_u32 v11, v11, v9
    v_lshlrev_b32 v11, 4, v11
    v_add_u32 v11, 1152, v11
    v_mov_b32 v12, {L_ONE}
    v_mov_b32 v13, 2304
    v_cmp_gt_u32 vcc, 18, v9
    v_cndmask_b32 v{VB}, v12, v11, vcc
    v_cndmask_b32 v{VS}, 0, v13, vcc
    v_lshlrev_b32 v{VS8}, 3, v{VS}
    v_mov_b32 v16, s{S_ONE}
    v_mov_b32 v17, s{S_ONE}
    v_mov_b32 v18, s{S_ONE}
    v_mov_b32 v19, s{S_ONE}
    ds_write_b128 v12, v[16:19]
    ds_write_b128 v12, v[16:19] offset:576
    ds_write_b128 v12, v[16:19] offset:9216
    ds_write_b128 v12, v[16:19] offset:9792
    v_mov_b32 v{K2+1}, 0
    v_mov_b32 v{QN2+1}, 0
    v_mov_b32 v{K2N+1}, 0
    """)
    for k in range(8): b(f"v_accvgpr_write_b32 a{161+2*k}, 0")
    b(f"s_waitcnt lgkmcnt(0)\ns_setpc_b64 s[{S_RET2}:{S_RET2+1}]")

def emit(b, nlayers, lo=2.0**-80, hi=2.0**80):
    call = lambda L, r=S_RET2: b(f"s_call_b64 s[{r}:{r+1}], {L}")
    def params(os_, od, on, an):
        b(f"s_add_u32 s{S_OS}, s{S_PAR}, {os_}\ns_mov_b32 s{S_OD}, {od}\ns_mov_b32 s{S_ON}, {on}\ns_add_u32 s{S_AN}, s{S_PAR}, {an}")
    def last_srds():
        srd(b, S_XI, PT['WS'], XB, W.X3); srd(b, S_XO, PT['OUT'], XB)
    b.reset()
    b.label("L_bw")
    b(f"""
    s_and_b32 s{S_H}, s{S_ID}, 31
    s_lshr_b32 s{S_PAR}, s{S_ID}, 5
    s_lshl_b32 s{S_PA}, s{S_ID}, {2 + PSH}
    s_add_u32 s{S_PW}, s{S_PA}, {W.PROG + P_WW}
    s_add_u32 s{S_PA}, s{S_PA}, {W.PROG + P_BW}
    s_mov_b32 s{S_LAY}, 0
    """)
    call("L_bw_ip"); call("L_bw_ia")
    b(f"s_cmp_eq_u32 s{S_SG}, 21\ns_cselect_b32 s{S_SG}, 128, s{S_SG}\ns_mov_b32 s{S_CG}, s{S_SG}")
    srd(b, S_XI, PT['WS'], XB, W.X1); srd(b, S_XO, PT['WS'], XB, W.X2)
    wait_init(b, T, T+1)
    params(0, 2, LATE0//2, 0)
    b(f"s_mov_b32 s{S_SEG}, 0\ns_mov_b32 s{S_NX}, 0")
    call("L_bw_pass")
    b(f"s_mov_b32 s{S_PD}, 21\ns_mov_b32 s{S_PE}, {2*LATE0}")
    call("L_bw_proj")
    params(LATE0, 2, (64 - LATE0)//2, LATE0)
    b(f"s_mov_b32 s{S_SEG}, 0\ns_mov_b32 s{S_NX}, s{S_AN}")
    call("L_bw_bulk", S_RET); call("L_bw_pass")
    b(f"s_mov_b32 s{S_PE}, 128")
    call("L_bw_proj")
    if nlayers == 1: b("s_branch L_end")
    b(f"s_mov_b32 s{S_LAY}, 1\ns_mov_b32 s{S_SG}, s{S_CG}")
    params(0, 2, LATE1//2, 0)
    b(f"s_mov_b32 s{S_SEG}, 0\ns_mov_b32 s{S_NX}, 0")
    call("L_bw_pass")
    b.label("L_bw_last")
    last_srds()
    b(f"s_mov_b32 s{S_LAY}, 1\ns_mov_b32 s{S_PD}, {NWW1}\ns_mov_b32 s{S_PE}, 128")
    call("L_bw_proj")
    b("s_branch L_end")
    b.reset()
    b.label("L_help")
    b(f"""
    s_and_b32 s{S_H}, s{S_ID}, 31
    s_lshr_b32 s{S_PAR}, s{S_ID}, 5
    s_add_u32 s{S_PAR}, s{S_PAR}, 2
    s_sub_u32 s{S_T0}, s{S_PAR}, 3
    s_cselect_b32 s{S_PAR}, s{S_PAR}, s{S_T0}
    s_lshl_b32 s{S_PA}, s{S_PAR}, 5
    s_add_u32 s{S_PA}, s{S_PA}, s{S_H}
    s_lshl_b32 s{S_PA}, s{S_PA}, {2 + PSH}
    s_add_u32 s{S_PA}, s{S_PA}, {W.PROG + P_HL}
    s_mov_b32 s{S_LAY}, 1
    """)
    call("L_bw_ia")
    params(LATE1, 3, 2, LATE1 + 1)
    b(f"s_mov_b32 s{S_SEG}, 0\ns_add_u32 s{S_NX}, s{S_PAR}, {LATE1 - 4}")
    call("L_bw_bulk", S_RET)
    b(f"s_mov_b32 s{S_NX}, s{S_AN}")
    call("L_bw_bulk", S_RET); call("L_bw_pass")
    b("s_branch L_end")
    b.reset()
    b.label("L_ww_team")
    b(f"s_cmp_ge_u32 s{S_ID}, 30\ns_cbranch_scc1 L_end\ns_add_u32 s{S_ID}, s{S_ID}, 48\ns_waitcnt vmcnt(0) lgkmcnt(0)\ns_barrier")
    srd(b, S_WS, PT['WS'], W.END)
    b.label("L_ww_ow")
    b(f"s_add_u32 s{S_ID}, s{S_ID}, 63\nv_lshrrev_b32 v0, 4, v0\ns_lshl_b32 s{S_T0}, s{S_WAVE}, 6\nv_add_u32 v0, s{S_T0}, v0")
    call("L_bw_ip")
    b("s_branch L_bw_last")
    attention(b); truemax(b); request(b); bulk(b); merge(b); project(b); prequest(b); init_proj(b); init_att(b, lo, hi)
```

```python
import struct, math
def v(b, n=1): return "v%d" % b if n == 1 else "v[%d:%d]" % (b, b+n-1)
def a(b, n=1): return "a%d" % b if n == 1 else "a[%d:%d]" % (b, b+n-1)
def s(b, n=1): return "s%d" % b if n == 1 else "s[%d:%d]" % (b, b+n-1)
def fhex(x): return hex(struct.unpack('<I', struct.pack('<f', x))[0])
def cvt(d, x): return f"v_cvt_pk_bf16_f32 v{d}, v{x}, v{x+1}"

PT = dict(X=64, MEM0=66, Q=68, K=70, V=72, O=74, WQKV=80, WO=82, OUT=84, DBG=86, WS=88)

XB = 2048*576*2
class W:
    TEAM = 0
    PROG = 0x60000
    ARCH = 0x78000
    X1 = ARCH + 2*64*9216
    X2 = X1 + XB
    X3 = X2 + XB
    OB = X3 + XB
    QB = OB + 2*XB
    QB_L = 64*32*3584
    O = QB + 2*QB_L
    O_L = 64*2*32*4096
    KV = O + 2*O_L
    KV_L = 64*32*16384
    TRACE = KV + 2*KV_L
    END = TRACE + 256*8192
PSH = 5
P_TEAM, P_HWP, P_HWF, P_OW, P_QW, P_BW, P_WW, P_HL = [x << PSH for x in (0, 128, 512, 896, 1152, 1408, 1664, 1920)]
LATE0, LATE1, NWW1 = 56, 58, 47
D_T0, D_SLOW, D_TB, D_TW = 0, 4, 8, 128

N_HW, N_OW, N_QW, N_BW = 96, 48, 16, 64
OOB = 0x40000000
TIMEOUT = 400000
LDS_BYTES = 163840

S_WAVE, S_ID = 20, 21
S_WS = 12
S_XI = 16
S_XO = 24
S_WG = 28
S_LAY, S_SEG, S_NEED = 32, 33, 38
S_T0, S_T1, S_T2, S_TO = 34, 35, 36, 37
S_ONE = 39

def srd(b, r, ptr, nbytes, off=None):
    if off is None:
        b(f"s_mov_b32 s{r}, s{ptr}\ns_mov_b32 s{r+1}, s{ptr+1}")
    else:
        b(f"s_add_u32 s{r}, s{ptr}, {off}\ns_addc_u32 s{r+1}, s{ptr+1}, 0")
    b(f"s_mov_b32 s{r+2}, {nbytes}\ns_mov_b32 s{r+3}, 0x20000")

TRACE_ON = [False]
S_TR = 90
def trace_init(b, gid):
    if not TRACE_ON[0]: return
    b(f"s_lshl_b32 s{S_TR}, s{gid}, 13")
    srd(b, 96, PT['WS'], 256*8192, W.TRACE)
def trace(b, code, t0, wave=0, check=True):
    if TRACE_ON[0] != True: return
    L = uid("t")
    if check: b(f"s_cmp_lg_u32 s{S_WAVE}, {wave}\ns_cbranch_scc1 {L}")
    b(f"""
    s_memrealtime s[92:93]
    s_waitcnt lgkmcnt(0)
    v_mov_b32 v{t0}, {code}
    v_mov_b32 v{t0+1}, s92
    s_mov_b64 exec, 1
    buffer_store_dwordx2 {v(t0,2)}, off, s[96:99], s{S_TR}
    s_mov_b64 exec, -1
    s_add_u32 s{S_TR}, s{S_TR}, 8
    {L}:
    """)
    b.vm = [x for x in b.vm if "s[96:99]" not in x.text]

def prof(b, k):
    if TRACE_ON[0] != 3: return
    r = 56 + k if k < 8 else k - 4
    b(f"s_memtime s[92:93]\ns_waitcnt lgkmcnt(0)\ns_sub_u32 s93, s92, s91\ns_mov_b32 s91, s92\ns_add_u32 s{r}, s{r}, s93")
def prof_init(b):
    if TRACE_ON[0] != 3: return
    for r in list(range(56, 64)) + list(range(4, 12)): b(f"s_mov_b32 s{r}, 0")
    b("s_memtime s[92:93]\ns_memrealtime s[94:95]\ns_waitcnt lgkmcnt(0)\ns_mov_b32 s91, s92")
def prof_dump(b):
    if TRACE_ON[0] != 3: return
    b("s_memrealtime s[92:93]\ns_waitcnt lgkmcnt(0)\ns_sub_u32 s11, s92, s94")
    for i, r in enumerate(list(range(56, 64)) + list(range(4, 12))): b(f"v_mov_b32 v{8+i}, s{r}")
    b(f"s_lshl_b32 s92, s{S_WAVE}, 6\ns_add_u32 s92, s92, s{S_TR}")
    for i in range(4): b(f"buffer_store_dwordx4 v[{8+4*i}:{11+4*i}], off, s[96:99], s92 offset:{16*i}")

_uid = [0]
def uid(p):
    _uid[0] += 1
    return f"L_{p}{_uid[0]}"

def wait_words(b, va, so, need, tmp, sleep=2, code=1, scale=True):
    L = uid("w")
    if scale: b(f"v_lshlrev_b32 v{va}, {PSH}, v{va}")
    b.label(L)
    b(f"""
    buffer_load_dword v{tmp}, v{va}, s[{S_WS}:{S_WS+3}], s{so} offen sc1
    s_add_u32 s{S_TO}, s{S_TO}, 1
    s_waitcnt vmcnt(0)
    v_cmp_gt_u32 vcc, s{need}, v{tmp}
    s_cbranch_vccz {L}_d
    s_sleep {sleep}
    s_cmp_lt_u32 s{S_TO}, {TIMEOUT}
    s_cbranch_scc1 {L}
    {L}_d:
    """)
    if code: trace(b, code, va)

def signal(b, so, val, t0, t1, barrier=True, code=2):
    L = uid("s")
    if barrier: b("s_waitcnt vmcnt(0) lgkmcnt(0)\ns_barrier")
    vm = list(b.vm)
    b(f"""
    s_cmp_lg_u32 s{S_WAVE}, 0
    s_cbranch_scc1 {L}
    v_mov_b32 v{t0}, s{val}
    v_mov_b32 v{t1}, 0
    s_mov_b64 exec, 1
    buffer_store_dword v{t0}, v{t1}, s[{S_WS}:{S_WS+3}], s{so} offen sc1
    s_mov_b64 exec, -1
    {L}:
    """)
    trace(b, code, t0)
    b.vm = vm

def wait_init(b, t0, t1, worker=True):
    L = uid("i")
    b.label(L)
    b(f"""
    v_mov_b32 v{t0}, 0
    global_load_dword v{t1}, v{t0}, s[{PT['DBG']}:{PT['DBG']+1}] offset:{D_T0} sc1
    global_load_dword v{t0}, v{t0}, s[{PT['DBG']}:{PT['DBG']+1}] offset:{D_TW} sc1
    s_add_u32 s{S_TO}, s{S_TO}, 1
    s_waitcnt vmcnt(0)
    v_min_u32 v{t1}, 32, v{t1}
    v_add_u32 v{t1}, v{t1}, v{t0}
    v_cmp_gt_u32 vcc, 256, v{t1}
    s_cbranch_vccz {L}_d
    s_sleep 4
    s_cmp_lt_u32 s{S_TO}, {TIMEOUT}
    s_cbranch_scc1 {L}
    {L}_d:
    """)
    trace(b, 9, t0)
    if worker: prof_init(b)

def stats_stream(rd_addr, RB, T, st_addr):
    S, Q, X, Y = T, T+1, T+2, T+3
    rd = lambda i: f"ds_read_b128 {v(RB + 4*(i%2),4)}, v{rd_addr} offset:{i*1024}"
    o = [rd(0), rd(1), f"v_mov_b32 v{S}, 0", f"v_mov_b32 v{Q}, 0", None, None, None, None, None, None]
    for i in range(9):
        for k in range(4):
            d = RB + 4*(i%2) + k
            o += [f"v_lshlrev_b32 v{X}, 16, v{d}", f"v_and_b32 v{Y}, 0xffff0000, v{d}"]
            if k == 3 and i + 2 < 9: o.append(rd(i + 2))
            o += [f"v_add_f32 v{S}, v{S}, v{X}", f"v_fmac_f32 v{Q}, v{X}, v{X}", f"v_add_f32 v{S}, v{S}, v{Y}", f"v_fmac_f32 v{Q}, v{Y}, v{Y}"]
    for ctl in ("quad_perm:[1,0,3,2]", "quad_perm:[2,3,0,1]", "row_half_mirror"):
        o += [f"v_add_f32_dpp v{S}, v{S}, v{S} {ctl} row_mask:0xf bank_mask:0xf", f"v_add_f32_dpp v{Q}, v{Q}, v{Q} {ctl} row_mask:0xf bank_mask:0xf"]
    o += [f"v_mul_f32 v{S}, {fhex(1/576)}, v{S}", f"v_mul_f32 v{Q}, {fhex(1/576)}, v{Q}", f"v_fma_f32 v{Q}, -v{S}, v{S}, v{Q}",
          f"v_max_f32 v{Q}, 0, v{Q}", f"v_add_f32 v{Q}, {fhex(1e-5)}, v{Q}", f"v_rsq_f32 v{Q}, v{Q}", None,
          f"ds_write2_b32 v{st_addr}, v{S}, v{Q} offset0:0 offset1:32"]
    return o

def drip(b, lst, nvalu, allow_ds=True):
    n = 0
    while lst and n < nvalu:
        x = lst[0]
        if x is None: lst.pop(0); n += 1; continue
        if callable(x): lst.pop(0); x(); continue
        if not x.startswith("v_"):
            lst.pop(0); b(x); continue
        lst.pop(0); b(x); n += 1

def row_addr(b, dst, lane, t, wx=False):
    b(f"""
    v_lshrrev_b32 v{t}, 3, v{lane}
    v_and_b32 v{dst}, 7, v{lane}
    v_xor_b32 v{dst}, v{dst}, v{t}
    s_lshr_b32 s{S_T0}, s{S_WAVE}, {1 if wx else 2}
    v_xor_b32 v{dst}, s{S_T0}, v{dst}
    s_lshl_b32 s{S_T0}, s{S_WAVE}, 3
    v_add_u32 v{t}, s{S_T0}, v{t}
    v_mul_u32_u24 v{t}, 1152, v{t}
    v_lshl_add_u32 v{dst}, v{dst}, 4, v{t}
    """)
```

```python
from common import *
R = 3
L_XT, L_MT, L_KM, L_VM, L_ST, L_CS, L_RING, SLOT, NSLOT = 0, 36864, 46080, 50176, 54272, 54528, 57344, 24576, 3
L_W, PIECE = 16384, 36864
S_H, S_R, S_PS, S_FS, S_PSL, S_FSL, S_C = 40, 41, 42, 43, 44, 45, 46
S_PA, S_PB = 47, 48
S_RET = 50
S_MPF, S_OO = 52, 53
S_MK = 66
S_PEND = 49
A1, XA, MA, MD = 0, 1, 2, 3
FB, ACC, T = 8, 24, 72
def wfrag(X, i, kk):
    n = ("QKV".index(X)*9 + kk//2)*2 + i
    r = 8*n + 4*(kk % 2)
    return a(r, 4) if r < 256 else v(80 + r - 256, 4)

def load_weights(b):
    b(f"""
    v_and_b32 v24, 63, v0
    v_lshrrev_b32 v25, 4, v24
    s_lshl_b32 s{S_T0}, s{S_WAVE}, 4
    v_add_u32 v26, s{S_T0}, v25
    v_lshlrev_b32 v26, 13, v26
    s_lshl_b32 s{S_T0}, s{S_H}, 8
    v_add_u32 v26, s{S_T0}, v26
    v_lshlrev_b32 v27, 1, v25
    v_and_b32 v40, 15, v24
    v_xor_b32 v27, v27, v40
    """)
    for q in range(4):
        b(f"v_xor_b32 v41, {8*(q>>1)}, v27\nv_lshl_add_u32 v41, v41, 4, v26\nv_add_u32 v{28+q}, {4*q*8192}, v41")
    b(f"""
    v_bfe_u32 v40, v24, 2, 1       ; rp&1
    v_bfe_u32 v41, v24, 3, 1       ; rp>>1
    v_bfe_u32 v42, v24, 4, 1       ; gb&1
    v_bfe_u32 v43, v24, 5, 1       ; gb>>1
    v_and_b32 v44, 3, v24
    v_lshlrev_b32 v44, 3, v44
    v_add_u32 v44, {L_W}, v44
    v_lshl_add_u32 v46, v41, 1, v40
    v_lshl_add_u32 v45, v42, 3, v46
    v_lshl_add_u32 v45, v45, 8, v44
    v_mul_u32_u24 v47, {PIECE}, v43
    v_add_u32 v45, v45, v47
    v_lshl_add_u32 v46, v42, 2, v46      ; swizzle
    s_lshl_b32 s{S_T0}, s{S_WAVE}, 1
    v_xor_b32 v46, s{S_T0}, v46
    v_lshl_add_u32 v48, v46, 5, v45
    v_xor_b32 v46, 1, v46
    v_lshl_add_u32 v50, v46, 5, v45
    v_add_u32 v49, {2*PIECE}, v48
    v_add_u32 v51, {2*PIECE}, v50
    s_mul_i32 s{S_T2}, s{S_WAVE}, {PIECE}
    s_add_u32 s{S_T2}, s{S_T2}, {L_W}
    s_mov_b32 s{S_WG+2}, {576*8192}
    s_mov_b32 s{S_WG+3}, 0x20000
    """)
    seq = [(X, j) for X in "KVQ" for j in range(9)]
    def dma(t):
        X, j = seq[t]
        if j == 0: b(f"s_mov_b32 s{S_WG}, s{PT[X]}\ns_mov_b32 s{S_WG+1}, s{PT[X]+1}")
        b(f"s_mov_b32 s{S_T0}, {j*64*8192}")
        for q in range(4):
            b(f"s_add_u32 m0, s{S_T2}, {(t % 9)*4096 + q*1024}")
            b(f"buffer_load_dwordx4 v{28+q}, s[{S_WG}:{S_WG+3}], s{S_T0} offen lds")
    for t in range(9): dma(t)
    for t in range(27):
        X, j = seq[t]
        issued = min(27, max(9, t + 8))
        b(f"s_waitcnt vmcnt({4*(issued - t - 1)}) lgkmcnt(0)\ns_barrier")
        if t >= 1 and t + 8 < 27: dma(t + 8)
        for i in range(2):
            for hb in range(2):
                f = wfrag(X, i, 2*j + hb); k, r = f[0], int(f[2:f.index(':')])
                for aa in range(2):
                    b(f"ds_read_b64_tr_b16 {k}[{r+2*aa}:{r+2*aa+1}], v{48 + 2*i + hb} offset:{(t % 9)*4096 + aa*1024}")
    b("s_waitcnt lgkmcnt(0)\ns_barrier")

def prefetch(b):
    L = uid("hp")
    b(f"s_cmp_eq_u32 s{S_LAY}, 0\ns_cbranch_scc1 {L}")
    b(f"""
    s_lshl_b32 s{S_NEED}, s{S_PS}, 1
    s_lshr_b32 s{S_T0}, s{S_WAVE}, 1
    s_add_u32 s{S_NEED}, s{S_NEED}, s{S_T0}
    s_mul_i32 s{S_T0}, s{S_NEED}, 3121
    s_lshr_b32 s{S_T0}, s{S_T0}, 16
    s_mul_i32 s{S_T0}, s{S_T0}, 21
    s_sub_u32 s{S_T0}, s{S_NEED}, s{S_T0}
    s_mul_i32 s{S_T0}, s{S_T0}, 12
    s_lshl_b32 s{S_T0}, s{S_T0}, {PSH}
    s_add_u32 s{S_T0}, s{S_T0}, {W.PROG + P_WW}
    s_add_u32 s{S_NEED}, s{S_NEED}, 1
    v_lshrrev_b32 v4, 2, v{A1}
    v_min_u32 v4, 8, v4
    """)
    wait_words(b, 4, S_T0, S_NEED, 5, 1)
    b.label(L)
    b(f"s_mul_i32 s{S_T0}, s{S_PS}, 36864\ns_mul_i32 s{S_T1}, s{S_WAVE}, 9216")
    for i in range(9):
        b(f"s_add_u32 m0, s{S_T1}, {L_XT + i*1024 - i*128}")
        b(f"buffer_load_dwordx4 v{XA}, s[{S_XI}:{S_XI+3}], s{S_T0} offen offset:{128*i} sc1 lds")

def colsums(b):
    for r in range(4): b(f"v_mov_b32 v{FB+r}, s{S_ONE}")
    for kk in range(18):
        for n, (X, i) in enumerate([(X, i) for X in "QKV" for i in range(2)]):
            d = ACC + 4*n
            b(f"v_mfma_f32_16x16x32_bf16 {v(d,4)}, {v(FB,4)}, {wfrag(X,i,kk)}, {'0' if kk == 0 else v(d,4)}")
    b(f"v_and_b32 v4, 15, v0\nv_lshlrev_b32 v4, 2, v4\ns_lshl_b32 s{S_T0}, s{S_WAVE}, 7\nv_add_u32 v4, s{S_T0}, v4")
    for n in range(6): b(f"ds_write_b32 v4, v{ACC+4*n} offset:{L_CS + (n//2)*512 + (n%2)*64}")
    b("s_waitcnt lgkmcnt(0)")

def mem_addr(b):
    b(f"""
    s_lshl_b32 s{S_NEED}, s{S_LAY}, 6
    s_add_u32 s{S_NEED}, s{S_NEED}, s{S_FS}
    s_add_u32 s{S_NEED}, s{S_NEED}, 1
    s_mov_b32 s{S_T0}, {W.PROG + P_TEAM}
    v_lshlrev_b32 v5, 3, v{A1}
    v_and_b32 v5, 4095, v5
    """)
def mem_request(b):
    b.reset()
    b.label("L_hw_mreq")
    b(f"""
    s_sub_u32 s{S_T1}, s{S_NEED}, 1
    s_mul_i32 s{S_T1}, s{S_T1}, 9216
    s_lshl_b32 s{S_T2}, s{S_WAVE}, 10
    s_add_u32 s{S_T1}, s{S_T1}, s{S_T2}
    s_add_u32 s{S_T1}, s{S_T1}, {W.ARCH}
    s_add_u32 m0, s{S_T2}, {L_MT}
    buffer_load_dwordx4 v{A1}, s[{S_WS}:{S_WS+3}], s{S_T1} offen sc1 lds
    s_add_u32 s{S_T1}, s{S_T1}, 4096
    s_add_u32 m0, s{S_T2}, {L_MT + 4096}
    buffer_load_dwordx4 v{A1}, s[{S_WS}:{S_WS+3}], s{S_T1} offen sc1 lds
    s_mov_b32 s{S_MPF}, 1
    s_cmp_lg_u32 s{S_WAVE}, 0
    s_cbranch_scc1 L_hw_mreq1
    s_add_u32 s{S_T1}, s{S_T1}, 4096
    s_mov_b32 m0, {L_MT + 8192}
    buffer_load_dwordx4 v{A1}, s[{S_WS}:{S_WS+3}], s{S_T1} offen sc1 lds
    L_hw_mreq1:
    s_setpc_b64 s[{S_RET}:{S_RET+1}]
    """)

def stage_p(b):
    L = uid("hq")
    RB, ST = ACC, ACC + 8
    b(f"""
    s_mul_i32 s{S_T1}, s{S_WAVE}, 9216
    v_add_u32 v4, s{S_T1}, v{A1}
    v_lshrrev_b32 v{ST+4}, 7, v{A1}
    s_lshl_b32 s{S_T1}, s{S_WAVE}, 5
    s_add_u32 s{S_T1}, s{S_T1}, {L_ST}
    v_lshl_add_u32 v{ST+4}, v{ST+4}, 2, s{S_T1}
    v_xor_b32 v7, 64, v{MD}
    """)
    mem_addr(b)
    b(f"""
    s_cmp_eq_u32 s{S_PEND}, 0
    s_cbranch_scc0 {L}a
    s_waitcnt vmcnt(0)
    {L}a:
    s_waitcnt vmcnt(2)
    s_barrier
    buffer_load_dword v5, v5, s[{S_WS}:{S_WS+3}], s{S_T0} offen sc1
    """)
    rd = lambda kk, tt: f"ds_read_b128 {v(FB + 8*(kk%2) + 4*tt,4)}, v{(MD, 7)[kk%2]} offset:{L_XT + tt*18432 + (kk//2)*1024}"
    def gemm(XS, extra):
        for kk in range(18):
            n = 0
            for X in XS:
                for tt in range(2):
                    for i in range(2):
                        x = v(FB + 8*(kk%2) + 4*tt, 4); wf = wfrag(X, i, kk)
                        if X == 'V': d, A, B = ACC + 32 + 8*i + 4*tt, x, wf
                        else: d, A, B = ACC + (16 if X == 'K' else 0) + 8*tt + 4*i, wf, x
                        b(f"v_mfma_f32_16x16x32_bf16 {v(d,4)}, {A}, {B}, {'0' if kk == 0 else v(d,4)}")
                        if n in (0, 1) and (kk < 17 or XS != "Q"): b(rd((kk + 1) % 18, n))
                        if n == 4*len(XS) - 1: b.wait_lg_for(v(FB + 8*((kk+1)%2), 8 if len(XS) > 1 else 4))
                        drip(b, extra, 2)
                        n += 1
        drip(b, extra, 999)
    def early():
        b(f"s_waitcnt vmcnt(0)\nv_cmp_gt_u32 vcc, s{S_NEED}, v5\ns_barrier\ns_cmp_eq_u32 s{S_PEND}, 0\ns_cbranch_scc1 {L}b")
        signal(b, S_PB, S_PEND, T, T+1, barrier=False, code=4)
        b(f"s_mov_b32 s{S_PEND}, 0")
        b.label(L + "b")
        b(f"s_cbranch_vccnz {L}c\ns_call_b64 s[{S_RET}:{S_RET+1}], L_hw_mreq\n{L}c:")
    def mid():
        b(f"s_waitcnt lgkmcnt({b.lg_after('ds_write')})\ns_barrier")
    MR, CK, CV = T, ACC, T + 4
    post = [None, None, None, None, None, None, mid,
            f"v_bfe_u32 v4, v{A1}, 4, 4", f"v_lshlrev_b32 v4, 2, v4", f"v_lshrrev_b32 v5, 4, v{A1}", f"v_and_b32 v5, 48, v5",
            f"s_lshl_b32 s{S_T0}, s{S_WAVE}, 7", f"v_add_u32 v{T+6}, s{S_T0}, v4", f"v_add_u32 v{T+7}, s{S_T0}, v5",
            f"v_add_u32 v4, {L_ST}, v4",
            f"ds_read2_b32 {v(MR,2)}, v4 offset0:0 offset1:32", None, f"ds_read2_b32 {v(MR+2,2)}, v4 offset0:16 offset1:48", None,
            f"ds_read_b128 {v(CK,4)}, v{T+7} offset:{L_CS + 512}", None, f"ds_read_b128 {v(CK+4,4)}, v{T+7} offset:{L_CS + 512 + 64}", None,
            f"ds_read_b32 v{CV}, v{T+6} offset:{L_CS + 1024}", None, f"ds_read_b32 v{CV+1}, v{T+6} offset:{L_CS + 1024 + 64}", None,
            f"ds_read_b128 {v(ACC+8,4)}, v5 offset:{L_ST}", None, f"ds_read_b128 {v(ACC+12,4)}, v5 offset:{L_ST + 128}"]
    prof(b, 0)
    b(rd(0, 0)); b(rd(0, 1))
    ss = stats_stream(4, RB, ST, ST+4)
    ss.insert(86, early)
    gemm("KV", ss + post)
    prof(b, 1)
    b(f"""
    s_lshl_b32 s{S_T0}, s{S_PS}, 19
    s_lshl_b32 s{S_T1}, s{S_H}, 14
    s_add_u32 s{S_T0}, s{S_T0}, s{S_T1}
    s_lshl_b32 s{S_T1}, s{S_WAVE}, 12
    s_add_u32 s{S_T0}, s{S_T0}, s{S_T1}
    s_mul_i32 s{S_T1}, s{S_LAY}, {W.KV_L}
    s_add_u32 s{S_T0}, s{S_T0}, s{S_T1}
    s_add_u32 s{S_T0}, s{S_T0}, {W.KV}
    s_lshl_b32 s{S_T1}, s{S_WAVE}, 11
    s_add_u32 s{S_T1}, s{S_T1}, s{S_PSL}
    v_add_u32 v4, s{S_T1}, v{A1}
    """)
    st = lambda f: f"buffer_store_dwordx4 {v(ACC+8*f,4)}, v{A1}, s[{S_WS}:{S_WS+3}], s{S_T0} offen offset:{(f-2)*1024} sc1"
    for tt in range(2):
        d = ACC + 16 + 8*tt
        b(f"v_mul_f32 v{T+6}, s{S_C}, v{MR+2*tt+1}")
        for r in range(8): b(f"v_fma_f32 v{d+r}, -v{MR+2*tt}, v{CK+r}, v{d+r}")
        if tt == 1: b(f"ds_read_b128 {v(ACC,4)}, v5 offset:{L_ST + 64}\nds_read_b128 {v(ACC+4,4)}, v5 offset:{L_ST + 128 + 64}")
        for r in range(8): b(f"v_mul_f32 v{d+r}, v{d+r}, v{T+6}")
        for k in range(4): b(cvt(d + k, d + 2*k))
        b(st(2 + tt))
    for i in range(2):
        d = ACC + 32 + 8*i
        for tt in range(2):
            m = (ACC + 8, ACC)[tt]
            for r in range(4): b(f"v_fma_f32 v{d+4*tt+r}, -v{m+r}, v{CV+i}, v{d+4*tt+r}")
            for r in range(4): b(f"v_mul_f32 v{d+4*tt+r}, v{d+4*tt+r}, v{m+4+r}")
        for k in range(4): b(cvt(d + k, d + 2*k))
        b(st(4 + i))
    CQ = (ACC + 20, ACC + 28)
    def late():
        b(f"s_waitcnt vmcnt(0)\nv_cmp_gt_u32 vcc, s{S_NEED}, v6\ns_cmp_lg_u32 s{S_MPF}, 0\ns_cbranch_scc1 {L}d\ns_cbranch_vccnz {L}d\ns_call_b64 s[{S_RET}:{S_RET+1}], L_hw_mreq\n{L}d:")
    ex = [f"v_lshlrev_b32 v6, 3, v{A1}", f"v_and_b32 v6, 4095, v6", f"s_mov_b32 s{S_T0}, {W.PROG + P_TEAM}"] + [None]*6
    for f in (2, 3, 4, 5): ex += [f"ds_write_b128 v4, {v(ACC+8*f,4)} offset:{(f//2)*8192 + (f%2)*1024}"] + [None]*8
    for i in range(2): ex += [f"ds_read_b128 {v(CQ[i],4)}, v{T+7} offset:{L_CS + 64*i}"] + [None]*8
    ex += [f"buffer_load_dword v6, v6, s[{S_WS}:{S_WS+3}], s{S_T0} offen sc1"] + [None]*84 + [late]
    prof(b, 2)
    gemm("Q", ex)
    prof(b, 3)
    b(f"s_lshl_b32 s{S_T1}, s{S_LAY}, 6\ns_add_u32 s{S_T1}, s{S_T1}, s{S_PS}\ns_add_u32 s{S_T1}, s{S_T1}, 1")
    for tt in range(2):
        d = ACC + 8*tt
        for r in range(8): b(f"v_fma_f32 v{d+r}, -v{MR+2*tt}, v{CQ[r//4] + r%4}, v{d+r}")
        for r in range(8): b(f"v_mul_f32 v{d+r}, v{d+r}, v{MR+2*tt+1}")
        for k in range(4): b(cvt(d + k, d + 2*k))
        b(f"ds_write_b128 v4, {v(d,4)} offset:{tt*1024}")
    b("s_waitcnt lgkmcnt(0)\ns_barrier")
    signal(b, S_PA, S_T1, 4, 5, barrier=False)
    prof(b, 4)
    b(f"""
    s_add_u32 s{S_PS}, s{S_PS}, {R}
    s_add_u32 s{S_PSL}, s{S_PSL}, {SLOT}
    s_cmp_eq_u32 s{S_PSL}, {L_RING + NSLOT*SLOT}
    s_cselect_b32 s{S_PSL}, {L_RING}, s{S_PSL}
    """)

def stage_f(b):
    L = uid("hf")
    QF, S0, M, AK, AV = 48, 64, 76, 24, 32
    KF = (24, 28, 40, 44)
    mm = lambda d, A, B, first: f"v_mfma_f32_16x16x32_bf16 {v(d,4)}, {A}, {B}, {'0' if first else v(d,4)}"
    b(f"""
    s_and_b32 s{S_T0}, s{S_WAVE}, 1
    s_lshl_b32 s{S_T0}, s{S_T0}, 10
    s_add_u32 s{S_T0}, s{S_T0}, s{S_FSL}
    v_add_u32 v6, s{S_T0}, v{A1}
    v_add_u32 v7, s{S_FSL}, v{A1}
    """)
    for wq in range(4):
        b(f"ds_read_b128 {v(QF+4*wq,4)}, v6 offset:{wq*2048}")
        for n in range(2): b(f"ds_read_b128 {v(8+16*n+4*wq,4)}, v7 offset:{8192 + wq*2048 + n*1024}")
    mem_addr(b)
    lg = list(b.lg)
    b(f"s_cmp_lg_u32 s{S_MPF}, 0\ns_cbranch_scc1 {L}")
    b("v_mov_b32 v4, v5")
    wait_words(b, 4, S_T0, S_NEED, 5, 1, code=3, scale=False)
    prof(b, 5)
    b(f"""
    s_call_b64 s[{S_RET}:{S_RET+1}], L_hw_mreq
    {L}:
    s_mov_b32 s{S_MPF}, 0
    s_mov_b32 s{S_PEND}, s{S_NEED}
    """)
    b.lg = lg
    sal = f"""s_lshl_b32 s{S_OO}, s{S_FS}, 1
    s_and_b32 s{S_T1}, s{S_WAVE}, 1
    s_add_u32 s{S_OO}, s{S_OO}, s{S_T1}
    s_lshl_b32 s{S_OO}, s{S_OO}, 5
    s_add_u32 s{S_OO}, s{S_OO}, s{S_H}
    s_lshl_b32 s{S_OO}, s{S_OO}, 12
    s_lshr_b32 s{S_T0}, s{S_WAVE}, 1
    s_lshl_b32 s{S_T0}, s{S_T0}, 11
    s_add_u32 s{S_OO}, s{S_OO}, s{S_T0}
    s_mul_i32 s{S_T1}, s{S_LAY}, {W.O_L}
    s_add_u32 s{S_OO}, s{S_OO}, s{S_T1}
    s_add_u32 s{S_OO}, s{S_OO}, {W.O}
    v_add_u32 v{M+2}, s{S_T0}, v{A1}
    s_lshl_b32 s{S_T0}, s{S_T0}, 1
    v_add_u32 v7, s{S_T0}, v7
    s_lshl_b32 s{S_T0}, s{S_WAVE}, 10
    v_add_u32 v6, s{S_T0}, v{A1}
    v_mov_b32 v{M+3}, 0xff800000""".split("\n")
    for wq in range(4):
        for n in range(2):
            b(mm(S0 + 4*n, v(8+16*n+4*wq,4), v(QF+4*wq,4), wq == 0))
            for _ in range(3):
                if sal: b(sal.pop(0))
    assert not sal
    b(f"""
    s_cmp_lt_u32 s{S_PS}, 64
    s_cbranch_scc1 {L}p
    s_waitcnt vmcnt(0)
    s_branch {L}q
    {L}p:
    s_call_b64 s[{S_RET}:{S_RET+1}], L_hw_pre
    s_waitcnt vmcnt(9)
    {L}q:
    s_barrier
    """)
    b.vm = []
    prof(b, 6)
    rd = lambda t: f"ds_read_b128 {v(FB + 4*(t%4),4)}, v{MA} offset:{(t%18)*512}"
    for t in range(3): b(rd(t))
    def step(t, i):
        X, kk = "KV"[t // 18], t % 18
        x, wf = v(FB + 4*(t%4), 4), wfrag(X, i, kk)
        b(mm(AK + 4*i, wf, x, kk == 0) if X == 'K' else mm(AV + 4*i, x, wf, kk == 0))
        if i == 0 and t + 3 < 36: b(rd(t + 3))
        if i == 1 and t + 1 < 36: b.wait_lg_for(v(FB + 4*((t+1)%4), 4))
    ea = [f"v_cndmask_b32 v{S0+k}, v{M+3}, v{S0+k}, s[{S_MK+2*k}:{S_MK+2*k+1}]" for k in range(8)]
    ea += [f"v_max3_f32 v{M}, v{S0}, v{S0+1}, v{S0+2}", f"v_max3_f32 v{M}, v{M}, v{S0+3}, v{S0+4}", f"v_max3_f32 v{M}, v{M}, v{S0+5}, v{S0+6}",
           f"v_max_f32 v{M}, v{M}, v{S0+7}", f"v_cmp_gt_u32 vcc, 512, v{A1}"]
    for t in range(18):
        for i in range(2): step(t, i); drip(b, ea, 2)
    prof(b, 7)
    def sw(op):
        o = []
        for w_ in ("16", "32"):
            o += [f"v_mov_b32 v{M+1}, v{M}", None, f"v_permlane{w_}_swap_b32 v{M}, v{M+1}", f"{op} v{M}, v{M}, v{M+1}"]
        return o
    def mscores():
        for wq in range(4): b(mm(S0 + 8, v(KF[wq],4), v(QF+4*wq,4), wq == 0))
    eb = [None]*2 + [f"v_mul_f32 v{AK+r}, s{S_C}, v{AK+r}" for r in range(8)] + [cvt(AK + k, AK + 2*k) for k in range(4)]
    eb += [f"ds_write_b128 v6, {v(AK,4)} offset:{L_KM}"] + [None]*10 + [lambda: b(f"s_waitcnt lgkmcnt({b.lg_after('ds_write')})\ns_barrier")]
    for wq in range(4): eb += [f"ds_read_b128 {v(KF[wq],4)}, v{A1} offset:{L_KM + wq*1024}", None, None]
    eb += [None]*6 + [mscores]
    for k in range(4): eb += [f"ds_read_b128 {v(KF[k],4)}, v7 offset:{16384 + k*1024}", None]
    eb += [f"v_cndmask_b32 v{S0+8+r}, v{M+3}, v{S0+8+r}, vcc" for r in range(4)]
    eb += [f"v_max3_f32 v{M}, v{M}, v{S0+8}, v{S0+9}", f"v_max3_f32 v{M}, v{M}, v{S0+10}, v{S0+11}"] + sw("v_max_f32")
    eb += [f"v_sub_f32 v{S0+r}, v{S0+r}, v{M}" for r in range(12)]
    for t in range(18, 36):
        for i in range(2): step(t, i); drip(b, eb, 2)
    drip(b, eb, 999)
    prof(b, 8)
    for r in range(4): b(f"v_exp_f32 v{S0+r}, v{S0+r}")
    for k in range(4): b(cvt(AV + k, AV + 2*k))
    b(f"ds_write_b128 v6, {v(AV,4)} offset:{L_VM}")
    for r in range(4, 12): b(f"v_exp_f32 v{S0+r}, v{S0+r}")
    b(f"v_pk_add_f32 {v(M,2)}, {v(S0,2)}, {v(S0+2,2)}")
    for r in range(4, 12, 2): b(f"v_pk_add_f32 {v(M,2)}, {v(M,2)}, {v(S0+r,2)}")
    b("s_waitcnt lgkmcnt(0)\ns_barrier")
    for k in range(2): b(f"ds_read_b128 {v(FB+4*k,4)}, v{M+2} offset:{L_VM + k*1024}")
    b(f"v_add_f32 v{M}, v{M}, v{M+1}")
    for k in range(6): b(cvt(S0 + k, S0 + 2*k))
    OD = QF
    ec = sw("v_add_f32") + [f"v_rcp_f32 v{M}, v{M}"]
    for k in range(4): b(mm(OD + 4*k, v(KF[k],4), v(S0,4), True)); drip(b, ec, 2)
    for k in range(4): b(f"v_mfma_f32_16x16x16_bf16 {v(OD+4*k,4)}, {v(FB+2*k,2)}, {v(S0+4,2)}, {v(OD+4*k,4)}"); drip(b, ec, 2)
    for f in range(2):
        d = OD + 8*f
        for r in range(8): b(f"v_mul_f32 v{d+r}, v{d+r}, v{M}")
        for k in range(4): b(cvt(d + k, d + 2*k))
        b(f"buffer_store_dwordx4 {v(d,4)}, v{A1}, s[{S_WS}:{S_WS+3}], s{S_OO} offen offset:{f*1024} sc1")
    prof(b, 9)
    b(f"s_cmp_lt_u32 s{S_PS}, 64\ns_cbranch_scc1 {L}z")
    signal(b, S_PB, S_PEND, 4, 5, code=4)
    b(f"s_mov_b32 s{S_PEND}, 0")
    b.label(L + "z")
    b.vm = []
    b(f"""
    s_add_u32 s{S_FS}, s{S_FS}, {R}
    s_add_u32 s{S_FSL}, s{S_FSL}, {SLOT}
    s_cmp_eq_u32 s{S_FSL}, {L_RING + NSLOT*SLOT}
    s_cselect_b32 s{S_FSL}, {L_RING}, s{S_FSL}
    """)

def emit(b, nlayers, done):
    b.reset()
    b.label("L_hw")
    b(f"""
    s_and_b32 s{S_H}, s{S_ID}, 31
    s_lshr_b32 s{S_R}, s{S_ID}, 5
    s_lshl_b32 s{S_PA}, s{S_ID}, 2
    s_lshl_b32 s{S_PA}, s{S_PA}, {PSH}
    s_add_u32 s{S_PB}, s{S_PA}, {W.PROG + P_HWF}
    s_add_u32 s{S_PA}, s{S_PA}, {W.PROG + P_HWP}
    s_mov_b32 s{S_C}, {fhex(128**-0.5 * math.log2(math.e))}
    """)
    load_weights(b)
    colsums(b)
    b(f"""
    v_and_b32 v24, 63, v0
    v_lshlrev_b32 v{A1}, 4, v24
    v_and_b32 v25, 15, v24
    v_lshrrev_b32 v26, 4, v24
    s_and_b32 s{S_T0}, s{S_WAVE}, 1
    s_lshl_b32 s{S_T0}, s{S_T0}, 4
    v_add_u32 v27, s{S_T0}, v25
    v_lshlrev_b32 v28, 2, v26
    v_sub_u32 v{MD}, v27, v28
    v_and_b32 v27, 7, v25
    v_lshlrev_b32 v27, 5, v27
    v_lshrrev_b32 v28, 1, v26
    v_lshl_add_u32 v27, v28, 8, v27
    v_and_b32 v28, 1, v26
    v_lshl_add_u32 v27, v28, 4, v27
    v_add_u32 v{MA}, {L_MT}, v27
    s_mov_b32 s{S_LAY}, 0
    """)
    row_addr(b, XA, 24, 27)
    for k in range(8): b(f"v_cmp_le_i32 s[{S_MK+2*k}:{S_MK+2*k+1}], {16*(k//4) + k%4}, v{MD}")
    b(f"""
    v_bfe_u32 v6, v{A1}, 4, 3
    v_lshrrev_b32 v7, 8, v{A1}
    v_xor_b32 v7, v7, v6
    v_lshlrev_b32 v7, 4, v7
    v_lshl_add_u32 v6, v6, 7, v7
    v_bfe_u32 v7, v{A1}, 7, 1
    v_mul_u32_u24 v7, 9216, v7
    v_add_u32 v{MD}, v6, v7
    """)
    b(f"s_mov_b32 s{S_PEND}, 0\ns_mov_b32 s{S_MPF}, 0")
    srd(b, S_XI, PT['X'], XB)
    wait_init(b, 4, 5)
    b.label("L_hw_layer")
    b(f"s_mov_b32 s{S_PS}, s{S_R}\ns_mov_b32 s{S_FS}, s{S_R}\ns_mov_b32 s{S_PSL}, {L_RING}\ns_mov_b32 s{S_FSL}, {L_RING}")
    b.label("L_hw_first")
    b(f"s_call_b64 s[{S_RET}:{S_RET+1}], L_hw_pre")
    b.label("L_hw_loop")
    b(f"s_cmp_ge_u32 s{S_PS}, 64\ns_cbranch_scc1 L_hw_f")
    stage_p(b)
    b(f"s_sub_u32 s{S_T0}, s{S_PS}, s{S_FS}\ns_cmp_lt_u32 s{S_T0}, {NSLOT*R}\ns_cbranch_scc1 L_hw_first")
    b.label("L_hw_f")
    stage_f(b)
    b(f"s_cmp_lt_u32 s{S_FS}, 64\ns_cbranch_scc1 L_hw_loop")
    b(f"s_add_u32 s{S_LAY}, s{S_LAY}, 1\ns_cmp_ge_u32 s{S_LAY}, {nlayers}\ns_cbranch_scc1 {done}")
    srd(b, S_XI, PT['WS'], XB, W.X2)
    b("s_branch L_hw_layer")
    b.reset()
    b.label("L_hw_pre")
    prefetch(b)
    b(f"s_setpc_b64 s[{S_RET}:{S_RET+1}]")
    mem_request(b)
```

```python
from common import *
S_GRP, S_TT, S_CG, S_PA, S_OO, S_FO = 40, 41, 42, 43, 44, 45
A1, XA, RA, PA, PF = 0, 1, 2, 3, 6
ACC, FB = 8, 24
NF = 24
def wfrag(kk, i):
    r = 4*(kk*3 + i)
    return a(r, 4) if r < 256 else v(128 + r - 256, 4)

def row96_addr(b, dst, rowf, col_s):
    for q in range(3):
        b(f"""
        v_and_b32 v4, 63, v0
        v_add_u32 v4, {64*q}, v4
        v_mul_u32_u24 v5, 10923, v4
        v_lshrrev_b32 v5, 16, v5
        v_mul_u32_u24 v6, 6, v5
        v_sub_u32 v4, v4, v6
        """)
        rowf(5)
        b(f"v_mul_u32_u24 v5, 1152, v5\nv_lshl_add_u32 v5, v4, 4, v5\nv_add_u32 v{dst+q}, s{col_s}, v5")

def load96(b, steps, frag, rd):
    b(f"""
    s_mul_i32 s{S_T2}, s{S_WAVE}, 36864
    v_and_b32 v4, 63, v0
    v_lshrrev_b32 v5, 2, v4
    v_mul_u32_u24 v5, 96, v5
    v_and_b32 v4, 3, v4
    v_lshl_add_u32 v5, v4, 3, v5
    v_add_u32 v{rd}, s{S_T2}, v5
    """)
    n = len(steps)
    def dma(t):
        ad, so = steps[t]
        b(f"s_mov_b32 s{S_T0}, {so}")
        for q in range(3):
            b(f"s_add_u32 m0, s{S_T2}, {(t % 12)*3072 + q*1024}")
            b(f"buffer_load_dwordx4 v{ad+q}, s[{S_WG}:{S_WG+3}], s{S_T0} offen lds")
    for t in range(min(12, n)): dma(t)
    for t in range(n):
        issued = min(n, max(12, t + 11))
        b(f"s_waitcnt vmcnt({3*(issued - t - 1)}) lgkmcnt(0)")
        if t >= 1 and t + 11 < n: dma(t + 11)
        for i in range(3):
            f = frag(t, i); k, r = f[0], int(f[2:f.index(':')])
            for aa in range(2):
                b(f"ds_read_b64_tr_b16 {k}[{r+2*aa}:{r+2*aa+1}], v{rd} offset:{(t % 12)*3072 + aa*1536 + i*32}")
    b("s_waitcnt lgkmcnt(0)\ns_barrier")

def emit(b, nlayers, done):
    b.reset()
    b.label("L_ow")
    b(f"""
    s_cmp_ge_u32 s{S_ID}, 24
    s_cselect_b32 s{S_GRP}, 1, 0
    s_mul_i32 s{S_T0}, s{S_GRP}, 24
    s_sub_u32 s{S_T0}, s{S_ID}, s{S_T0}
    s_lshl_b32 s{S_PA}, s{S_GRP}, 5
    s_add_u32 s{S_PA}, s{S_PA}, s{S_T0}
    s_lshl_b32 s{S_PA}, s{S_PA}, 2
    s_lshl_b32 s{S_PA}, s{S_PA}, {PSH}
    s_add_u32 s{S_PA}, s{S_PA}, {W.PROG + P_OW}
    s_cmp_ge_u32 s{S_T0}, 12
    s_cselect_b32 s{S_TT}, 1, 0
    s_mul_i32 s{S_T1}, s{S_TT}, 12
    s_sub_u32 s{S_CG}, s{S_T0}, s{S_T1}
    s_mul_i32 s{S_T1}, s{S_CG}, 96
    s_mul_i32 s{S_T0}, s{S_WAVE}, {1024*1152}
    s_add_u32 s{S_T1}, s{S_T1}, s{S_T0}
    """)
    srd(b, S_WG, PT['O'], 4096*1152)
    row96_addr(b, 8, lambda r: None, S_T1)
    load96(b, [(8, kk*32*1152) for kk in range(32)], wfrag, 12)
    b(f"""
    v_mul_u32_u24 v5, 10923, v0
    v_lshrrev_b32 v5, 16, v5
    v_mul_u32_u24 v6, 6, v5
    v_sub_u32 v4, v0, v6
    v_lshrrev_b32 v6, 1, v4
    v_lshlrev_b32 v6, 10, v6
    v_and_b32 v7, 1, v4
    v_lshl_add_u32 v6, v7, 9, v6
    v_lshl_add_u32 v{RA}, v5, 4, v6
    s_lshl_b32 s{S_T0}, s{S_TT}, 4
    v_add_u32 v5, s{S_T0}, v5
    v_mul_u32_u24 v5, 1152, v5
    v_lshl_add_u32 v5, v4, 4, v5
    s_mul_i32 s{S_T0}, s{S_CG}, 96
    v_add_u32 v5, s{S_T0}, v5
    v_mov_b32 v6, {OOB}
    v_cmp_gt_u32 vcc, 96, v0
    v_cndmask_b32 v{XA}, v6, v5, vcc
    v_and_b32 v4, 63, v0
    v_lshlrev_b32 v{A1}, 4, v4
    s_mov_b32 s{S_LAY}, 0
    """)
    srd(b, S_XI, PT['X'], XB); srd(b, S_XO, PT['WS'], XB, W.X1)
    wait_init(b, 4, 5)
    def word(seg):
        b(f"""
        s_mul_i32 s{S_T0}, {seg}, 21846
        s_lshr_b32 s{S_T0}, s{S_T0}, 16
        s_mul_i32 s{S_T0}, s{S_T0}, 3
        s_sub_u32 s{S_T0}, {seg}, s{S_T0}
        s_lshl_b32 s{S_T0}, s{S_T0}, 7
        s_lshl_b32 s{S_FO}, s{S_WAVE}, 5
        s_add_u32 s{S_FO}, s{S_FO}, s{S_T0}
        s_lshl_b32 s{S_FO}, s{S_FO}, {PSH}
        s_add_u32 s{S_FO}, s{S_FO}, {W.PROG + P_HWF}
        """)
    b(f"v_lshlrev_b32 v{PA}, 3, v{A1}\nv_and_b32 v{PA}, 1023, v{PA}")
    b.label("L_ow_layer")
    b(f"s_mov_b32 s{S_SEG}, s{S_GRP}\nv_mov_b32 v{PF}, 0")
    word(f"s{S_SEG}")
    b.label("L_ow_loop")
    b(f"""
    s_lshl_b32 s{S_NEED}, s{S_LAY}, 6
    s_add_u32 s{S_NEED}, s{S_NEED}, s{S_SEG}
    s_lshl_b32 s{S_OO}, s{S_NEED}, 1
    s_add_u32 s{S_NEED}, s{S_NEED}, 1
    v_cmp_gt_u32 vcc, s{S_NEED}, v{PF}
    s_add_u32 s{S_OO}, s{S_OO}, s{S_TT}
    s_lshl_b32 s{S_OO}, s{S_OO}, 2
    s_add_u32 s{S_OO}, s{S_OO}, s{S_WAVE}
    s_lshl_b32 s{S_OO}, s{S_OO}, 15
    s_add_u32 s{S_OO}, s{S_OO}, {W.O}
    s_cbranch_vccz L_ow_go
    v_mov_b32 v4, v{PA}
    """)
    wait_words(b, 4, S_FO, S_NEED, 5, 1, scale=False, code=0)
    b.label("L_ow_go")
    trace(b, 1, 4)
    prof(b, 0)
    def ld(kk):
        if kk and kk % 4 == 0: b(f"s_add_u32 s{S_OO}, s{S_OO}, 4096")
        b(f"buffer_load_dwordx4 {v(FB + 4*(kk % NF),4)}, v{A1}, s[{S_WS}:{S_WS+3}], s{S_OO} offen offset:{(kk % 4)*1024} sc1")
    for kk in range(NF): ld(kk)
    prof(b, 1)
    for kk in range(32):
        for i in range(3):
            d = ACC + 4*i
            b(f"v_mfma_f32_16x16x32_bf16 {v(d,4)}, {wfrag(kk,i)}, {v(FB + 4*(kk % NF),4)}, {'0' if kk == 0 else v(d,4)}")
        if kk + NF < 32: ld(kk + NF)
        if kk == 10:
            b(f"s_add_u32 s{S_T2}, s{S_SEG}, 2"); word(f"s{S_T2}")
        if kk == 8:
            b(f"s_mul_i32 s{S_T1}, s{S_SEG}, 36864")
            b(f"buffer_load_dwordx4 v[20:23], v{XA}, s[{S_XI}:{S_XI+3}], s{S_T1} offen sc1")
    prof(b, 2)
    b(f"s_mul_i32 s{S_T0}, s{S_WAVE}, 3072\nv_add_u32 v4, s{S_T0}, v{A1}")
    for i in range(3): b(f"ds_write_b128 v4, {v(ACC+4*i,4)} offset:{i*1024}")
    b("s_waitcnt lgkmcnt(0)\ns_barrier")
    b(f"s_cmp_ge_u32 s{S_WAVE}, 2\ns_cbranch_scc1 L_ow_sig")
    for w in range(4):
        for hf in range(2): b(f"ds_read_b128 {v(FB + 8*w + 4*hf,4)}, v{RA} offset:{w*3072 + hf*256}")
    for k in range(4):
        b(f"v_lshlrev_b32 v{ACC+2*k}, 16, v{20+k}\nv_and_b32 v{ACC+2*k+1}, 0xffff0000, v{20+k}")
    for w in range(1, 4):
        for r in range(8): b(f"v_add_f32 v{FB+r}, v{FB+r}, v{FB+8*w+r}")
    for r in range(8): b(f"v_add_f32 v{FB+r}, v{FB+r}, v{ACC+r}")
    for k in range(4): b(cvt(FB + k, FB + 2*k))
    b(f"buffer_store_dwordx4 {v(FB,4)}, v{XA}, s[{S_XO}:{S_XO+3}], s{S_T1} offen sc1")
    b.label("L_ow_sig")
    prof(b, 3)
    b(f"buffer_load_dword v{PF}, v{PA}, s[{S_WS}:{S_WS+3}], s{S_FO} offen sc1")
    signal(b, S_PA, S_NEED, 4, 5)
    prof(b, 4)
    b(f"s_add_u32 s{S_SEG}, s{S_SEG}, 2\ns_cmp_lt_u32 s{S_SEG}, 64\ns_cbranch_scc1 L_ow_loop")
    b(f"s_add_u32 s{S_LAY}, s{S_LAY}, 1\ns_cmp_ge_u32 s{S_LAY}, {nlayers}\ns_cbranch_scc1 {done}")
    srd(b, S_XI, PT['WS'], XB, W.X2); srd(b, S_XO, PT['WS'], XB, W.X3)
    b("s_branch L_ow_layer")
```

```python
from asmb import Asm
import common as C

PART_BYTES = 5*4*32*512
MEMX_SLOT = 9216
class Lay:
    PART = 0
    MEMX = PART_BYTES
    FLAG = MEMX + 3*MEMX_SLOT
    END = FLAG + 4096
assert Lay.END <= C.W.PROG
KV_BYTES = 64*32*16384

L_MEM = 0
L_SX = 9216
L_SM = 13312
L_O = 14336
L_DUMMY = 163840
L_W = 16384
PIECE = 36864
LDS_BYTES = 163840

CH = (0,1,2,3,8,4,5,6,7)
POS = {c: k for k, c in enumerate(CH)}
ORDER = ["Q0","K0","Q1","K1","Q2","K2","Q3","K3","Q8","K8","Q4","Q5","Q6","Q7","K4","K5","K6","K7",
         "V4","V5","V6","V7","V0","V1","V2","V3","V8"] + ["O%d" % i for i in (0,1,2,3,8,4,5,6,7)]
LDS_STAGES = ["Q0","Q2","K3","Q6","K6","V8","O0","O8","O7"]
REG_STAGES = [s for s in ORDER if s not in LDS_STAGES]
def wreg(n):
    if n < 32: return "a[%d:%d]" % (8*n, 8*n+7), ('a', 8*n)
    b = 80 + 8*(n-32)
    return "v[%d:%d]" % (b, b+7), ('v', b)
WOP = {}
for i, s in enumerate(REG_STAGES):
    WOP[(s,0)] = wreg(2*i); WOP[(s,1)] = wreg(2*i+1)
for s in LDS_STAGES:
    WOP[(s,0)] = ("v[8:15]", ('v', 8)); WOP[(s,1)] = ("v[16:23]", ('v', 16))

A1, A2, IDX, TMP, SEL, AD0, AD1 = 0, 1, 2, 3, 4, 6, 7
RING, VX, QA, KA, KX, T1, T2 = 24, 40, 48, 56, 64, 72, 76
PR, FA = T1, T1+2
def v(b, n=1): return "v%d" % b if n == 1 else "v[%d:%d]" % (b, b+n-1)

S_WS, S_KV = 12, 16
S_WAVE, S_HEAD = 20, 21
S_STEP, S_TAG = 22, 23
S_PST = 24
S_NEED = 25
S_PS2 = 26
S_RLD = 27
S_RST = 28
S_MNEXT, S_MCUR = 29, 30
S_KVO = 31
S_C = 32
S_H288 = 33
S_XM = 58
S_FB = 52
S_QM = 56
S_PG = 8
S_PT = 48
S_LAY, S_BARN = 9, 10
S_SL, S_SH = 2, 3
AW = 2
S_GF = 11
S_AR = 44
S_T0, S_T1, S_T2 = 34, 35, 36
S_TO = 37
S_BND = 38
S_ONE = 39
S_FL = 40
NREP = 1
S_W = 40
TIMEOUT = 400000
import struct, math
SCALE_HEX = hex(struct.unpack('<I', struct.pack('<f', 128**-0.5 * math.log2(math.e)))[0])

def prologue_weights(b, ptr_regs):
    LANE = 24
    b(f"v_and_b32 v{LANE}, 63, v0")
    b(f"""
    v_lshrrev_b32 v25, 4, v{LANE}
    s_lshl_b32 s{S_T0}, s{S_WAVE}, 4
    v_add_u32 v26, s{S_T0}, v25
    v_lshlrev_b32 v26, 13, v26
    s_lshl_b32 s{S_T0}, s{S_HEAD}, 8
    v_add_u32 v26, s{S_T0}, v26
    v_and_b32 v27, 2, v25
    v_and_b32 v40, 15, v{LANE}
    v_xor_b32 v27, v27, v40
    """)
    for q in range(4):
        b(f"""
        v_xor_b32 v41, {4*q}, v27
        v_lshlrev_b32 v41, 4, v41
        v_add_u32 v41, v41, v26
        v_add_u32 v{28+q}, {4*q*8192}, v41
        """)
    b(f"""
    v_lshrrev_b32 v25, 3, v{LANE}
    s_lshl_b32 s{S_T0}, s{S_WAVE}, 5
    v_add_u32 v26, s{S_T0}, v25
    v_mul_u32_u24 v26, 1152, v26
    s_mul_i32 s{S_T0}, s{S_HEAD}, 147456
    v_add_u32 v26, s{S_T0}, v26
    v_lshrrev_b32 v27, 5, v{LANE}
    v_lshlrev_b32 v27, 1, v27
    v_and_b32 v40, 7, v{LANE}
    v_xor_b32 v27, v27, v40
    """)
    for q in range(4):
        b(f"""
        v_xor_b32 v41, {4*(q>>1)}, v27
        v_lshlrev_b32 v41, 4, v41
        v_add_u32 v41, v41, v26
        v_add_u32 v{32+q}, {8*q*1152}, v41
        """)
    b(f"""
    v_bfe_u32 v40, v{LANE}, 2, 1       ; rp&1
    v_bfe_u32 v41, v{LANE}, 3, 1       ; rp>>1
    v_bfe_u32 v42, v{LANE}, 4, 1       ; gb&1
    v_bfe_u32 v43, v{LANE}, 5, 1       ; gb>>1
    v_and_b32 v44, 3, v{LANE}          ; cc
    v_lshlrev_b32 v44, 3, v44
    v_add_u32 v44, {L_W}, v44
    v_lshl_add_u32 v46, v42, 1, v40
    v_lshl_add_u32 v46, v41, 2, v46
    v_lshl_add_u32 v45, v46, 9, v44
    v_mul_u32_u24 v47, {PIECE}, v43
    v_add_u32 v45, v45, v47
    s_lshl_b32 s{S_T0}, s{S_WAVE}, 1
    v_xor_b32 v46, s{S_T0}, v46
    v_lshl_add_u32 v48, v46, 5, v45    ; (i=0,hb=0)
    v_xor_b32 v46, 1, v46
    v_lshl_add_u32 v50, v46, 5, v45    ; (i=1,hb=0)
    v_add_u32 v49, {2*PIECE}, v48
    v_add_u32 v51, {2*PIECE}, v50
    v_lshlrev_b32 v45, 4, v42
    v_lshl_add_u32 v45, v43, 3, v45
    v_lshl_add_u32 v45, v41, 2, v45
    v_add_u32 v45, v45, v40
    v_lshl_add_u32 v45, v45, 7, v44
    v_lshl_add_u32 v46, v42, 1, v41
    v_xor_b32 v46, s{S_WAVE}, v46
    v_lshl_add_u32 v52, v46, 5, v45    ; (kappa=0,hb=0)
    v_add_u32 v53, {PIECE}, v52
    v_add_u32 v54, {2*PIECE}, v52
    v_add_u32 v55, {3*PIECE}, v52
    s_mul_i32 s{S_T2}, s{S_WAVE}, {PIECE}
    s_add_u32 s{S_T2}, s{S_T2}, {L_W}
    v_lshlrev_b32 v{A2}, 4, v{LANE}
    v_add_u32 v{A2}, s{S_T2}, v{A2}
    s_mov_b32 s{S_W+2}, {576*8192}
    s_mov_b32 s{S_W+3}, 0x20000
    """)
    seq = REG_STAGES + LDS_STAGES
    cur = [None]
    def dma(t):
        s = seq[t]; X, j = s[0], int(s[1]); reg = t % 9
        if cur[0] != X:
            b(f"s_mov_b32 s{S_W}, s{ptr_regs[X]}\ns_mov_b32 s{S_W+1}, s{ptr_regs[X]+1}"); cur[0] = X
        b(f"s_mov_b32 s{S_T0}, {j*64*8192 if X != 'O' else j*128}")
        for q in range(4):
            b(f"s_add_u32 m0, s{S_T2}, {reg*4096 + q*1024}")
            b(f"buffer_load_dwordx4 v{(28 if X != 'O' else 32)+q}, s[{S_W}:{S_W+3}], s{S_T0} offen lds")
    def wb(t):
        reg = t % 9; base = 56 if t % 2 == 0 else 8
        for k in range(4):
            b(f"ds_write_b128 v{A2}, v[{base+4*k}:{base+4*k+3}] offset:{reg*4096 + k*1024}")
    for t in range(9): dma(t)
    for t in range(36):
        s = seq[t]; X = s[0]; reg = t % 9
        issued = min(36, max(9, t + 8))
        b(f"s_waitcnt vmcnt({4*(issued - t - 1)}) lgkmcnt(0)")
        b("s_barrier")
        if t >= 1 and t + 8 < 36: dma(t + 8)
        if t - 1 >= 27: wb(t - 1)
        for op in range(2):
            if t < 27: kind, base = WOP[(s, op)][1]
            else: kind, base = 'v', (56 if t % 2 == 0 else 8) + 8*op
            for hb in range(2):
                for a in range(2):
                    r = base + 4*hb + 2*a
                    if X != 'O': ad, off = 48 + 2*op + hb, reg*4096 + a*256
                    else: ad, off = 52 + 2*op + hb, reg*4096 + a*256
                    b(f"ds_read_b64_tr_b16 {kind}[{r}:{r+1}], v{ad} offset:{off}")
    b("s_waitcnt lgkmcnt(0)\ns_barrier")
    wb(35)
    b("s_waitcnt lgkmcnt(0)")

def consts(b):
    b(f"""
    v_and_b32 v24, 63, v0
    v_lshlrev_b32 v{A1}, 4, v24
    v_and_b32 v25, 1, v24
    v_mov_b32 v{IDX}, 0x4444
    v_mov_b32 v26, 0xeeee
    v_cmp_eq_u32 vcc, 1, v25
    v_cndmask_b32 v{IDX}, v{IDX}, v26, vcc
    ; Sel16
    v_bfe_u32 v26, v24, 2, 2
    v_lshrrev_b32 v27, 4, v24
    v_cmp_eq_u32 vcc, v26, v27
    v_mov_b32 v28, 0x3f803f80
    v_cndmask_b32 v28, 0, v28, vcc
    v_cmp_eq_u32 vcc, 1, v25
    v_cndmask_b32 v{SEL}, v28, 0, vcc
    v_cndmask_b32 v{SEL+1}, 0, v28, vcc
    v_and_b32 v{AD0}, 0xffffffdf, v{A1}
    v_lshlrev_b32 v28, 6, v26
    v_lshl_add_u32 v28, v25, 5, v28
    v_bfe_u32 v29, v24, 4, 1
    v_lshl_add_u32 v28, v29, 4, v28
    v_bfe_u32 v29, v24, 5, 1
    v_lshl_add_u32 v28, v29, 8, v28
    s_lshl_b32 s{S_T0}, s{S_WAVE}, 9
    s_add_u32 s{S_T0}, s{S_T0}, {L_O}
    v_add_u32 v29, s{S_T0}, v28
    v_add_u32 v28, {L_DUMMY}, v28
    v_bfe_u32 v30, v24, 1, 1
    v_cmp_eq_u32 vcc, 1, v30
    v_cndmask_b32 v{AD1}, v29, v28, vcc
    """)

def set_lds_stages(lst):
    global LDS_STAGES, REG_STAGES
    LDS_STAGES = list(lst)
    assert [x for x in ORDER if x in LDS_STAGES] == LDS_STAGES and len(LDS_STAGES) == 9
    REG_STAGES = [x for x in ORDER if x not in LDS_STAGES]
    WOP.clear()
    for i, x in enumerate(REG_STAGES):
        WOP[(x,0)] = wreg(2*i); WOP[(x,1)] = wreg(2*i+1)
    for x in LDS_STAGES:
        WOP[(x,0)] = ("v[8:15]", ('v', 8)); WOP[(x,1)] = ("v[16:23]", ('v', 16))

class Loop:
    def __init__(self, b, w, st, P):
        self.b, self.w, self.st, self.P = b, w, st, P
        self.slow = []
        self.bg = []
        self.sfx = f"_{P['name']}_w{w}"
    def slot(self, shadow):
        if self.bg and not any(x.startswith("ds_") for x in shadow):
            self.b(self.bg.pop(0))
        for x in shadow: self.b(x)
    def smf(self, stage, op, acc, mem, *shadow):
        if stage in LDS_STAGES:
            assert not any(f"v[{8+8*op}:" in x or f"v[{12+8*op}:" in x for x in self.bg), (stage, self.bg)
        assert not any(x.startswith(f"ds_read_b128 v[{mem}:") for x in self.bg), (stage, self.bg)
        self.b(f"v_smfmac_f32_16x16x64_bf16 {v(acc,4)}, {v(mem,4)}, {WOP[(stage,op)][0]}, v{IDX}")
        if stage in LDS_STAGES:
            nx = (LDS_STAGES.index(stage) + 1) % 9
            self.bg += [self.wread(nx, op, hf) for hf in range(2)]
        self.slot(shadow)
    def mf(self, text, *shadow):
        self.b(text); self.slot(shadow)
    def wread(self, st, op, hf):
        off = st*4096 + op*2048 + hf*1024
        if self.w == 0: return f"ds_read_b128 {v(8+8*op+4*hf,4)}, v{A1} offset:{L_W + off}"
        return f"ds_read_b128 {v(8+8*op+4*hf,4)}, v{A2} offset:{off}"
    def memreg(self, j, vphase=False):
        j = POS[j]
        if vphase and j < 5: return RING + 4*((j + 1) % 4)
        return RING + 4*(j % 4)
    def rdmem(self, j, vphase=False):
        return f"ds_read_b128 {v(self.memreg(j, vphase),4)}, v{A1} offset:{L_MEM + j*1024}"
    def dma_group(self, b, g):
        b(f"s_mov_b32 m0, {L_MEM + g*4096}")
        b(f"s_add_u32 s{S_T0}, s{S_MNEXT}, {g*4096}")
        for n in range(4 if g < 2 else 1):
            b(f"buffer_load_dwordx4 v{A1}, s[{S_WS}:{S_WS+3}], s{S_T0} offen offset:{n*1024} sc1 lds")
    def stamp(self, i):
        if self.P.get("dump") == i:
            b = self.b
            b.join()
            b(f"s_lshl_b32 s{S_T0}, s{S_HEAD}, 2\ns_add_u32 s{S_T0}, s{S_T0}, s{S_WAVE}\ns_mul_i32 s{S_T0}, s{S_T0}, 20480")
            b(f"s_add_u32 s{S_T0}, s{S_T0}, {32*16384*8}")
            for r in range(20):
                b(f"buffer_store_dwordx4 {v(4*r,4)}, v{A1}, s[{S_KV}:{S_KV+3}], s{S_T0} offen")
                b(f"s_add_u32 s{S_T0}, s{S_T0}, 1024")
            b(f"s_branch {self.P['exit']}")
        if self.P.get("stamp"):
            sl = self.P.get("stamps", [0,1,2,3,4,5,6,7,8])
            if i in sl:
                k = sl.index(i)
                self.b.raw(f"    {'s_memrealtime' if self.P.get('rt') else 's_memtime'} s[{64+2*k}:{65+2*k}]")
    def kvstep(self):
        b, P = self.b, self.P
        b(f"s_add_u32 s{S_KVO}, s{S_KVO}, {32*16384}")
        if P.get("kvfix"): b(f"s_and_b32 s{S_KVO}, s{S_KVO}, {32*16384-1}")
    def kvload(self, i):
        return f"buffer_load_dwordx4 {v((KX, KX+4, VX, VX+4)[i],4)}, v{A1}, s[{S_KV}:{S_KV+3}], s{S_KVO} offen offset:{1024*i} sc1"
    def probe(self, b, g):
        if not self.P.get("nocomm") and not self.P.get("noprobe"):
            b(f"buffer_load_dword v{PR+g}, v{FA+g}, s[{S_WS}:{S_WS+3}], s{S_MNEXT} offen sc1")
    def round(self, b, g):
        self.probe(b, g)
        self.dma_group(b, g)
        if g == 0: self.dma_group(b, 2)
    def probe_check(self, g):
        if self.P.get("nocomm") or self.P.get("noprobe") or self.w != 3: return [], []
        lab = f"L_pr{g}{self.sfx}"
        def slow(sb):
            sb.label(lab + "_slow")
            self.round(sb, g)
            sb(f"""
            s_add_u32 s63, s63, {1 << (16*g)}
            s_add_u32 s{S_TO}, s{S_TO}, 1
            s_cmp_gt_u32 s{S_TO}, {TIMEOUT}
            s_cbranch_scc1 {lab}_ok
            v_cmp_eq_u32 vcc, -1, v{PR+g}
            s_cbranch_vccnz {lab}_slow
            """)
            if g: sb("s_waitcnt vmcnt(0)")
            sb(f"s_branch {lab}_ok")
        self.slow.append(slow)
        return [f"v_cmp_eq_u32 vcc, -1, v{PR+g}"], [f"s_cbranch_vccnz {lab}_slow", lab + "_ok:"]
    def head(self):
        b, w, P = self.b, self.w, self.P
        self.kvstep()
        if P.get("light"):
            b(f"s_cmp_eq_u32 s{S_STEP}, 3\ns_cbranch_scc1 L_st{self.sfx}\nL_stb{self.sfx}:")
            def st(sb):
                sb.label(f"L_st{self.sfx}")
                sb(f"s_memrealtime s[92:93]\ns_memtime s[94:95]\ns_mov_b32 s60, 0\ns_mov_b32 s61, 0\ns_mov_b32 s62, 0\ns_mov_b32 s63, 0\ns_waitcnt lgkmcnt(0)\ns_branch L_stb{self.sfx}")
            self.slow.append(st)
        z = [f"v_mov_b64 {v(QA+2*i,2)}, 0" for i in range(8)]
        nc = P.get("nocomm")
        if w == 3:
            for x in z: b(x)
            if not nc:
                NP = P.get("npoll", 4)
                lab = f"L_pl{self.sfx}"
                GA = RING + 8
                b(f"v_mov_b32 v{GA+1}, s{S_TAG}")
                b.nop(P["d2"][0] // 4)
                b(f"buffer_store_dword v{GA+1}, v{A1}, s[{S_FL}:{S_FL+3}], 0 offen {self.st}")
                b(f"""
                v_lshrrev_b32 v{GA}, 2, v{A1}
                v_and_b32 v{GA}, 127, v{GA}
                v_and_b32 v{FA}, 0xf0, v{A1}
                v_lshlrev_b32 v{FA}, 2, v{FA}
                v_add_u32 v{GA+3}, {8192 + 60}, v{FA}
                v_bfe_u32 v{GA+2}, v{A1}, 8, 1
                v_lshl_add_u32 v{FA}, v{GA+2}, 11, v{FA}
                v_cmp_gt_u32 vcc, 512, v{A1}
                v_add_u32 v{FA+1}, {4096 + 1024 + 60}, v{FA}
                v_add_u32 v{FA}, {1024 + 60}, v{FA}
                v_cndmask_b32 v{FA}, v{GA+3}, v{FA}, vcc
                """)
                b.nop(P.get("lead", 0) // 4)
                ld = lambda i: f"    buffer_load_dword v{RING+i}, v{GA}, s[{S_WS}:{S_WS+3}], s{S_GF} offen sc1"
                for i in range(NP):
                    b.raw(ld(i))
                    if i < NP - 1: b.nop(P.get("pgap", 8))
                b.label(lab)
                for i in range(NP):
                    b.raw(f"    s_waitcnt vmcnt({NP-1})")
                    b.raw(f"    v_cmp_gt_u32 vcc, s{S_TAG}, v{RING+i}")
                    b.raw(ld(i))
                    b.raw(f"    s_cbranch_vccz {lab}_o")
                b(f"s_add_u32 s60, s60, 1\ns_add_u32 s{S_TO}, s{S_TO}, 1\ns_cmp_lt_u32 s{S_TO}, {TIMEOUT}\ns_cbranch_scc1 {lab}")
                b.raw(".p2align 3")
                b.label(lab + "_o")
                b.vm = []
            self.stamp(9)
            self.round(b, 0)
            c, br = self.probe_check(0)
            for x in c + br: b(x)
            b(f"s_mov_b32 m0, {L_MEM + (4+w)*1024}\ns_add_u32 s{S_T0}, s{S_MNEXT}, {(4+w)*1024}")
            b(f"s_waitcnt vmcnt({3 if P.get('split') else 0})")
        else:
            b("s_waitcnt vmcnt(0)")
            if w == 0 and P.get("mega"):
                if not P.get("light"): C.trace(b, 6, RING, check=False)
                b(f"v_cmp_gt_u32 vcc, s{S_NEED}, v{A2}")
            for x in z: b(x)
            if w == 0 and P.get("mega"):
                lab = f"L_kw{self.sfx}"
                b(f"s_cbranch_vccnz {lab}")
                b.label(lab + "_ok")
                if not P.get("light"): C.trace(b, 7, RING, check=False)
                b(f"s_add_u32 s{S_PG}, s{S_PG}, {128 << C.PSH}\ns_sub_u32 s{S_T0}, s{S_PG}, {384 << C.PSH}\ns_cmp_ge_u32 s{S_T0}, {C.W.PROG + C.P_HWP}\ns_cselect_b32 s{S_PG}, s{S_T0}, s{S_PG}")
                def slow(sb):
                    sb.label(lab)
                    sb(f"""
                    buffer_load_dword v{A2}, off, s[{S_WS}:{S_WS+3}], s{S_PG} sc1
                    s_add_u32 s63, s63, 1
                    s_add_u32 s{S_TO}, s{S_TO}, 1
                    s_cmp_gt_u32 s{S_TO}, {TIMEOUT}
                    s_waitcnt vmcnt(0)
                    s_cbranch_scc1 {lab}_ok
                    v_cmp_gt_u32 vcc, s{S_NEED}, v{A2}
                    s_cbranch_vccnz {lab}
                    s_branch {lab}_ok
                    """)
                self.slow.append(slow)
            b(f"s_mov_b32 m0, {L_MEM + (4+w)*1024}\ns_add_u32 s{S_T0}, s{S_MNEXT}, {(4+w)*1024}")
        self.stamp(8)
        b("s_waitcnt lgkmcnt(0)\ns_barrier")
    def body(self):
        b, w, P = self.b, self.w, self.P
        smf, mr, rd = self.smf, self.memreg, self.rdmem
        sfx = self.sfx
        b.label(f"L_pa{sfx}")
        self.stamp(0)
        mf = self.mf
        b(rd(0))
        if w == 3: self.probe(b, 1)
        b(rd(1))
        b(f"buffer_load_dwordx4 v{A1}, s[{S_WS}:{S_WS+3}], s{S_T0} offen sc1 lds")
        kv = self.kvload
        nc = 1 if P.get("nocomm") else 0
        cvt = lambda d, a: f"v_cvt_pk_bf16_f32 v{d}, v{a}, v{a+1}"
        seq = [(X, j, op) for X, j in [(x[0], int(x[1])) for x in ORDER[:14]] for op in range(2)]
        sh = [[] for _ in seq]
        pb1 = P.get("pb1", 15)
        kvs = [P.get("kv0", 1) + 4*i + w for i in range(4)]
        for i in range(4): sh[kvs[i]].append(kv(i))
        c, br = self.probe_check(1)
        sh[pb1-2] += c; sh[pb1-1] += br
        sh[pb1] += [f"s_waitcnt vmcnt({sum(k <= pb1 for k in kvs)})", "s_barrier"]
        if P.get("split"):
            p0 = P["split"]
            if w == 3: sh[p0] += [f"s_waitcnt vmcnt({(1 if nc or P.get('noprobe') else 2) + sum(k <= p0 for k in kvs)})"]
            sh[p0] += ["s_barrier"]
            sh[p0+1].insert(0, rd(2)); sh[p0+3].insert(0, rd(3)); sh[p0+4].insert(0, rd(8))
        else:
            sh[2].insert(0, rd(2)); sh[5].insert(0, rd(3)); sh[7].insert(0, rd(8))
        sh[pb1+1].insert(0, rd(4)); sh[pb1+3].insert(0, rd(5)); sh[pb1+5].insert(0, rd(6)); sh[pb1+7].insert(0, rd(7))
        if w == 0 and P.get("touch", 1):
            t = kvs[3] + 4
            sh[t] += [f"s_add_u32 s{S_T1}, s{S_KVO}, {32*16384*P.get('touch',1)}", f"v_lshlrev_b32 v{A2}, 3, v{A1}"]
            sh[t+1] += [f"buffer_load_dword v{A2}, v{A2}, s[{S_KV}:{S_KV+3}], s{S_T1} offen ; nowait"]
            sh[t+2] += [f"s_add_u32 s{S_T1}, s{S_T1}, 8192"]
            sh[t+3] += [f"buffer_load_dword v{A2}, v{A2}, s[{S_KV}:{S_KV+3}], s{S_T1} offen ; nowait"]
            if P.get("mega"): sh[t+5] += [f"buffer_load_dword v{A2}, off, s[{S_WS}:{S_WS+3}], s{S_PG} sc1 ; nowait"]
            if P.get("tlat"):
                sh[t] = ["s_memtime s[4:5]"] + sh[t]
                sh[t+6] += [f"s_waitcnt vmcnt({P['tlat']-1})", "s_memtime s[6:7]", "s_waitcnt lgkmcnt(0)", "s_sub_u32 s6, s6, s4", "s_add_u32 s63, s63, s6", "s_max_u32 s62, s62, s6"]
        if w == AW and P.get("mega"):
            assert kvs[3] <= pb1
            sh[pb1-2] += [f"s_sub_u32 s{S_T1}, s{S_NEED}, 1"]
            sh[pb1-1] += [f"v_mov_b32 v{T2}, s{S_T1}"]
            sh[pb1+1] += [f"buffer_store_dword v{T2}, v{A1}, s[{S_PT}:{S_PT+3}], 0 offen sc1"]
        if w == AW:
            sh[pb1+2] += [f"v_add_u32 v{T1}, s{S_H288}, v{A1}"]
            sh[pb1+4].insert(0, f"ds_read_b128 {v(T1,4)}, v{T1} offset:{L_MEM}")
            for k in range(4): sh[pb1+8+k] += [f"v_perm_b32 v{T2+k}, v{T1 + 2*(k//2) + 1}, v{T1 + 2*(k//2)}, s{(S_SL, S_SH)[k%2]}"]
            sh[pb1+12] += [f"buffer_store_dwordx4 {v(T2,4)}, v{A1}, s[{S_AR}:{S_AR+3}], 0 offen sc1"]
        for (X, j, op), shd in zip(seq, sh):
            smf(f"{X}{j}", op, (QA if X == 'Q' else KA) + 4*op, mr(j), *shd)
        self.stamp(14)
        K = [(f"K{j}", op, KA + 4*op, mr(j)) for j in CH[5:] for op in range(2)]
        def k1(*sh): smf(*K.pop(0), *sh)
        k1(cvt(T1, QA))
        k1(cvt(T1+1, QA+2))
        mf(f"v_mfma_f32_16x16x16_bf16 {v(QA,4)}, {v(T1,2)}, {v(SEL,2)}, 0", cvt(T1+2, QA+4), cvt(T1+3, QA+6))
        k1()
        mf(f"v_mfma_f32_16x16x16_bf16 {v(QA+4,4)}, {v(T1+2,2)}, {v(SEL,2)}, 0",
           cvt(T2, QA), cvt(T2+1, QA+2))
        k1(f"v_cmp_u_f32 vcc, v{QA}, v{QA}")
        k1(cvt(T2+2, QA+4))
        k1(*([] if nc else [f"s_cbranch_vccnz L_redo{sfx}"]), f"L_noredo{sfx}:", cvt(T2+3, QA+6))
        k1(f"s_cmp_eq_u32 s{S_STEP}, {P['nstep']}", f"v_mov_b64 {v(QA,2)}, 0")
        k1(f"s_cbranch_scc1 {P['exit']}", f"v_mov_b64 {v(QA+2,2)}, 0")
        assert not K
        mf(f"v_mfma_f32_16x16x32_bf16 {v(KX,4)}, {v(KX,4)}, {v(T2,4)}, 0", cvt(T1, KA), cvt(T1+1, KA+2))
        mf(f"v_mfma_f32_16x16x32_bf16 {v(KX+4,4)}, {v(KX+4,4)}, {v(T2,4)}, 0", cvt(T1+2, KA+4), cvt(T1+3, KA+6))
        def redo(sb):
            sb.label(f"L_redo{sfx}")
            sb(f"""
            s_add_u32 s61, s61, 1
            s_add_u32 s{S_TO}, s{S_TO}, 64
            s_cmp_gt_u32 s{S_TO}, {TIMEOUT}
            s_cbranch_scc1 L_noredo{sfx}
            s_waitcnt vmcnt(0) lgkmcnt(0)
            s_barrier
            """)
            if w < 3: self.dma_group(sb, w)
            if w == 3: sb(f"v_mov_b32 v{FA+1}, 4096")
            sb(f"s_mov_b32 m0, {L_MEM + (4+w)*1024}\ns_add_u32 s{S_T0}, s{S_MNEXT}, {(4+w)*1024}")
            sb.nop(8)
            for i in range(8): sb(f"v_mov_b64 {v(QA+2*i,2)}, 0")
            for op in range(2):
                for hf in range(2):
                    sb(self.wread(0, op, hf))
            sb(f"s_waitcnt vmcnt(0) lgkmcnt(0)\ns_barrier\ns_branch L_pa{sfx}")
        self.slow.append(redo)
        self.stamp(1)
        V = [(f"V{j}", op, QA + 4*op, mr(j, True)) for j in CH[5:] + CH[:5] for op in range(2)]
        nv = [0]
        def v1(*sh):
            nv[0] += 1
            x = V.pop(0)
            b(f"v_smfmac_f32_16x16x64_bf16 {v(x[2],4)}, {v(x[3],4)}, {WOP[(x[0],x[1])][0]}, v{IDX}")
            assert not any(y.startswith(f"ds_read_b128 v[{x[3]}:") for y in self.bg), (x, self.bg)
            if x[0] in LDS_STAGES:
                self.bg += [self.wread((LDS_STAGES.index(x[0]) + 1) % 9, x[1], hf) for hf in range(2)]
            if nv[0] in (2, 4, 6, 8, 10): self.bg.insert(0 if not self.bg or "v[8" in self.bg[0] else len(self.bg), rd(CH[nv[0]//2 - 1], True))
            self.slot(sh)
        sel = lambda r: f"v_cndmask_b32 v{KX+r}, v{KX+r}, v{KX+4+r}, s[{S_XM}:{S_XM+1}]"
        mf(f"v_mfma_f32_16x16x16_bf16 {v(KA,4)}, {v(T1,2)}, {v(SEL,2)}, 0", f"v_mov_b64 {v(QA+4,2)}, 0", f"v_mov_b64 {v(QA+6,2)}, 0")
        mf(f"v_mfma_f32_16x16x16_bf16 {v(KA+4,4)}, {v(T1+2,2)}, {v(SEL,2)}, 0", sel(0), sel(1))
        b(sel(2)); b(sel(3))
        v1(f"ds_write_b128 v{A1}, {v(KX,4)} offset:{L_SX + w*1024}", cvt(T1, KA), cvt(T1+1, KA+2), cvt(T1+2, KA+4), cvt(T1+3, KA+6))
        v1(f"s_mov_b32 s{S_MCUR}, s{S_MNEXT}", f"s_add_u32 s{S_MNEXT}, s{S_MNEXT}, {MEMX_SLOT}")
        mf(f"v_mfma_f32_16x16x32_bf16 {v(KA,4)}, {v(T1,4)}, {v(T2,4)}, 0", f"s_add_u32 s{S_STEP}, s{S_STEP}, 1", f"s_add_u32 s{S_TAG}, s{S_TAG}, 1", f"s_add_u32 s{S_NEED}, s{S_NEED}, 1")
        v1(f"s_cmp_eq_u32 s{S_MNEXT}, {Lay.MEMX + 3*MEMX_SLOT}", f"s_cselect_b32 s{S_MNEXT}, {Lay.MEMX}, s{S_MNEXT}")
        v1(f"ds_write_b64 v{AD0}, {v(KA,2)} offset:{L_SM + (w>>1)*32 + (w&1)*8}")
        b(f"s_waitcnt lgkmcnt(2)\ns_barrier")
        others = [KA+4, T1, T2]
        X = [KX if i == w else others.pop(0) for i in range(4)]
        xr = [f"ds_read_b128 {v(X[i],4)}, v{A1} offset:{L_SX + i*1024}" for i in range(4)]
        own = xr.pop(w)
        MR = [KX+4, KA]
        mrd = [f"ds_read_b128 {v(MR[i],4)}, v{AD0} offset:{L_SM + i*32}" for i in range(2)]
        SX, SM = X[0], MR[0]
        addx = [f"v_add_f32 v{X[0]+r}, v{X[0]+r}, v{X[1]+r}" for r in range(4)] + \
               [f"v_add_f32 v{X[2]+r}, v{X[2]+r}, v{X[3]+r}" for r in range(4)] + \
               [f"v_add_f32 v{X[0]+r}, v{X[0]+r}, v{X[2]+r}" for r in range(4)]
        addm = [f"v_add_f32 v{SM+r}, v{SM+r}, v{MR[1]+r}" for r in range(4)] + \
               [f"v_add_f32 v{SM+r}, v{SM+r}, v{SM+2+r}" for r in range(2)] + \
               [f"v_mul_f32 v{SM+r}, s{S_C}, v{SM+r}" for r in range(2)]
        v1(xr[0]); v1(xr[1]); v1(xr[2])
        for _ in range(P.get("vb", 1)): v1()
        b(f"s_waitcnt lgkmcnt({b.lg_after('ds_write')})\ns_barrier")
        self.stamp(2)
        b(mrd[0])
        MX = X[1]
        val = addx + [f"v_max3_f32 v{MX}, abs(v{SX}), abs(v{SX+1}), abs(v{SX+2})"] + addm + \
              [f"v_max3_f32 v{MX}, v{MX}, abs(v{SX+3}), abs(v{SM})", f"v_max_f32 v{MX}, v{MX}, abs(v{SM+1})",
               f"v_cmp_lt_f32 vcc, s{S_BND}, v{MX}"]
        per = P.get("per", 2)
        first = [[mrd[1]]] + ([[f"s_add_u32 s{S_AR}, s{S_AR}, 9216"], [f"s_addc_u32 s{S_AR+1}, s{S_AR+1}, 0"]] if w == AW else [])
        while V:
            v1(*(first.pop(0) if first else []), *val[:per]); val = val[per:]
        for x in val: b(x)
        ex = [SX, SX+1, SX+2, SX+3, SM, SM+1]
        for r in ex:
            b(f"v_exp_f32 v{r}, v{r}")
            if self.bg: b(self.bg.pop(0))
        b(f"s_cbranch_vccnz L_max{sfx}")
        b.label(f"L_maxback{sfx}")
        def truemax(sb):
            sb.label(f"L_max{sfx}")
            for x in xr + [own] + mrd + addx + addm: sb(x)
            M, M2 = MX, MX+1
            sb(f"""
            v_max3_f32 v{M}, v{SX}, v{SX+1}, v{SX+2}
            v_max3_f32 v{M2}, v{SX+3}, v{SM}, v{SM+1}
            v_max_f32 v{M}, v{M}, v{M2}
            v_max_f32_dpp v{M}, v{M}, v{M} quad_perm:[2,3,0,1] row_mask:0xf bank_mask:0xf
            v_mov_b32 v{M2}, v{M}
            v_permlane16_swap_b32 v{M}, v{M2}
            v_max_f32 v{M}, v{M}, v{M2}
            v_mov_b32 v{M2}, v{M}
            v_permlane32_swap_b32 v{M}, v{M2}
            v_max_f32 v{M}, v{M}, v{M2}
            """)
            for r in ex: sb(f"v_sub_f32 v{r}, v{r}, v{M}")
            for r in ex: sb(f"v_exp_f32 v{r}, v{r}")
            sb(f"s_add_u32 s62, s62, 1\ns_waitcnt lgkmcnt(0)\ns_branch L_maxback{sfx}")
        self.slow.append(truemax)
        b(cvt(T1, SX)); b(cvt(T1+1, SX+2))
        b(f"v_cvt_pk_bf16_f32 v{T2}, v{SM}, v{SM}")
        b(f"v_mov_b32_dpp v{T1+2}, v{T1} quad_perm:[2,3,0,1] row_mask:0xf bank_mask:0xf")
        b(f"v_mov_b32_dpp v{T1+3}, v{T1+1} quad_perm:[2,3,0,1] row_mask:0xf bank_mask:0xf")
        b(f"v_cvt_pk_bf16_f32 v{T2+1}, v{SM+1}, v{SM+1}")
        assert not self.bg
        VM, ONE, ONEM, LS = RING, RING+4, RING+8, 60
        b(cvt(VM, QA))
        self.stamp(3)
        b(f"v_mfma_f32_16x16x32_bf16 {v(KA,4)}, {v(VX,4)}, {v(T1,4)}, 0")
        b(cvt(VM+1, QA+2)); b(cvt(VM+2, QA+4))
        b(f"v_mfma_f32_16x16x32_bf16 {v(KA+4,4)}, {v(VX+4,4)}, {v(T1,4)}, 0")
        b(cvt(VM+3, QA+6)); b(f"v_mov_b32 v{ONE}, s{S_ONE}")
        b(f"v_mfma_f32_16x16x16_bf16 {v(KA,4)}, {v(VM,2)}, {v(T2,2)}, {v(KA,4)}")
        b(f"v_mov_b32 v{ONE+1}, s{S_ONE}\nv_mov_b32 v{ONE+2}, s{S_ONE}")
        b(f"v_mfma_f32_16x16x16_bf16 {v(KA+4,4)}, {v(VM+2,2)}, {v(T2,2)}, {v(KA+4,4)}")
        b(f"v_mov_b32 v{ONE+3}, s{S_ONE}\nv_mov_b32 v{ONEM}, 0x3f80\nv_mov_b32 v{ONEM+1}, 0x3f80")
        for i in range(4): b(cvt(QA+i, KA+2*i))
        b(f"ds_write_b128 v{AD1}, {v(QA,4)}")
        OA = 24
        b(f"v_mfma_f32_16x16x32_bf16 {v(LS,4)}, {v(T1,4)}, {v(ONE,4)}, 0")
        gb = w == 3 and not nc and P.get("gb", 1)
        zz = [f"v_mov_b64 {v(OA+2*i,2)}, 0" for i in range(5, 5 + P.get("z1", 9))]
        if gb:
            zz = [f"v_mov_b32 v{T2+2}, s{S_TAG}"] + zz + [f"v_lshrrev_b32 v{T2+3}, 2, v{A1}", f"v_and_b32 v{T2+3}, 127, v{T2+3}"]
        gprobe = lambda i, a=T2+3: f"buffer_load_dword v{RING+i}, v{a}, s[{S_WS}:{S_WS+3}], s{S_GF} offen offset:128 sc1"
        for x in zz: b(x)
        for _ in range(P.get("f0", 0)): b(f"v_mov_b32 v{T2+2}, 0")
        b(f"v_mfma_f32_16x16x16_bf16 {v(LS,4)}, {v(T2,2)}, {v(ONEM,2)}, {v(LS,4)}")
        b("s_waitcnt lgkmcnt(0)\ns_barrier")
        self.stamp(4)
        b(f"ds_read_b128 {v(KX,4)}, v{A1} offset:{L_O}")
        b(f"v_mov_b64 {v(OA,2)}, 0")
        b(f"ds_read_b128 {v(KX+4,4)}, v{A1} offset:{L_O+1024}")
        for i in list(range(1, 5)) + list(range(5 + P.get("z1", 9), 18)): b(f"v_mov_b64 {v(OA+2*i,2)}, 0")
        PM, PA = LS+2, LS+3
        b(f"v_cndmask_b32 v{PM}, 0, 1, s[{S_QM}:{S_QM+1}]")
        b(f"v_lshrrev_b32 v{PA}, 1, v{A1}")
        b(f"v_rcp_f32 v{LS}, v{LS}\nv_rcp_f32 v{LS+1}, v{LS+1}")
        RL, RD, SEL32, RA, RS = 24, 40, 44, TMP, 65
        TL = (0,1,2,3,8,4,5,6,7)
        def post(m):
            n = TL[m]; a = OA + 4*m; d = T1 + n % 8
            r = [f"v_add_f32 v{a}, v{a}, v{a+1}", f"v_add_f32 v{a+2}, v{a+2}, v{a+3}",
                 f"v_mul_f32 v{a}, v{a}, v{LS}", f"v_mul_f32 v{a+2}, v{a+2}, v{LS+1}"]
            if n % 2: return r + [f"v_cvt_pk_bf16_f32 v{d}, v{a}, v{a+2}"]
            return r + [f"v_cvt_pk_bf16_f32 v{a}, v{a}, v{a+2}", f"v_bfi_b32 v{d}, v{PM}, s{S_TAG}, v{a}"]
        def store(k):
            so = S_PST if k == 0 else S_PS2
            nxt = {0: 1, 1: 4, 4: 2, 2: 3}.get(k)
            return [f"buffer_store_dwordx2 {v(T1 + (2*k if k < 4 else 0), 2)}, v{PA}, s[{S_WS}:{S_WS+3}], s{so} offen {self.st}"] + \
                   ([f"s_add_u32 s{S_PS2}, s{S_PST}, {65536*nxt}"] if nxt else [])
        rload = lambda n, R=RL: f"buffer_load_dwordx4 {v(R+4*n,4)}, v{RA}, s[{S_WS}:{S_WS+3}], s{S_RLD} offen offset:{n*512} sc1"
        O = [(f"O{TL[m]}", op, OA + 4*m, KX + 4*op) for m in range(9) for op in range(2)]
        p = [post(m) for m in range(9)]
        sh = [[] for _ in range(18)]
        sp = P.get("sp", 3)
        stg = P.get("stg", [0, 0, 1, 1])[w]
        for m in range(7):
            sh[2*m+3] += p[m][:sp]; sh[2*m+4] += p[m][sp:]
        for k, pos in ((0, 7), (1, 11), (4, 13), (2, 17)):
            pos = min(17, pos + stg); sh[pos] = store(k) + sh[pos]
        if gb:
            gp = P.get("gp", [10, 13, 16])
            sh[P.get("gf", 5)].insert(0, f"buffer_store_dword v{T2+2}, v{A1}, s[{S_FB}:{S_FB+3}], 0 offen {self.st}")
            for i in range(3): sh[gp[i]].insert(0, gprobe(i))
            sh[17] += p[7] + [f"v_cmp_gt_u32 vcc, s{S_TAG}, v{RING}"] + p[8] + store(3) + [f"s_cbranch_vccnz L_gb{sfx}", f"L_gbok{sfx}:"]
            after = lambda i: sum(x.startswith("buffer_") for k in range(gp[i], 18) for x in sh[k]) - 1
            def gslow(sb):
                GA = RING + 4
                sb.label(f"L_gb{sfx}")
                sb(f"v_lshrrev_b32 v{GA}, 2, v{A1}\nv_and_b32 v{GA}, 127, v{GA}")
                sb.raw("    " + gprobe(0, GA))
                sb(f"s_add_u32 s62, s62, 65536\ns_waitcnt vmcnt({after(1) + 1})\nv_cmp_gt_u32 vcc, s{S_TAG}, v{RING+1}")
                sb.raw("    " + gprobe(1, GA))
                sb(f"s_cbranch_vccz L_gbok{sfx}")
                sb(f"s_add_u32 s62, s62, 65536\ns_waitcnt vmcnt({after(2) + 2})\nv_cmp_gt_u32 vcc, s{S_TAG}, v{RING+2}")
                sb.raw("    " + gprobe(2, GA))
                sb(f"s_cbranch_vccz L_gbok{sfx}")
                sb.label(f"L_gbl{sfx}")
                for i in range(3):
                    sb(f"s_add_u32 s62, s62, 65536\ns_waitcnt vmcnt(2)\nv_cmp_gt_u32 vcc, s{S_TAG}, v{RING+i}")
                    sb.raw("    " + gprobe(i, GA))
                    sb(f"s_cbranch_vccz L_gbok{sfx}")
                sb(f"s_add_u32 s{S_TO}, s{S_TO}, 1\ns_cmp_lt_u32 s{S_TO}, {TIMEOUT}\ns_cbranch_scc1 L_gbl{sfx}\ns_branch L_gbok{sfx}")
            self.slow.append(gslow)
        else:
            sh[17] += p[7] + p[8] + store(3)
        r0 = P.get("r0s", [18, 18, 18, 18])[w]
        if r0 < 18 and not nc:
            for n in range(4): sh[min(17, r0 + n)].insert(0, rload(n))
        for i in range(18):
            smf(*O[i], *sh[i])
            self.stamp(20 + i)
        if not nc and P.get("gb", 1): b("s_barrier")
        tailbg, self.bg = self.bg, []
        if nc or w == 3:
            for x in tailbg: b(x)
        self.stamp(5)
        if P.get("nocomm") or w == 3:
            self.stamp(7)
            return
        if w < 3:
            def setup():
                if w != 2:
                    for x in tailbg: b(x)
                b(f"""
                v_bfe_u32 v66, v{A1}, 4, 4
                v_mov_b32 v67, 0x3f80
                v_and_b32 v69, 1, v66
                v_lshlrev_b32 v70, 4, v69
                v_lshlrev_b32 v67, v70, v67
                v_lshrrev_b32 v68, 1, v66
                v_cmp_eq_u32 vcc, 0, v68
                v_cmp_eq_u32 s[{S_T0}:{S_T0+1}], 1, v68
                v_bfe_u32 v70, v66, 1, 1
                v_cndmask_b32 v{SEL32}, 0, v67, vcc
                v_cndmask_b32 v{SEL32+1}, 0, v67, s[{S_T0}:{S_T0+1}]
                v_cmp_eq_u32 vcc, 2, v68
                v_cmp_eq_u32 s[{S_T0}:{S_T0+1}], 3, v68
                v_lshlrev_b32 v70, 10, v70
                v_cndmask_b32 v{SEL32+2}, 0, v67, vcc
                v_cndmask_b32 v{SEL32+3}, 0, v67, s[{S_T0}:{S_T0+1}]
                v_lshl_add_u32 v70, v69, 5, v70
                v_and_b32 v69, {10 if w == 2 else 8}, v66
                v_cmp_eq_u32 vcc, 0, v69
                v_and_b32 v69, 4, v66
                v_add_u32 v70, v70, v69
                v_bfe_u32 v69, v{A1}, 8, 1
                v_lshl_add_u32 v68, v69, 4, v70
                v_lshrrev_b32 v69, 9, v{A1}
                v_lshl_add_u32 v68, v69, 3, v68
                v_mov_b32 v69, 0x40000000
                v_cndmask_b32 v{RS}, v69, v68, vcc
                v_mov_b32 v70, -1
                v_mov_b32 v64, s{S_TAG}
                s_add_u32 s{S_T0}, s{S_RST}, s{S_MNEXT}
                s_add_u32 s{S_T1}, s{S_RST}, s{S_MCUR}
                """)
            flag = f"buffer_store_byte v64, v71, s[{S_FL}:{S_FL+3}], 0 offen {self.st}"
            if w == 2:
                for x in tailbg: b(x)
            if w == 2: b(f"s_cmp_ge_u32 s{S_HEAD}, 16\ns_cbranch_scc1 L_redend{sfx}")
            pre = P.get("pre", [0, 1, 0])[w]
            two = P.get("two", [0, 1, 0])[w]
            if pre: setup()
            if r0 >= 18:
                b.nop(P["d1"][w] // 4)
                for n in range(4): b(rload(n))
            if not pre: setup()
            def check(b, R, nafter):
                mm = lambda n: f"v_mfma_f32_16x16x32_bf16 {v(RD,4)}, {v(R+4*n,4)}, {v(SEL32,4)}, {'0' if n == 0 else v(RD,4)}"
                for n in range(4):
                    if nafter is not None:
                        b.vm = []
                        b(f"s_waitcnt vmcnt({3 - n + nafter})")
                    b(mm(n))
                    if b is self.b and n in (0, 3): self.stamp(50 + n)
                    b(f"v_xor_b32 v66, v64, v{R}" if n == 0 else f"v_bitop3_b32 v66, v66, v64, v{R+4*n} bitop3:0xf6")
                b(f"v_and_b32 v66, 1, v66")
                b(f"v_cmp_ne_u32 vcc, 0, v66")
            if two:
                b.nop(P.get("rgap", 80) // 4)
                for n in range(4): b(rload(n, QA))
            check(b, RL, None)
            b(f"s_cbranch_vccnz L_redslow{sfx}")
            b.label(f"L_redgo{sfx}")
            def slow(sb):
                sb.label(f"L_redslow{sfx}")
                for n in range(4): sb(rload(n))
                sb(f"s_add_u32 s60, s60, 1\ns_add_u32 s{S_TO}, s{S_TO}, 1\ns_cmp_gt_u32 s{S_TO}, {TIMEOUT}\ns_cbranch_scc1 L_redgo{sfx}")
                if two:
                    check(sb, QA, 4)
                    sb(f"s_cbranch_vccz L_redgo{sfx}")
                    for n in range(4): sb(rload(n, QA))
                    sb("s_add_u32 s60, s60, 1\ns_nop 3")
                check(sb, RL, 4*two)
                sb(f"s_cbranch_vccnz L_redslow{sfx}\ns_branch L_redgo{sfx}")
            self.slow.append(slow)
            b.vm = []
            b(f"v_permlane32_swap_b32 v{RD}, v{RD+2}\nv_permlane32_swap_b32 v{RD+1}, v{RD+3}")
            b(f"v_add_f32 v{RD}, v{RD}, v{RD+2}\nv_add_f32 v{RD+1}, v{RD+1}, v{RD+3}")
            b(f"v_cvt_pk_bf16_f32 v{RD}, v{RD}, v{RD+1}")
            b(f"buffer_store_dword v{RD}, v{RS}, s[{S_WS}:{S_WS+3}], s{S_T0} offen {self.st}")
            b(f"buffer_store_dword v70, v{RS}, s[{S_WS}:{S_WS+3}], s{S_T1} offen {self.st}")
            b.label(f"L_redend{sfx}")
        self.stamp(7)
    def emit(self):
        b = self.b
        b.vm, b.lg, b.hist = [], [], []
        b.raw(".p2align 6")
        b.label(f"L_loop{self.sfx}")
        self.head()
        n0 = len(b.out)
        self.body()
        if self.P.get("at") is not None:
            idx = [k for k in range(n0, len(b.out)) if ("mfma" in b.out[k] or "s_barrier" in b.out[k] or "v_exp" in b.out[k])]
            k = idx[self.P["at"]]
            self.P["at_text"] = b.out[k]
            b.out.insert(k, "    s_memtime s[66:67]")
        if self.P.get("stamp"):
            b("s_waitcnt lgkmcnt(0)")
            if self.P.get("trace"):
                b.raw("    s_memrealtime s[80:81]\n    s_memtime s[78:79]\n    s_waitcnt lgkmcnt(0)")
                for i, r in enumerate([80, 78, 64, 66, 68, 70, 72, 74]): b(f"v_mov_b32 v{T1+i}, s{r}")
                b(f"s_lshl_b32 s{S_T2}, s{S_HEAD}, 2\ns_add_u32 s{S_T2}, s{S_T2}, {self.w}\ns_lshl_b32 s{S_T2}, s{S_T2}, 6\ns_add_u32 s{S_T2}, s{S_T2}, s{S_STEP}\ns_lshl_b32 s{S_T2}, s{S_T2}, 5\ns_add_u32 s{S_T2}, s{S_T2}, 8192")
                b(f"v_mov_b32 v{KX}, s{S_T2}\ns_mov_b64 exec, 1")
                b(f"global_store_dwordx4 v{KX}, {v(T1,4)}, s[4:5]\nglobal_store_dwordx4 v{KX}, {v(T2,4)}, s[4:5] offset:16\ns_mov_b64 exec, -1\ns_nop 1")
            elif self.P.get("rt"):
                b(f"s_cmp_eq_u32 s{S_STEP}, {self.P['rt']}")
                for i in range(0, 8): b(f"s_cselect_b32 s{84+i}, s{64+2*i}, s{84+i}")
            else:
              for i in range(1, 9):
                if i >= len(self.P.get("stamps", range(9))): break
                b(f"s_sub_u32 s{S_T2}, s{64+2*i}, s64\ns_cmp_gt_u32 s{S_STEP}, 3\ns_cselect_b32 s{S_T2}, s{S_T2}, 0\ns_add_u32 s{83+i}, s{83+i}, s{S_T2}")
        b(f"s_branch L_loop{self.sfx}")
        for f in self.slow:
            b.vm, b.lg, b.hist = [], [], []
            f(b)

def team_static(b, ptr):
    C.srd(b, S_WS, ptr['WS'], C.W.ARCH)
    b(f"""
    s_lshl_b32 s{S_T0}, s{S_WAVE}, 14
    s_lshl_b32 s{S_T1}, s{S_HEAD}, 9
    s_add_u32 s{S_PST}, s{S_T0}, s{S_T1}
    s_lshl_b32 s{S_T0}, s{S_WAVE}, 5
    s_add_u32 s{S_T0}, s{S_T0}, s{S_HEAD}
    s_lshr_b32 s{S_RLD}, s{S_T0}, 2
    s_lshl_b32 s{S_RLD}, s{S_RLD}, 14
    s_and_b32 s{S_T1}, s{S_T0}, 3
    s_lshl_b32 s{S_T1}, s{S_T1}, 7
    s_add_u32 s{S_RLD}, s{S_RLD}, s{S_T1}
    s_lshr_b32 s{S_RST}, s{S_T0}, 4
    s_lshl_b32 s{S_RST}, s{S_RST}, 11
    s_and_b32 s{S_T1}, s{S_T0}, 15
    s_lshl_b32 s{S_T1}, s{S_T1}, 6
    s_add_u32 s{S_RST}, s{S_RST}, s{S_T1}
    s_mov_b32 s{S_C}, {SCALE_HEX}
    s_mul_i32 s{S_H288}, s{S_HEAD}, 288
    s_mov_b32 s{S_LAY}, 0
    s_mov_b32 s{S_BARN}, 0
    s_lshl_b32 s{S_T0}, s{S_HEAD}, {2 + C.PSH}
    s_add_u32 s{S_T0}, s{S_T0}, {C.W.PROG + C.P_TEAM}
    s_add_u32 s{S_PT}, s{ptr['WS']}, s{S_T0}
    s_addc_u32 s{S_PT+1}, s{ptr['WS']+1}, 0
    s_mov_b32 s{S_PT+2}, 4
    s_mov_b32 s{S_PT+3}, 0x20000
    """)

def team_arrive(b, ptr):
    L = C.uid("ta")
    b(f"""
    s_waitcnt vmcnt(0)
    s_barrier
    s_add_u32 s{S_BARN}, s{S_BARN}, 32
    s_cmp_lg_u32 s{S_WAVE}, 0
    s_cbranch_scc1 {L}
    v_mov_b32 v26, {C.D_TB}
    v_mov_b32 v27, 1
    s_mov_b64 exec, 1
    global_atomic_add v26, v27, s[{ptr['DBG']}:{ptr['DBG']+1}]
    s_mov_b64 exec, -1
    s_waitcnt vmcnt(0)
    {L}:
    """)
def team_wait(b, ptr):
    L = C.uid("tw")
    b(f"v_mov_b32 v26, {C.D_TB}")
    b.label(L)
    b(f"""
    global_load_dword v27, v26, s[{ptr['DBG']}:{ptr['DBG']+1}] sc1
    s_add_u32 s{S_TO}, s{S_TO}, 1
    s_cmp_gt_u32 s{S_TO}, {TIMEOUT}
    s_waitcnt vmcnt(0)
    s_cbranch_scc1 {L}_d
    v_cmp_gt_u32 vcc, s{S_BARN}, v27
    s_cbranch_vccnz {L}
    {L}_d:
    """)

def team_layer_init(b, ptr, tid, kv_in_ws=True):
    st = "sc1"
    if kv_in_ws:
        b(f"s_mul_i32 s{S_T0}, s{S_LAY}, {C.W.KV_L}\ns_add_u32 s{S_T0}, s{S_T0}, {C.W.KV}")
        C.srd(b, S_KV, ptr['WS'], KV_BYTES, f"s{S_T0}")
    else:
        C.srd(b, S_KV, ptr['KV'], KV_BYTES)
    b(f"s_mul_i32 s{S_T0}, s{S_LAY}, {64*9216}\ns_add_u32 s{S_T0}, s{S_T0}, s{S_H288}\ns_add_u32 s{S_T0}, s{S_T0}, {C.W.ARCH}")
    C.srd(b, S_AR, ptr['WS'], 288, f"s{S_T0}")
    b(f"""
    s_mov_b32 s{S_MNEXT}, {Lay.MEMX}
    s_mov_b32 s{S_MCUR}, {Lay.MEMX}
    s_lshl_b32 s{S_KVO}, s{S_HEAD}, 14
    s_lshl_b32 s{S_T0}, s{S_WAVE}, 12
    s_add_u32 s{S_KVO}, s{S_KVO}, s{S_T0}
    s_sub_u32 s{S_KVO}, s{S_KVO}, {32*16384}
    s_mov_b32 s{S_STEP}, 0
    s_mov_b32 s{S_TAG}, 0
    s_lshl_b32 s{S_NEED}, s{S_LAY}, 6
    s_add_u32 s{S_NEED}, s{S_NEED}, 1
    s_lshl_b32 s{S_PG}, s{S_HEAD}, {2 + C.PSH}
    s_add_u32 s{S_PG}, s{S_PG}, {C.W.PROG + C.P_HWP}
    v_and_b32 v25, 63, v{tid}
    v_lshlrev_b32 v25, 3, v25
    v_mov_b32 v28, 0
    v_mov_b32 v29, 0
    s_mov_b32 s{S_PS2}, s{S_PST}
    """)
    for n in range(5):
        b(f"buffer_store_dwordx2 v[28:29], v25, s[{S_WS}:{S_WS+3}], s{S_PS2} offen {st}\ns_add_u32 s{S_PS2}, s{S_PS2}, 65536")
    b(f"""
    ; clear own gate flags
    v_lshlrev_b32 v26, 7, v{tid}
    s_lshl_b32 s{S_T0}, s{S_HEAD}, 2
    s_add_u32 s{S_T0}, s{S_T0}, {Lay.FLAG}
    v_mov_b32 v32, 0x40000000
    v_cmp_gt_u32 vcc, 2, v{tid}
    v_cndmask_b32 v26, v32, v26, vcc
    buffer_store_dword v28, v26, s[{S_WS}:{S_WS+3}], s{S_T0} offen {st}
    s_mul_i32 s{S_T0}, s{S_HEAD}, 18
    v_add_u32 v26, s{S_T0}, v{tid}
    v_bfe_u32 v27, v26, 1, 3
    v_mul_u32_u24 v27, 1152, v27
    v_lshrrev_b32 v32, 4, v26
    v_lshl_add_u32 v27, v32, 5, v27
    v_and_b32 v32, 1, v26
    v_lshl_add_u32 v27, v32, 4, v27
    v_lshlrev_b32 v26, 4, v26
    v_mov_b32 v32, 0x40000000
    v_cmp_gt_u32 vcc, 18, v{tid}
    v_cndmask_b32 v26, v32, v26, vcc
    v_cndmask_b32 v27, v32, v27, vcc
    s_mov_b32 s{S_W}, s{ptr['MEM0']}
    s_mov_b32 s{S_W+1}, s{ptr['MEM0']+1}
    s_mov_b32 s{S_W+2}, 9216
    s_mov_b32 s{S_W+3}, 0x20000
    buffer_load_dwordx4 v[36:39], v27, s[{S_W}:{S_W+3}], 0 offen
    v_mov_b64 v[32:33], -1
    v_mov_b64 v[34:35], -1
    s_mov_b32 s{S_T0}, {Lay.MEMX + MEMX_SLOT}
    s_mov_b32 s{S_T1}, {Lay.MEMX + 2*MEMX_SLOT}
    buffer_store_dwordx4 v[32:35], v26, s[{S_WS}:{S_WS+3}], s{S_T0} offen {st}
    buffer_store_dwordx4 v[32:35], v26, s[{S_WS}:{S_WS+3}], s{S_T1} offen {st}
    s_mov_b32 s{S_T0}, 0x05040100
    s_mov_b32 s{S_T1}, 0x07060302
    v_perm_b32 v40, v37, v36, s{S_T0}
    v_perm_b32 v41, v37, v36, s{S_T1}
    v_perm_b32 v42, v39, v38, s{S_T0}
    v_perm_b32 v43, v39, v38, s{S_T1}
    buffer_store_dwordx4 v[40:43], v26, s[{S_WS}:{S_WS+3}], s{S_MNEXT} offen {st}
    """)
    team_arrive(b, ptr)

def team_consts(b, ptr, bound=0x42200000):
    consts(b)
    L = C.uid("tc")
    b(f"""
    v_lshrrev_b32 v26, 7, v{A1}
    v_lshlrev_b32 v26, 11, v26
    v_and_b32 v27, 127, v{A1}
    v_add_u32 v{TMP}, v26, v27
    s_cmp_eq_u32 s{S_WAVE}, 3
    s_cbranch_scc0 {L}
    v_add_u32 v{TMP}, s{S_H288}, v{A1}
    {L}:
    s_mov_b32 s{S_GF}, {Lay.FLAG}
    s_mov_b32 s{S_SL}, 0x05040100
    s_mov_b32 s{S_SH}, 0x07060302
    s_mov_b32 s{S_BND}, {bound}
    s_mov_b32 s{S_ONE}, 0x3f803f80
    s_mov_b32 s{S_QM}, 0x55555555
    s_mov_b32 s{S_QM+1}, 0x55555555
    s_mov_b32 s{S_XM}, 0xcccccccc
    s_mov_b32 s{S_XM+1}, 0xcccccccc
    """)

def team_go(b, ptr, names):
    b(f"s_lshl_b32 s{S_T0}, s{S_HEAD}, 2\ns_add_u32 s{S_T0}, s{S_T0}, {Lay.FLAG}")
    C.srd(b, S_FL, ptr['WS'], 4, f"s{S_T0}")
    C.srd(b, S_FB, S_FL, 4, 128)
    b(f"s_mul_i32 s{S_T0}, s{S_WAVE}, {PIECE}\ns_add_u32 s{S_T0}, s{S_T0}, {L_W}\nv_add_u32 v{A2}, s{S_T0}, v{A1}")
    for op in range(2):
        for hf in range(2):
            b(f"ds_read_b128 {v(8+8*op+4*hf,4)}, v{A2} offset:{op*2048 + hf*1024}")
    team_wait(b, ptr)
    L = C.uid("tg")
    if len(names) > 1:
        b(f"""
        v_mov_b32 v26, {C.D_SLOW}
        global_load_dword v27, v26, s[{ptr['DBG']}:{ptr['DBG']+1}] sc1
        s_waitcnt vmcnt(0)
        v_cmp_ne_u32 vcc, 0, v27
        """)
    b("s_waitcnt vmcnt(0) lgkmcnt(0)")
    if len(names) > 1: b(f"s_cbranch_vccnz {L}")
    for k, name in enumerate(names):
        if k: b.label(L)
        for w in range(1, 4):
            b(f"s_cmp_eq_u32 s{S_WAVE}, {w}\ns_cbranch_scc1 L_loop_{name}_w{w}")
        b(f"v_mov_b32 v{A2}, 0\ns_branch L_loop_{name}_w0")

DEFAULTS = dict(nstep=63, stamp=0, d1=[0,60,0], d2=[120], z1=11, two=[0,0,0], npoll=6, pgap=10, gp=[9,12,15], gf=4, noprobe=1)

def emit(b, nlayers, done, **kw):
    ptr = C.PT
    b.reset()
    b.label("L_team")
    for r in (60, 61, 62, 63): b(f"s_mov_b32 s{r}, 0")
    team_static(b, ptr)
    team_layer_init(b, ptr, 0)
    prologue_weights(b, ptr)
    team_consts(b, ptr)
    C.wait_init(b, 26, 27, False)
    b.label("L_team_go")
    team_go(b, ptr, ["f", "s"])
    for name, st in (("f", ""), ("s", "sc1")):
        P = dict(DEFAULTS, name=name, exit="L_team_exit", mega=1); P.update(kw)
        for w in range(4): Loop(b, w, st, P).emit()
    b.reset()
    b.label("L_team_exit")
    if kw.get("light"):
        b(f"""
        s_waitcnt vmcnt(0) lgkmcnt(0)
        s_memrealtime s[100:101]
        s_memtime s[4:5]
        s_waitcnt lgkmcnt(0)
        s_sub_u32 s100, s100, s92
        s_sub_u32 s4, s4, s94
        v_mov_b32 v24, s100
        v_mov_b32 v25, s4
        v_mov_b32 v26, s60
        v_mov_b32 v27, s61
        v_mov_b32 v28, s62
        v_mov_b32 v29, s63
        s_lshl_b32 s4, s{S_LAY}, 2
        s_add_u32 s4, s4, s{S_WAVE}
        s_lshl_b32 s4, s4, 5
        s_add_u32 s5, s{S_HEAD}, 224
        s_lshl_b32 s5, s5, 13
        s_add_u32 s4, s4, s5
        s_add_u32 s4, s4, 4096
        buffer_store_dwordx4 v[24:27], off, s[96:99], s4
        buffer_store_dwordx2 v[28:29], off, s[96:99], s4 offset:16
        """)
    b(f"""
    s_waitcnt vmcnt(0) lgkmcnt(0)
    s_cmp_lg_u32 s{S_WAVE}, {AW}
    s_cbranch_scc1 L_team_x2
    v_mov_b32 v26, s{S_NEED}
    buffer_store_dword v26, v{A1}, s[{S_PT}:{S_PT+3}], 0 offen sc1
    L_team_x2:
    s_add_u32 s{S_LAY}, s{S_LAY}, 1
    s_cmp_ge_u32 s{S_LAY}, {nlayers}
    s_cbranch_scc1 {done}
    """)
    team_arrive(b, ptr); team_wait(b, ptr)
    b(f"v_lshrrev_b32 v24, 4, v{A1}\ns_lshl_b32 s{S_T0}, s{S_WAVE}, 6\nv_add_u32 v24, s{S_T0}, v24")
    team_layer_init(b, ptr, 24)
    b("s_branch L_team_go")
```

```python
import sys, os
sys.path.insert(0, os.path.dirname(os.path.abspath(__file__)))
from asmb import Asm
from common import *
import team, hw, ow, qw
NAME = "interleave_layers__memory_aug_recurrent_mem_tr__softmax_full_mha__prompt"

def body(nlayers=2, roles=("hw", "ow", "qw", "bw"), force_slow=False, team_kw={}, bw_kw={}, tr=False):
    TRACE_ON[0] = tr
    b = Asm()
    b(f"""
    s_cmp_ge_u32 s2, 256
    s_cbranch_scc1 L_end0
    s_load_dwordx16 s[64:79], s[0:1], 0
    s_load_dwordx8 s[80:87], s[0:1], 64
    s_load_dwordx2 s[88:89], s[0:1], 96
    s_getreg_b32 s4, hwreg(HW_REG_XCC_ID)
    s_and_b32 s4, s4, 15
    s_getreg_b32 s5, hwreg(HW_REG_HW_ID, 4, 2)
    v_lshrrev_b32 v1, 6, v0
    v_readfirstlane_b32 s{S_WAVE}, v1
    v_lshlrev_b32 v1, 2, v1
    s_lshl_b32 s6, 1, s5
    v_mov_b32 v2, s6
    ds_write_b32 v1, v2 offset:16
    s_mov_b32 s{S_TO}, 0
    s_mov_b32 s{S_ONE}, 0x3f803f80
    s_waitcnt lgkmcnt(0)
    """)
    srd(b, S_WS, PT['WS'], W.END)
    D = PT['DBG']
    b(f"""
    s_cmp_lg_u32 s{S_WAVE}, 0
    s_cbranch_scc1 L_e_bar
    s_mov_b64 exec, 1
    v_mov_b64 v[2:3], 0
    s_mul_i32 s6, s2, {12 << PSH}
    s_add_u32 s6, s6, {W.PROG}
    buffer_store_dword v2, off, s[{S_WS}:{S_WS+3}], s6 sc1
    buffer_store_dword v2, off, s[{S_WS}:{S_WS+3}], s6 offset:{4 << PSH} sc1
    buffer_store_dword v2, off, s[{S_WS}:{S_WS+3}], s6 offset:{8 << PSH} sc1
    v_mov_b32 v4, 1
    s_waitcnt vmcnt(0)
    s_cmp_lg_u32 s4, {15 if force_slow else 0}
    s_cbranch_scc1 L_e_worker
    global_atomic_add v5, v2, v4, s[{D}:{D+1}] offset:{D_T0} sc0
    s_waitcnt vmcnt(0)
    v_readfirstlane_b32 s6, v5
    s_add_u32 s7, s6, 224
    s_cmp_lt_u32 s6, 32
    s_cbranch_scc1 L_e_got
    L_e_worker:
    global_atomic_add v5, v2, v4, s[{D}:{D+1}] offset:{D_TW} sc0
    s_waitcnt vmcnt(0)
    v_readfirstlane_b32 s7, v5
    s_cmp_lt_u32 s7, 224
    s_cbranch_scc1 L_e_got
    s_sub_u32 s7, {255 + 224}, s7
    global_atomic_add v2, v4, s[{D}:{D+1}] offset:{D_SLOW}
    L_e_got:
    s_waitcnt vmcnt(0)
    v_mov_b32 v5, s7
    ds_write_b32 v2, v5
    s_waitcnt lgkmcnt(0)
    s_mov_b64 exec, -1
    L_e_bar:
    s_barrier
    v_mov_b32 v2, 0
    ds_read_b32 v3, v2
    ds_read_b128 v[4:7], v2 offset:16
    s_waitcnt lgkmcnt(0)
    v_or3_b32 v4, v4, v5, v6
    v_or_b32 v4, v4, v7
    v_readfirstlane_b32 s{S_ID}, v3
    v_readfirstlane_b32 s6, v4
    s_barrier
    s_cmp_eq_u32 s6, 15
    s_cselect_b32 s{S_WAVE}, s5, s{S_WAVE}
    s_lshl_b32 s6, s{S_WAVE}, 6
    v_and_b32 v0, 63, v0
    v_or_b32 v0, s6, v0
    """)
    trace_init(b, S_ID); trace(b, 8, 2)
    for nm, n in (("hw", N_HW), ("ow", N_OW), ("qw", N_QW), ("bw", N_BW)):
        b(f"s_cmp_lt_u32 s{S_ID}, {n}\ns_cbranch_scc1 {'L_j_' + nm if nm in roles else 'L_end0'}\ns_sub_u32 s{S_ID}, s{S_ID}, {n}")
    b(f"s_and_b32 s{S_ID}, s{S_ID}, 31\ns_branch L_team")
    b.label("L_end0")
    b("s_endpgm")
    for nm in roles: b(f"L_j_{nm}:\ns_branch L_{nm}")
    full = nlayers == 2 and "bw" in roles
    team.emit(b, nlayers, "L_ww_team" if full else "L_end", **team_kw)
    if "hw" in roles: hw.emit(b, nlayers, "L_help" if full else "L_end")
    if "ow" in roles: ow.emit(b, nlayers, "L_ww_ow" if full else "L_end")
    if "qw" in roles: qw.emit(b, nlayers)
    if "bw" in roles:
        import bw
        bw.emit(b, nlayers, **bw_kw)
    b.reset()
    b.label("L_end")
    prof_dump(b)
    b("s_waitcnt vmcnt(0)")
    return b.finish()

def full(**kw):
    ref = open(os.path.join(os.path.dirname(os.path.abspath(__file__)), "..", "cdna_kernels", NAME + ".s.ref")).read()
    head = [l for l in ref.split("\n") if l.startswith(";") and "@launch" not in l and "Override launch" not in l and "grid=ceil" not in l]
    out = "\n".join(head) + f"\n; @launch grid=(256,1,1) block=(256,1,1) lds={LDS_BYTES}\n"
    out += f""".amdgcn_target "amdgcn-amd-amdhsa--gfx950"
.text
.globl {NAME}_kernel
.p2align 8
.type {NAME}_kernel,@function
{NAME}_kernel:
"""
    out += body(**kw)
    out += f"""s_endpgm
.section .rodata,"a"
.p2align 6
.amdhsa_kernel {NAME}_kernel
  .amdhsa_next_free_vgpr 512
  .amdhsa_next_free_sgpr 102
  .amdhsa_accum_offset 256
  .amdhsa_group_segment_fixed_size 0
  .amdhsa_kernarg_size 104
  .amdhsa_user_sgpr_count 2
  .amdhsa_user_sgpr_kernarg_segment_ptr 1
  .amdhsa_system_sgpr_workgroup_id_x 1
.end_amdhsa_kernel
"""
    return out
if __name__ == "__main__":
    open(os.path.join(os.path.dirname(os.path.abspath(__file__)), "..", "cdna_kernels", NAME + ".s"), "w").write(full())
```
